```python
import torch

def _softmax(x, axis=-1):
    return torch.softmax(x, dim=axis)
def _gelu(x):
    return torch.nn.functional.gelu(x, approximate="tanh")
def _silu(x):
    return torch.nn.functional.silu(x)
def _sigmoid(x):
    return torch.sigmoid(x)
def _layernorm(x, axis=-1, eps=1e-5):
    m = x.mean(dim=axis, keepdim=True)
    v = x.var(dim=axis, keepdim=True, unbiased=False)
    return (x - m) / torch.sqrt(v + eps)
def _scatter_add(tgt, idx, src, axis=0):
    return tgt.clone().index_add_(axis, idx, src)
def _segment_sum(src, seg, n):
    out = torch.zeros((n,) + src.shape[1:], dtype=src.dtype)
    return out.index_add_(0, seg, src)
def _pad(x, pw):
    flat = tuple(v for pair in reversed(pw) for v in pair)
    return torch.nn.functional.pad(x, flat)

kernel_name = 'sequential_preLN__sliding_local_dilated__glu_gated_swiglu__prompt'

def setup_inputs():

    _w = (lambda a: (lambda t: t.to(torch.bfloat16) if t.is_floating_point() else t)(torch.as_tensor(a)))
    def _A_setup():
        B, S, D = 1, 2048, 512
        return {
            "x": _w((lambda *s: torch.randn(*s, dtype=torch.bfloat16) * 0.05)(B, S, D)),
            "wqkv": _w((lambda *s: torch.randn(*s, dtype=torch.bfloat16) * 0.05)(D, 3 * D)),
            "wo": _w((lambda *s: torch.randn(*s, dtype=torch.bfloat16) * 0.05)(D, D)),
        }
    _A_in = _A_setup()

    def _B_setup():
        B, S, D, F = 1, 2048, 512, 1792
        return {
            "x": _w((lambda *s: torch.randn(*s, dtype=torch.bfloat16) * 0.05)(B, S, D)),
            "w1": _w((lambda *s: torch.randn(*s, dtype=torch.bfloat16) * 0.8)(D, F) * (2.0 / D) ** 0.5),
            "w3": _w((lambda *s: torch.randn(*s, dtype=torch.bfloat16) * 0.8)(D, F) * (2.0 / D) ** 0.5),
            "w2": _w((lambda *s: torch.randn(*s, dtype=torch.bfloat16) * 0.8)(F, D) * (2.0 / F) ** 0.5),
        }
    _B_in = _B_setup()

    return {
        "A_x": _A_in["x"],
        "A_wqkv": _A_in["wqkv"],
        "A_wo": _A_in["wo"],
        "B_x": _B_in["x"],
        "B_w1": _B_in["w1"],
        "B_w3": _B_in["w3"],
        "B_w2": _B_in["w2"],
    }

def reference(A_x, A_wqkv, A_wo, B_x, B_w1, B_w3, B_w2):
    def _A_ref(x, wqkv, wo):
        B, S, D = x.shape
        H = 32; Dh = D // H
        W, dil = 8, 2
        qkv = (lambda x, *d: x.permute(*d))((x @ wqkv).reshape(B, S, 3, H, Dh), 2, 0, 3, 1, 4)
        q, k, v = qkv[0], qkv[1], qkv[2]
        scale = Dh ** -0.5
        pos = torch.arange(S)
        off = torch.arange(W) * dil
        idx = pos[:, None] - off[None, :]
        mask = idx >= 0
        idx_c = torch.where(mask, idx, 0).reshape(-1)
        kg = k[:, :, idx_c, :].reshape(B, H, S, W, Dh)
        vg = v[:, :, idx_c, :].reshape(B, H, S, W, Dh)
        logits = torch.einsum("bhsd,bhswd->bhsw", q, kg) * scale
        logits = torch.where(mask[None, None, :, :], logits, -1e9)
        attn = _softmax(logits, axis=-1)
        o = torch.einsum("bhsw,bhswd->bhsd", attn, vg)
        return (lambda x, *d: x.permute(*d))(o, 0, 2, 1, 3).reshape(B, S, D) @ wo

    def _B_ref(x, w1, w3, w2):
        gate = torch.einsum("bsd,df->bsf", x, w1)
        up = torch.einsum("bsd,df->bsf", x, w3)
        h = _silu(gate) * up
        out = torch.einsum("bsf,fd->bsd", h, w2)
        return out

    x = A_x
    h = x + _A_ref(_layernorm(x, axis=-1), A_wqkv, A_wo)
    h2 = h + _B_ref(_layernorm(h, axis=-1), B_w1, B_w3, B_w2)
    return h2
```

```python
HEADER = """; Kernarg layout for this problem (80 bytes, ptrs only, base s[0:1]):
"""


class Kernel:
    def __init__(self, name, grid, block, lds, nvgpr=256, nagpr=0, nsgpr=102):
        self.name = name
        self.grid = grid
        self.block = block
        self.lds = lds
        self.nvgpr = nvgpr
        self.nagpr = nagpr
        self.nsgpr = nsgpr
        self.lines = []
        self._lab = 0

    def __call__(self, s):
        for ln in s.split("\n"):
            ln = ln.strip()
            if ln:
                self.lines.append(ln)

    def label(self, base="L"):
        self._lab += 1
        return f"{self.name}_{base}{self._lab}"

    def text(self):
        out = [f".globl {self.name}", ".p2align 8", f".type {self.name},@function", f"{self.name}:"]
        for ln in self.lines:
            if ln.endswith(":"):
                out.append(ln)
            else:
                out.append("    " + ln)
        return "\n".join(out) + "\n"

    def desc(self):
        acc = (self.nvgpr + 3) // 4 * 4
        nfv = acc + self.nagpr if self.nagpr else self.nvgpr
        return f""".p2align 6
.amdhsa_kernel {self.name}
  .amdhsa_next_free_vgpr {nfv}
  .amdhsa_next_free_sgpr {self.nsgpr}
  .amdhsa_accum_offset {acc}
  .amdhsa_group_segment_fixed_size 0
  .amdhsa_kernarg_size 80
  .amdhsa_user_sgpr_count 2
  .amdhsa_user_sgpr_kernarg_segment_ptr 1
  .amdhsa_system_sgpr_workgroup_id_x 1
  .amdhsa_float_denorm_mode_32 3
.end_amdhsa_kernel
"""


def emit_file(path, kernels, launches=None, single=False):
    if launches is None:
        launches = kernels
    s = HEADER
    if single:
        k = launches[0]
        s += f"; @launch grid=({k.grid},1,1) block=({k.block},1,1) lds={k.lds}\n"
    else:
        for k in launches:
            s += f"; @launch kernel={k.name} grid=({k.grid},1,1) block=({k.block},1,1) lds={k.lds}\n"
    s += '.amdgcn_target "amdgcn-amd-amdhsa--gfx950"\n.text\n'
    for k in kernels:
        s += k.text()
    s += '.section .rodata,"a"\n'
    for k in kernels:
        s += k.desc()
    open(path, "w").write(s)
```

```python
import sys
import struct
from asmlib import *

KNAME = "sequential_preLN__sliding_local_dilated__glu_gated_swiglu__prompt_kernel"

WS_O = 0x000000
WS_H = 0x200000
WS_HH = 0x400000
WS_ST = 0xB00000
WS_S1 = 0xB80000
WS_FL = 0xC00000
WS_STAMP = 0xD00000
WS_SIZE = 0xE00000
SPIN_MAX = 400000

S_X, S_WQKV, S_WO, S_W1, S_W3, S_W2, S_OUT, S_WS = 8, 12, 16, 20, 24, 28, 32, 36
S_DBG = 40
S_WAVE = 42
S_XCD = 43
S_FAST = 44
S_G = 45
S_M = 46
S_TB = 47
S_C8 = 48
S_T = 49
S_ONES = 56
S_XOFF = 57
S_WOFF = 61
S_SW = 65
S_EXM = 66
S_LB = 68
S_C = 70
S_FLB = 71
S_STAMP = 72


def f2h(x):
    return "0x%08x" % struct.unpack("<I", struct.pack("<f", x))[0]


def vr(a, n):
    return f"v[{a}:{a+n-1}]"


def ar(a, n):
    return f"a[{a}:{a+n-1}]"


def sr(a, n):
    return f"s[{a}:{a+n-1}]"


class G:
    def __init__(self, stamps=False, opts=None):
        self.k = Kernel(KNAME, 256, 256, 160 * 1024, nvgpr=256, nagpr=256)
        self.vq = []
        self.lq = []
        self.stamps = stamps
        self.nst = 0
        self.stnames = []
        self.opts = opts or {}
        self.nlab = 0

    def __call__(self, s):
        self.k(s)

    def lab(self, base):
        self.nlab += 1
        return f"L_{base}_{self.nlab}"

    def vm(self, ins, tag):
        self.k(ins)
        self.vq.append(tag)

    def store(self, ins, tag):
        a = self.lab("slow")
        b = self.lab("join")
        self.k(f"s_cmp_eq_u32 s{S_FAST}, 0\ns_cbranch_scc1 {a}")
        for x in ins:
            self.k(x)
        self.k(f"s_branch {b}\n{a}:")
        for x in ins:
            self.k(x + " sc1")
        self.k(f"{b}:")
        self.vq += [tag] * len(ins)

    def vwait(self, *tags):
        last = -1
        for i, t in enumerate(self.vq):
            if t in tags:
                last = i
        if last < 0:
            return
        n = len(self.vq) - 1 - last
        if n > 63:
            n = 63
            last = len(self.vq) - 1 - 63
        self.k(f"s_waitcnt vmcnt({n})")
        self.vq = self.vq[last + 1:]

    def vwait_all(self):
        self.k("s_waitcnt vmcnt(0)")
        self.vq = []

    def ds(self, ins, tag):
        self.k(ins)
        self.lq.append(tag)

    def lwait(self, *tags):
        last = -1
        for i, t in enumerate(self.lq):
            if t in tags:
                last = i
        if last < 0:
            return
        n = len(self.lq) - 1 - last
        if n > 15:
            n = 15
            last = len(self.lq) - 1 - 15
        self.k(f"s_waitcnt lgkmcnt({n})")
        self.lq = self.lq[last + 1:]

    def lwait_all(self):
        self.k("s_waitcnt lgkmcnt(0)")
        self.lq = []

    def stamp(self, name):
        if not self.stamps:
            return
        sel = self.opts.get("stsel")
        if sel is not None and name not in sel:
            return
        r = S_STAMP + 2 * self.nst
        assert r + 1 <= 101, "too many stamps"
        self.k(f"{'s_memtime' if self.stamps == 'cyc' and self.nst > 0 else 's_memrealtime'} s[{r}:{r+1}]")
        self.nst += 1
        self.stnames.append(name)

    def srd(self, s, lo, hi, size):
        self(f"s_mov_b32 s{s}, s{lo}\ns_and_b32 s{s+1}, s{hi}, 0xffff\ns_mov_b32 s{s+2}, {size}\ns_mov_b32 s{s+3}, 0x20000")


def emit_items(g, items):
    for kind, ins, tag in items:
        if kind == "ds":
            g.ds(ins, tag)
        elif kind == "vm":
            g.vm(ins, tag)
        elif kind == "fn":
            ins()
        else:
            g(ins)


def sched(g, mf, slots):
    for i, x in enumerate(mf):
        g(x)
        emit_items(g, slots.get(i, []))


def spread(slots, items, lo, hi):
    n = hi - lo
    for j, it in enumerate(items):
        slots.setdefault(lo + j * n // len(items), []).append(it)


def V(text):
    return [("v", x.strip(), None) for x in text.strip().split("\n") if x.strip()]


def prologue(g):
    g.stamp("start")
    g(f"""
    s_cmp_ge_u32 s2, 256
    s_cbranch_scc1 L_done
    s_load_dwordx4 s[52:55], s[0:1], 0
    s_load_dwordx4 s[60:63], s[0:1], 64
    s_load_dwordx2 s[4:5], s[0:1], 16
    s_load_dwordx4 s[{S_STAMP+20}:{S_STAMP+23}], s[0:1], 32
    s_load_dwordx4 s[{S_STAMP+24}:{S_STAMP+27}], s[0:1], 48
    v_lshrrev_b32 v2, 6, v0
    v_and_b32 v1, 63, v0
    s_and_b32 s{S_XCD}, s2, 7
    v_readfirstlane_b32 s{S_WAVE}, v2
    s_lshr_b32 s{S_T+1}, s2, 3
    s_lshr_b32 s{S_T}, s{S_T+1}, 4
    s_lshl_b32 s{S_G}, s{S_XCD}, 1
    s_add_u32 s{S_G}, s{S_G}, s{S_T}
    s_and_b32 s{S_M}, s{S_T+1}, 15
    s_lshr_b32 s{S_T}, s{S_M}, 3
    s_lshl_b32 s{S_TB}, s{S_G}, 1
    s_add_u32 s{S_TB}, s{S_TB}, s{S_T}
    s_and_b32 s{S_C8}, s{S_M}, 7
    s_lshl_b32 s{S_FLB}, s{S_G}, 8
    s_add_u32 s{S_FLB}, s{S_FLB}, {WS_FL}
    """)


def prologue_srd2(g):
    a = S_STAMP + 20
    g.srd(S_WO, 4, 5, 524288)
    g.srd(S_W1, a, a + 1, 1835008)
    g.srd(S_W3, a + 2, a + 3, 1835008)
    g.srd(S_W2, a + 4, a + 5, 1835008)
    g.srd(S_OUT, a + 6, a + 7, 2097152)


def code_prefetch(g, nbytes):
    g(f"""
    s_getpc_b64 s[6:7]
    v_lshlrev_b32 v2, 7, v0
    v_min_u32 v2, {nbytes}, v2
    """)
    g.vm("global_load_dword v3, v2, s[6:7]", "PF")
    if nbytes > 32768:
        g(f"""
        v_lshlrev_b32 v2, 7, v0
        v_add_u32 v2, 32768, v2
        v_min_u32 v2, {nbytes}, v2
        """)
        g.vm("global_load_dword v3, v2, s[6:7]", "PF")


V_L = 1
V_XD = 4
V_WD = 9
V_XR = 10
V_WR = 14
V_T = 17
V_LG = 24
V_ACC = 36
V_AF = 96
V_BF = 120
V_NM = 160
V_CS = 172
V_AQ = 184
V_ST = 192
V_Q = 96
V_K = 192

L_X = 0
L_W = 61440
L_MISC = 159744
L_ATT = 0


def p1_setup(g):
    l = V_L
    t = V_T
    g(f"""
    s_mov_b32 s{S_ONES}, 0x3f803f80
    v_lshrrev_b32 v{t}, 4, v{l}            ; g = l>>4
    v_and_b32 v{t+1}, 15, v{l}             ; r = l&15
    s_mul_i32 s{S_T}, s{S_WAVE}, 20
    s_lshl_b32 s{S_T+1}, s{S_TB}, 6
    s_sub_u32 s{S_T+1}, s{S_T+1}, 16
    v_add_u32 v{t+2}, s{S_T}, v{t}
    """)
    for i in range(5):
        g(f"""
        v_add_u32 v{t+3}, {4*i}, v{t+2}
        v_and_b32 v{t+4}, 15, v{t+3}
        v_xor_b32 v{t+4}, v{t+4}, v{t+1}
        v_add_u32 v{t+3}, s{S_T+1}, v{t+3}
        v_lshlrev_b32 v{t+3}, 10, v{t+3}
        v_lshl_add_u32 v{V_XD+i}, v{t+4}, 4, v{t+3}
        """)
    g(f"""
    v_lshrrev_b32 v{t+2}, 3, v{l}
    v_bfe_u32 v{t+3}, v{l}, 4, 1
    s_and_b32 s{S_T}, s{S_WAVE}, 1
    s_lshl_b32 s{S_T}, s{S_T}, 1
    v_or_b32 v{t+3}, s{S_T}, v{t+3}
    v_lshlrev_b32 v{t+3}, 1, v{t+3}
    v_and_b32 v{t+4}, 7, v{l}
    v_xor_b32 v{t+3}, v{t+3}, v{t+4}
    s_lshl_b32 s{S_T}, s{S_WAVE}, 3
    v_add_u32 v{t+2}, s{S_T}, v{t+2}
    v_mul_u32_u24 v{t+2}, 3072, v{t+2}
    v_lshl_add_u32 v{t+2}, v{t+3}, 4, v{t+2}
    s_lshl_b32 s{S_T}, s{S_C8}, 7
    v_add_u32 v{V_WD}, s{S_T}, v{t+2}
    s_cmp_eq_u32 s{S_WAVE}, 0
    s_cselect_b32 s{S_EXM}, 0xffff0000, -1
    s_mov_b32 s{S_EXM+1}, -1
    s_mul_i32 s{S_LB}, s{S_WAVE}, 5120
    s_mul_i32 s{S_LB+1}, s{S_WAVE}, 3072
    """)
    g(f"""
    s_mul_i32 s{S_T}, s{S_C8}, 10
    s_add_u32 s{S_T}, s{S_T}, s{S_T+1}
    s_lshl_b32 s{S_T}, s{S_T}, 10
    v_lshlrev_b32 v{t}, 4, v{l}
    v_add_u32 v{t}, s{S_T}, v{t}
    s_mul_i32 s{S_T+2}, s{S_WAVE}, 3
    """)
    for i in range(3):
        g(f"""
        s_add_u32 s{S_T}, s{S_T+2}, {i}
        s_min_u32 s{S_T}, s{S_T}, 9
        s_lshl_b32 s{S_T}, s{S_T}, 10
        v_add_u32 v{t+1+i}, s{S_T}, v{t}
        """)


def p1_setup_offsets(g):
    g(f"s_add_u32 s{S_T}, s{S_TB}, s{S_XCD}")
    g(f"s_and_b32 s{S_T}, s{S_T}, 3")
    g(f"s_lshr_b32 s{S_T+2}, s{S_XCD}, 2")
    g(f"s_mul_i32 s{S_SW}, s{S_T+2}, {64*3072}")
    for q in range(4):
        g(f"""
        s_add_u32 s{S_T+1}, s{S_T}, {q}
        s_and_b32 s{S_T+1}, s{S_T+1}, 3
        s_lshl_b32 s{S_XOFF+q}, s{S_T+1}, 8
        s_mul_i32 s{S_WOFF+q}, s{S_T+1}, {128*3072}
        """)


def p1_stats_load(g):
    t = V_T
    for i in range(3):
        g.vm(f"buffer_load_dwordx4 {vr(V_ST+4*i,4)}, v{t+1+i}, {sr(S_X,4)}, 0 offen", "SROW")


def p1_zero_flags(g):
    t = V_T + 4
    g(f"""
    s_lshl_b32 s{S_T}, s{S_M}, 4
    s_lshl_b32 s{S_T+1}, s{S_WAVE}, 2
    s_add_u32 s{S_T}, s{S_T}, s{S_T+1}
    s_add_u32 s{S_T}, s{S_T}, s{S_FLB}
    v_lshlrev_b32 v{t}, 12, v{V_L}
    v_mov_b32 v{t+1}, 0
    s_mov_b64 exec, 7
    """)
    g.vm(f"buffer_store_dword v{t+1}, v{t}, {sr(S_WS,4)}, s{S_T} offen sc1", "ZF")
    g("s_mov_b64 exec, -1")


def p1_stats_compute(g):
    a = V_ST + 12
    l = V_L
    g.vwait("SROW")
    for i in range(3):
        g(f"v_dot2_f32_bf16 v{a+i}, v{V_ST+4*i}, s{S_ONES}, 0")
        g(f"v_dot2_f32_bf16 v{a+3+i}, v{V_ST+4*i}, v{V_ST+4*i}, 0")
    for d in range(1, 4):
        for i in range(3):
            g(f"v_dot2c_f32_bf16 v{a+i}, s{S_ONES}, v{V_ST+4*i+d}")
            g(f"v_dot2c_f32_bf16 v{a+3+i}, v{V_ST+4*i+d}, v{V_ST+4*i+d}")
    g("s_nop 2")
    for sh in (8, 4, 2, 1):
        for i in range(6):
            g(f"v_add_f32_dpp v{a+i}, v{a+i}, v{a+i} row_ror:{sh} row_mask:0xf bank_mask:0xf")
    b = a + 6
    for i in range(6):
        g(f"v_mov_b32 v{b+i}, v{a+i}")
    g("s_nop 1")
    for i in range(6):
        g(f"v_permlane16_swap_b32 v{a+i}, v{b+i}")
    g("s_nop 1")
    for i in range(6):
        g(f"v_add_f32 v{a+i}, v{a+i}, v{b+i}")
    for i in range(6):
        g(f"v_mov_b32 v{b+i}, v{a+i}")
    g("s_nop 1")
    for i in range(6):
        g(f"v_permlane32_swap_b32 v{a+i}, v{b+i}")
    g("s_nop 1")
    for i in range(6):
        g(f"v_add_f32 v{a+i}, v{a+i}, v{b+i}")
    for i in range(1, 3):
        g(f"""
        v_cmp_eq_u32 vcc, {i}, v{l}
        s_nop 1
        v_cndmask_b32 v{a}, v{a}, v{a+i}, vcc
        v_cndmask_b32 v{a+3}, v{a+3}, v{a+3+i}, vcc
        """)
    g(f"""
    v_mul_f32 v{b}, {f2h(-1.0/512)}, v{a}
    v_mul_f32 v{b+1}, {f2h(1.0/512)}, v{a+3}
    v_fma_f32 v{b+1}, -v{b}, v{b}, v{b+1}
    v_max_f32 v{b+1}, 0, v{b+1}
    v_add_f32 v{b+1}, {f2h(1e-5)}, v{b+1}
    v_rsq_f32 v{b+1}, v{b+1}
    s_mul_i32 s{S_T}, s{S_WAVE}, 3
    v_add_u32 v{b+2}, s{S_T}, v{l}
    v_min_u32 v{b+2}, 9, v{b+2}
    v_lshlrev_b32 v{b+2}, 3, v{b+2}
    s_mul_i32 s{S_T}, s{S_C8}, 80
    s_lshl_b32 s{S_T+1}, s{S_TB}, 10
    s_add_u32 s{S_T}, s{S_T}, s{S_T+1}
    s_add_u32 s{S_T}, s{S_T}, {WS_S1}
    s_mov_b64 exec, 7
    """)
    assert b % 2 == 0
    g.vm(f"buffer_store_dwordx2 {vr(b,2)}, v{b+2}, {sr(S_WS,4)}, s{S_T} offen sc1", "S1ST")
    g("s_mov_b64 exec, -1")


def p1_started(g):
    lab = g.lab("nostart")
    t = V_T
    g(f"""
    s_cmp_lg_u32 s{S_WAVE}, 0
    s_cbranch_scc1 {lab}
    s_getreg_b32 s{S_T+4}, hwreg(HW_REG_XCC_ID)
    s_and_b32 s{S_T+4}, s{S_T+4}, 15
    s_or_b32 s{S_T+4}, s{S_T+4}, 0x80
    s_lshl_b32 s{S_T+5}, s{S_G}, 4
    s_add_u32 s{S_T+5}, s{S_T+5}, s{S_M}
    v_mov_b32 v{t}, s{S_T+5}
    v_mov_b32 v{t+1}, s{S_T+4}
    s_mov_b64 exec, 1
    global_store_byte v{t}, v{t+1}, s[{S_DBG}:{S_DBG+1}] sc1
    s_mov_b64 exec, -1
    {lab}:
    """)


def p1_setup2(g):
    l = V_L
    t = V_T + 4
    t = V_LG
    g(f"""
    v_lshrrev_b32 v{t}, 4, v{l}            ; g
    v_and_b32 v{t+1}, 15, v{l}             ; r
    v_xor_b32 v{t+2}, v{t}, v{t+1}         ; g^r
    s_lshr_b32 s{S_T+2}, s{S_XCD}, 2
    s_lshl_b32 s{S_T+2}, s{S_T+2}, 3
    v_xor_b32 v{t+2}, s{S_T+2}, v{t+2}
    v_lshlrev_b32 v{t+3}, 8, v{t+1}        ; r*256
    """)
    for ks in range(4):
        g(f"""
        v_xor_b32 v{t+4}, {4*ks}, v{t+2}
        v_lshl_add_u32 v{V_XR+ks}, v{t+4}, 4, v{t+3}
        """)
    g(f"""
    v_mul_u32_u24 v{t+2}, 3072, v{t}
    v_bfe_u32 v{t+3}, v{l}, 2, 2
    v_lshl_add_u32 v{t+2}, v{t+3}, 7, v{t+2}
    v_bfe_u32 v{t+3}, v{l}, 3, 2
    v_xor_b32 v{t+3}, s{S_WAVE}, v{t+3}
    v_lshl_add_u32 v{t+2}, v{t+3}, 5, v{t+2}
    v_and_b32 v{t+3}, 3, v{l}
    v_lshl_add_u32 v{t+2}, v{t+3}, 3, v{t+2}
    v_add_u32 v{V_WR}, {L_W}, v{t+2}
    v_add_u32 v{V_WR+1}, {L_W+49152}, v{t+2}
    """)
    lab = g.lab("noones")
    g(f"""
    v_mov_b32 v{t+4}, s{S_ONES}
    v_mov_b32 v{t+5}, s{S_ONES}
    v_mov_b32 v{t+6}, s{S_ONES}
    v_mov_b32 v{t+7}, s{S_ONES}
    v_min_u32 v{t+2}, 2, v{t}
    v_mul_u32_u24 v{t+2}, 20480, v{t+2}
    v_lshl_add_u32 v{t+2}, v{t+1}, 4, v{t+2}
    s_cmp_lg_u32 s{S_WAVE}, 0
    s_cbranch_scc1 {lab}
    ds_write_b128 v{t+2}, {vr(t+4,4)} offset:{L_X}
    {lab}:
    """)
    u = V_T
    g(f"""
    s_mul_i32 s{S_T}, s{S_WAVE}, 10240
    s_add_u32 s{S_T}, s{S_T}, {L_ATT}
    v_lshlrev_b32 v{u}, 4, v{t+1}              ; r*16
    v_add_u32 v{u}, s{S_T}, v{u}
    v_bfe_u32 v{u+1}, v{l}, 4, 1               ; g&1
    v_lshl_add_u32 v{u+1}, v{u+1}, 3, v{u}     ; + (g&1)*8
    v_lshrrev_b32 v{u+2}, 5, v{l}              ; g>>1
    v_lshl_add_u32 v{V_AQ}, v{u+2}, 10, v{u+1}
    v_mul_u32_u24 v{u+3}, 1280, v{u+2}
    v_add_u32 v{V_AQ+1}, v{u+3}, v{u+1}
    v_mul_u32_u24 v{u+3}, 1280, v{t}
    v_add_u32 v{V_AQ+2}, v{u+3}, v{u}
    v_lshlrev_b32 v{u+3}, 4, v{l}
    v_add_u32 v{V_AQ+3}, s{S_T}, v{u+3}
    v_lshlrev_b32 v{u+2}, 15, v{u+2}
    v_and_b32 v{u+3}, 31, v{l}
    v_lshl_add_u32 v{V_AQ+4}, v{u+3}, 4, v{u+2}
    v_lshlrev_b32 v{V_AQ+5}, 3, v{t+1}
    """)


def p1_dma_x(q):
    slot = q % 3
    out = []
    for i in range(5):
        pre = f"s_add_u32 m0, s{S_LB}, {L_X + slot*20480 + i*1024}\n"
        pre += f"s_mov_b64 exec, s[{S_EXM}:{S_EXM+1}]\n" if i == 0 else "s_nop 0\n"
        ins = pre + f"buffer_load_dwordx4 v{V_XD+i}, {sr(S_X,4)}, s{S_XOFF+q} offen lds"
        if i == 0:
            ins += "\ns_mov_b64 exec, -1"
        out.append(("vm", ins, f"X{q}"))
    return out


def p1_dma_w(s):
    slot = s % 4
    q = s // 2
    out = []
    for hi in range(2):
        if s & 1:
            pre = f"s_sub_u32 s{S_T}, {64*3072 + hi*32*3072}, s{S_SW}\n"
        else:
            pre = f"s_add_u32 s{S_T}, {hi*32*3072}, s{S_SW}\n"
        pre += f"s_add_u32 m0, s{S_LB+1}, {L_W + slot*24576 + hi*4*3072}\n"
        pre += f"s_add_u32 s{S_T}, s{S_T}, s{S_WOFF+q}\n"
        for p in range(3):
            out.append(("vm", (pre if p == 0 else "") + f"buffer_load_dwordx4 v{V_WD}, {sr(S_WQKV,4)}, s{S_T} offen offset:{p*1024} lds", f"W{s}"))
    return out


def p1_read_frags(n):
    s = n // 2
    kk = n % 2
    buf = n & 1
    q = n // 4
    ks = n % 4
    slot = s % 4
    wa = V_WR + (slot // 2)
    ins = []
    for p in range(3):
        for half in range(2):
            d = V_AF + buf * 12 + p * 4 + half * 2
            off = (slot % 2) * 24576 + kk * 12288 + p * 1024 + half * 512
            ins.append(f"ds_read_b64_tr_b16 {vr(d,2)}, v{wa} offset:{off}")
    for t in range(5):
        d = V_BF + buf * 20 + t * 4
        ins.append(f"ds_read_b128 {vr(d,4)}, v{V_XR+ks} offset:{L_X + (q%3)*20480 + t*4096}")
    return ins


def p1_mfmas(n):
    buf = n & 1
    ins = []
    for t in range(5):
        for p in range(3):
            a = V_ACC + (p * 5 + t) * 4
            c = "0" if n == 0 else vr(a, 4)
            ins.append(f"v_mfma_f32_16x16x32_bf16 {vr(a,4)}, {vr(V_AF+buf*12+p*4,4)}, {vr(V_BF+buf*20+t*4,4)}, {c}")
    return ins


def poll_started_issue(g):
    t = V_T
    g(f"""
    s_lshl_b32 s{S_T+4}, s{S_G}, 4
    v_and_b32 v{t}, 15, v{V_L}
    v_add_u32 v{t}, s{S_T+4}, v{t}
    """)
    g.vm(f"global_load_ubyte v{t+1}, v{t}, s[{S_DBG}:{S_DBG+1}] sc1", "POLL0")


def poll_started_check(g):
    t = V_T
    lp = g.lab("pst")
    ok = g.lab("psok")
    g.vwait("POLL0")
    g(f"""
    s_mov_b32 s{S_T+6}, 0
    {lp}:
    v_cmp_eq_u32 vcc, 0, v{t+1}
    s_cbranch_vccz {ok}
    s_add_u32 s{S_T+6}, s{S_T+6}, 1
    s_cmp_gt_u32 s{S_T+6}, {SPIN_MAX}
    s_cbranch_scc1 {ok}
    s_sleep 1
    global_load_ubyte v{t+1}, v{t}, s[{S_DBG}:{S_DBG+1}] sc1
    s_waitcnt vmcnt(0)
    s_branch {lp}
    {ok}:
    v_readfirstlane_b32 s{S_T+4}, v{t+1}
    s_nop 1
    v_cmp_ne_u32 vcc, s{S_T+4}, v{t+1}
    s_mov_b32 s{S_FAST}, {0 if g.opts.get('slow') else 1}
    s_lshl_b32 s{S_T+5}, s{S_TB}, 10
    s_add_u32 s{S_T+5}, s{S_T+5}, {WS_S1}
    s_cbranch_vccz {ok}_f
    s_mov_b32 s{S_FAST}, 0
    {ok}_f:
    """)
    for tt in range(5):
        g.vm(f"buffer_load_dwordx2 {vr(V_NM+2*tt,2)}, v{V_AQ+5}, {sr(S_WS,4)}, s{S_T+5} offen offset:{tt*128} sc1", "NM")


def p1_gemm(g):
    dma = {0: p1_dma_w(2), 2: p1_dma_w(3), 3: p1_dma_x(2), 4: p1_dma_w(4), 6: p1_dma_w(5), 7: p1_dma_x(3),
           8: p1_dma_w(6), 10: p1_dma_w(7)}
    g.vwait("X0", "W0", "S1ST")
    g.lwait_all()
    g("s_barrier")
    g.stamp("B0")
    for x in p1_read_frags(0):
        g.ds(x, "F0")
    p1_started(g)
    for n in range(16):
        s = n // 2
        mf = p1_mfmas(n)
        g.lwait(f"F{n}")
        if n % 2 == 1 and n < 15:
            need = [f"W{s+1}"]
            if (s + 1) % 2 == 0:
                need.append(f"X{(s+1)//2}")
            g.vwait(*need)
            g("s_barrier")
            g.stamp(f"B{s+1}")
        slots = {}
        if n < 15:
            spread(slots, [("ds", x, f"F{n+1}") for x in p1_read_frags(n + 1)], 0, 11)
        if n in dma:
            spread(slots, dma[n], 1, 15)
        if n == 9:
            slots.setdefault(12, []).append(("fn", lambda: poll_started_issue(g), None))
        if n == 11:
            slots.setdefault(12, []).append(("fn", lambda: poll_started_check(g), None))
        sched(g, mf, slots)
    g.stamp("p1gemm")


def p1_epilogue(g, after_barrier=None):
    g("s_barrier")
    if after_barrier:
        after_barrier()
    g("s_nop 4")
    for p in range(3):
        for r in range(4):
            g(f"v_mov_b32_dpp v{V_CS+p*4+r}, v{V_ACC+(p*5)*4+r} row_newbcast:0 row_mask:0xf bank_mask:0xf")
    g.vwait("NM")
    order = [(1, tt) for tt in range(5)] + [(0, tt) for tt in range(1, 5)] + [(2, tt) for tt in range(5)]

    def fma(p, tt):
        a = V_ACC + (p * 5 + tt) * 4
        nm = V_NM + 2 * tt
        for h in range(2):
            g(f"v_pk_fma_f32 {vr(a+2*h,2)}, {vr(V_CS+p*4+2*h,2)}, {vr(nm,2)}, {vr(a+2*h,2)} op_sel:[0,0,0] op_sel_hi:[1,0,1]")

    def mul(p, tt):
        a = V_ACC + (p * 5 + tt) * 4
        nm = V_NM + 2 * tt
        for h in range(2):
            g(f"v_pk_mul_f32 {vr(a+2*h,2)}, {vr(a+2*h,2)}, {vr(nm,2)} op_sel:[0,1] op_sel_hi:[1,1]")

    def fin(p, tt):
        a = V_ACC + (p * 5 + tt) * 4
        if p < 2:
            g(f"v_cvt_pk_bf16_f32 v{a}, v{a}, v{a+1}")
            g(f"v_cvt_pk_bf16_f32 v{a+1}, v{a+2}, v{a+3}")
            if p == 0:
                g.ds(f"ds_write_b64 v{V_AQ}, {vr(a,2)} offset:{(tt-1)*256}", "QKW")
            else:
                g.ds(f"ds_write_b64 v{V_AQ+1}, {vr(a,2)} offset:{2048 + tt*256}", "QKW")
        else:
            g.ds(f"ds_write_b128 v{V_AQ+2}, {vr(a,4)} offset:{4608 + tt*256}", "VW")

    qk_reads = [(f"ds_read_b128 {vr(V_Q+4*h,4)}, v{V_AQ+3} offset:{h*1024}", "QR") for h in range(2)]
    for j in range(8):
        for h in range(2):
            qk_reads.append((f"ds_read_b128 {vr(V_K+j*8+4*h,4)}, v{V_AQ+3} offset:{2048 + h*1280 + (16-2*j)*16}", f"KR{j}"))
    N = len(order)
    for i in range(-2, N):
        if 0 <= i + 2 < N:
            fma(*order[i + 2])
        if 0 <= i + 1 < N:
            mul(*order[i + 1])
        if 0 <= i < N:
            fin(*order[i])
        if i >= 8:
            for _ in range(3):
                if qk_reads:
                    x, tag = qk_reads.pop(0)
                    g.ds(x, tag)
    for x, tag in qk_reads:
        g.ds(x, tag)


def p1_attn(g):
    l = V_L
    t = V_T

    def vreg(j):
        return (104 + j * 16) if j < 4 else (32 + (j - 4) * 16)
    vreads = []
    for j in range(8):
        for qd in range(4):
            vreads.append((f"ds_read_b128 {vr(vreg(j)+4*qd,4)}, v{V_AQ+3} offset:{4608 + qd*1280 + (16-2*j)*16}", f"VR{j}"))
    for jp in range(0, 8, 4):
        g.lwait(f"KR{jp+3}")
        cnt = 0
        for i in range(8):
            for j in range(jp, jp + 4):
                if i == 0:
                    g(f"v_dot2_f32_bf16 v{V_LG+j}, v{V_Q}, v{V_K+j*8}, 0")
                else:
                    g(f"v_dot2c_f32_bf16 v{V_LG+j}, v{V_Q+i}, v{V_K+j*8+i}")
                cnt += 1
                if cnt % 2 == 0 and vreads:
                    x, tag = vreads.pop(0)
                    g.ds(x, tag)
    g("s_nop 2")
    lab = g.lab("nomask")
    g(f"""
    s_cmp_lg_u32 s{S_TB}, 0
    s_cbranch_scc1 {lab}
    v_mov_b32 v{t}, {f2h(-1e30)}
    """)
    for j in range(1, 8):
        g(f"""
        v_cmp_gt_u32 vcc, {2*j}, v{l}
        s_nop 1
        v_cndmask_b32 v{V_LG+j}, v{V_LG+j}, v{t}, vcc
        """)
    g(f"{lab}:")
    c = 0.25 * 1.4426950408889634
    L = V_LG
    g(f"""
    s_mov_b32 s{S_C}, {f2h(c)}
    v_max3_f32 v{t}, v{L}, v{L+1}, v{L+2}
    v_max3_f32 v{t+1}, v{L+3}, v{L+4}, v{L+5}
    v_max3_f32 v{t}, v{L+6}, v{L+7}, v{t}
    v_max_f32 v{t}, v{t}, v{t+1}
    v_mul_f32 v{t}, {f2h(-c)}, v{t}
    """)
    for j in range(8):
        g(f"v_fma_f32 v{L+j}, v{L+j}, s{S_C}, v{t}")
    for j in range(8):
        g(f"v_exp_f32 v{L+j}, v{L+j}")
    e = t + 1
    g(f"""
    s_lshl_b32 s{S_T}, s{S_TB}, 16
    v_pk_add_f32 {vr(e,2)}, {vr(L,2)}, {vr(L+2,2)}
    v_pk_add_f32 {vr(e+2,2)}, {vr(L+4,2)}, {vr(L+6,2)}
    s_lshl_b32 s{S_T+1}, s{S_C8}, 12
    v_pk_add_f32 {vr(e,2)}, {vr(e,2)}, {vr(e+2,2)}
    s_add_u32 s{S_T}, s{S_T}, s{S_T+1}
    v_add_f32 v{e}, v{e}, v{e+1}
    s_lshl_b32 s{S_T+1}, s{S_WAVE}, 10
    v_rcp_f32 v{e}, v{e}
    s_add_u32 s{S_T}, s{S_T}, s{S_T+1}
    s_add_u32 s{S_T}, s{S_T}, {WS_O}
    """)
    O = 168
    for j in range(8):
        g.lwait(f"VR{j}")
        pj = L + (j & ~1)
        sel = j & 1
        for d in range(8):
            src = vreg(j) + 2 * d
            if j == 0:
                g(f"v_pk_mul_f32 {vr(O+2*d,2)}, {vr(src,2)}, {vr(pj,2)} op_sel:[0,{sel}] op_sel_hi:[1,{sel}]")
            else:
                g(f"v_pk_fma_f32 {vr(O+2*d,2)}, {vr(src,2)}, {vr(pj,2)}, {vr(O+2*d,2)} op_sel:[0,{sel},0] op_sel_hi:[1,{sel},1]")
    for d in range(8):
        g(f"v_pk_mul_f32 {vr(O+2*d,2)}, {vr(O+2*d,2)}, {vr(e,2)} op_sel:[0,0] op_sel_hi:[1,0]")
    for d in range(8):
        g(f"v_cvt_pk_bf16_f32 v{O+d}, v{O+2*d}, v{O+2*d+1}")
    g.store([f"buffer_store_dwordx4 {vr(O,4)}, v{V_AQ+4}, {sr(S_WS,4)}, s{S_T} offen",
             f"buffer_store_dwordx4 {vr(O+4,4)}, v{V_AQ+4}, {sr(S_WS,4)}, s{S_T} offen offset:512"], "OST")


def signal(g, phase, tags):
    t = V_T
    g(f"""
    s_lshl_b32 s{S_T}, s{S_M}, 4
    s_lshl_b32 s{S_T+1}, s{S_WAVE}, 2
    s_add_u32 s{S_T}, s{S_T}, s{S_T+1}
    s_add_u32 s{S_T}, s{S_T}, s{S_FLB}
    v_mov_b32 v{t}, {phase*4096}
    v_mov_b32 v{t+1}, 1
    s_mov_b64 exec, 1
    """)
    g.vwait(*tags)
    g.store([f"buffer_store_dword v{t+1}, v{t}, {sr(S_WS,4)}, s{S_T} offen"], "FLAG")
    g("s_mov_b64 exec, -1")


def wait_flags(g, phase, mask_lo, mask_hi):
    t = V_T
    lp = g.lab("poll")
    g(f"""
    v_lshlrev_b32 v{t}, 2, v{V_L}
    s_add_u32 s{S_T}, s{S_FLB}, {phase*4096}
    s_mov_b32 s{S_T+3}, {mask_lo}
    s_mov_b32 s{S_T+4}, {mask_hi}
    s_mov_b32 s{S_T+6}, 0
    {lp}:
    buffer_load_dword v{t+1}, v{t}, {sr(S_WS,4)}, s{S_T} offen sc1
    s_add_u32 s{S_T+6}, s{S_T+6}, 1
    s_cmp_gt_u32 s{S_T+6}, {SPIN_MAX}
    s_cbranch_scc1 {lp}_x
    s_waitcnt vmcnt(0)
    v_cmp_ne_u32 vcc, 1, v{t+1}
    s_and_b64 vcc, vcc, s[{S_T+3}:{S_T+4}]
    s_cbranch_vccnz {lp}
    {lp}_x:
    s_waitcnt vmcnt(0)
    """)
    g.vq = []


V_TR = 4
V_D128 = 6
V_L16 = 7
V_RED = 8
V_XO = 12
V_HK = 248
V2_A = 32
V2_B = 96
V2_ACC = 160
V2_X = 224
L_WO = 65536
L_RED = 0


def p2_setup_dma(g):
    l = V_L
    g(f"""
    v_lshrrev_b32 v2, 3, v{l}
    v_lshlrev_b32 v2, 10, v2               ; row_local*1024
    v_bfe_u32 v3, v{l}, 4, 1
    v_lshlrev_b32 v3, 2, v3
    v_and_b32 v{V_D128}, 7, v{l}
    v_xor_b32 v3, v3, v{V_D128}
    v_lshl_add_u32 v2, v3, 4, v2
    s_lshl_b32 s{S_T}, s{S_C8}, 7
    v_add_u32 v{V_D128}, s{S_T}, v2
    s_lshl_b32 s{S_LB}, s{S_WAVE}, 14
    s_add_u32 s{S_LB}, s{S_LB}, {L_WO}
    s_lshl_b32 s{S_T}, s{S_WAVE}, 17
    """)
    for i in range(16):
        g(f"s_add_u32 m0, s{S_LB}, {i*1024}")
        g(f"s_add_u32 s{S_T+1}, s{S_T}, {i*8192}")
        g.vm(f"buffer_load_dwordx4 v{V_D128}, {sr(S_WO,4)}, s{S_T+1} offen lds", "WO")


def p2_setup(g):
    l = V_L
    t = V_T
    g(f"""
    v_lshrrev_b32 v{t}, 5, v{l}
    v_lshlrev_b32 v{t}, 10, v{t}             ; h*1024
    v_bfe_u32 v{t+1}, v{l}, 2, 2
    v_lshl_add_u32 v{t}, v{t+1}, 7, v{t}     ; + r*128
    v_bfe_u32 v{t+1}, v{l}, 4, 1
    v_lshl_add_u32 v{t}, v{t+1}, 5, v{t}     ; + (G&1)*32
    v_and_b32 v{t+1}, 1, v{l}
    v_lshl_add_u32 v{t}, v{t+1}, 4, v{t}     ; + (c&1)*16
    v_bfe_u32 v{t+1}, v{l}, 1, 1
    v_lshl_add_u32 v{t}, v{t+1}, 3, v{t}     ; + (c>>1)*8
    v_bfe_u32 v{t+1}, v{l}, 3, 1             ; r>>1
    s_lshr_b32 s{S_T}, s{S_WAVE}, 1
    v_xor_b32 v{t+1}, s{S_T}, v{t+1}         ; a(ia=0) ^ (r>>1)
    v_lshl_add_u32 v{V_TR}, v{t+1}, 6, v{t}
    v_xor_b32 v{V_TR+1}, 64, v{V_TR}
    v_lshlrev_b32 v{V_L16}, 4, v{l}
    """)
    for i in range(1, 4):
        g(f"""
        s_xor_b32 s{S_T}, s{S_WAVE}, {i}
        s_mul_i32 s{S_T}, s{S_T}, 12288
        s_add_u32 s{S_T}, s{S_T}, {L_RED + (i-1)*4096}
        v_add_u32 v{V_RED+i-1}, s{S_T}, v{V_L16}
        """)
    g(f"""
    s_mul_i32 s{S_T}, s{S_WAVE}, 12288
    s_add_u32 s{S_T}, s{S_T}, {L_RED}
    v_add_u32 v{V_RED+3}, s{S_T}, v{V_L16}
    s_lshl_b32 s{S_T}, s{S_TB}, 16
    s_and_b32 s{S_T+1}, s{S_WAVE}, 1
    s_lshl_b32 s{S_T+1}, s{S_T+1}, 15
    s_add_u32 s{S_T}, s{S_T}, s{S_T+1}
    s_lshl_b32 s{S_T+1}, s{S_C8}, 7
    s_add_u32 s{S_T}, s{S_T}, s{S_T+1}
    s_lshr_b32 s{S_T+1}, s{S_WAVE}, 1
    s_lshl_b32 s{S_T+1}, s{S_T+1}, 6
    s_add_u32 s{S_T}, s{S_T}, s{S_T+1}
    v_and_b32 v{t}, 31, v{l}
    v_lshlrev_b32 v{t}, 10, v{t}
    v_lshrrev_b32 v{t+1}, 5, v{l}
    v_lshl_add_u32 v{t}, v{t+1}, 4, v{t}
    v_add_u32 v{V_XO}, s{S_T}, v{t}
    """)
    g.vm(f"buffer_load_dwordx4 {vr(V2_X,4)}, v{V_XO}, {sr(S_X,4)}, 0 offen", "XR")
    g.vm(f"buffer_load_dwordx4 {vr(V2_X+4,4)}, v{V_XO}, {sr(S_X,4)}, 0 offen offset:32", "XR")


def p2_read_a(g):
    t = V_T
    g.vwait("WO")
    g(f"""
    s_lshl_b32 s{S_T}, s{S_WAVE}, 14
    s_add_u32 s{S_T}, s{S_T}, {L_WO}
    v_add_u32 v{t+2}, s{S_T}, v{V_TR}
    v_add_u32 v{t+3}, s{S_T}, v{V_TR+1}
    """)
    for ks in range(8):
        for ia in range(2):
            for half in range(2):
                d = V2_A + (ia * 8 + ks) * 4 + half * 2
                g.ds(f"ds_read_b64_tr_b16 {vr(d,2)}, v{t+2+ia} offset:{ks*2048 + half*512}", "A2")


def reduce4(g, acc, tmp):
    g("s_nop 7\ns_nop 3")
    for i in range(1, 4):
        for q in range(4):
            g.ds(f"ds_write_b128 v{V_RED+i-1}, {vr(acc+16*i+4*q,4)} offset:{q*1024}", "RW")
    g.lwait_all()
    g("s_barrier")
    for i in range(3):
        for q in range(4):
            g.ds(f"ds_read_b128 {vr(tmp+16*i+4*q,4)}, v{V_RED+3} offset:{i*4096+q*1024}", f"RR{i}")
    for i in range(3):
        g.lwait(f"RR{i}")
        for d in range(8):
            g(f"v_pk_add_f32 {vr(acc+2*d,2)}, {vr(acc+2*d,2)}, {vr(tmp+16*i+2*d,2)}")


def add_bf16(g, acc, src, tmp):
    for d in range(8):
        g(f"v_lshlrev_b32 v{tmp+2*d}, 16, v{src+d}")
        g(f"v_and_b32 v{tmp+2*d+1}, 0xffff0000, v{src+d}")
    for d in range(8):
        g(f"v_pk_add_f32 {vr(acc+2*d,2)}, {vr(acc+2*d,2)}, {vr(tmp+2*d,2)}")


def p2_main(g):
    l = V_L
    t = V_T
    g(f"""
    s_and_b32 s{S_T+1}, s{S_M}, 8
    s_lshl_b32 s{S_T+1}, s{S_T+1}, 2
    s_lshl_b32 s{S_T+2}, s{S_WAVE}, 3
    s_add_u32 s{S_T+1}, s{S_T+1}, s{S_T+2}
    s_mov_b64 s[6:7], 0xff
    s_lshl_b64 s[6:7], s[6:7], s{S_T+1}
    """)
    wait_flags(g, 0, "s6", "s7")
    g.stamp("f1")
    g(f"""
    s_lshl_b32 s{S_T}, s{S_TB}, 16
    s_lshl_b32 s{S_T+1}, s{S_WAVE}, 13
    s_add_u32 s{S_T}, s{S_T}, s{S_T+1}
    s_add_u32 s{S_T}, s{S_T}, {WS_O}
    s_and_b32 s{S_T+1}, s{S_WAVE}, 1
    s_lshl_b32 s{S_T+1}, s{S_T+1}, 15
    s_add_u32 s{S_T+2}, s{S_T}, s{S_T+1}          ; ib=0
    s_xor_b32 s{S_T+1}, s{S_T+1}, 32768
    s_add_u32 s{S_T+3}, s{S_T}, s{S_T+1}          ; ib=1
    s_add_u32 s{S_T+4}, s{S_T+2}, 4096
    s_add_u32 s{S_T+5}, s{S_T+3}, 4096
    """)
    for ks in range(8):
        for ib in range(2):
            so = S_T + 2 + ib + (2 if ks >= 4 else 0)
            g.vm(f"buffer_load_dwordx4 {vr(V2_B+(ib*8+ks)*4,4)}, v{V_L16}, {sr(S_WS,4)}, s{so} offen offset:{(ks%4)*1024} sc1", f"B2_{ks}")
    g.lwait_all()
    for ks in range(8):
        g.vwait(f"B2_{ks}")
        for i in range(4):
            ia, ib = i >> 1, i & 1
            a = V2_ACC + 16 * i
            c = "0" if ks == 0 else vr(a, 16)
            g(f"v_mfma_f32_32x32x16_bf16 {vr(a,16)}, {vr(V2_A+(ia*8+ks)*4,4)}, {vr(V2_B+(ib*8+ks)*4,4)}, {c}")
    g.stamp("p2mfma")
    reduce4(g, V2_ACC, V2_A)
    add_bf16(g, V2_ACC, V2_X, V2_B)
    for d in range(8):
        g(f"v_cvt_pk_bf16_f32 v{V_HK+d}, v{V2_ACC+2*d}, v{V2_ACC+2*d+1}")
    g(f"""
    s_lshl_b32 s{S_T}, s{S_TB}, 16
    s_and_b32 s{S_T+1}, s{S_WAVE}, 1
    s_lshl_b32 s{S_T+2}, s{S_T+1}, 15
    s_add_u32 s{S_T}, s{S_T}, s{S_T+2}
    s_lshl_b32 s{S_T+2}, s{S_C8}, 12
    s_add_u32 s{S_T}, s{S_T}, s{S_T+2}
    s_lshr_b32 s{S_T+3}, s{S_WAVE}, 1
    s_lshl_b32 s{S_T+2}, s{S_T+3}, 11
    s_add_u32 s{S_T}, s{S_T}, s{S_T+2}
    s_add_u32 s{S_T}, s{S_T}, {WS_H}
    """)
    g.store([f"buffer_store_dwordx4 {vr(V_HK,4)}, v{V_L16}, {sr(S_WS,4)}, s{S_T} offen",
             f"buffer_store_dwordx4 {vr(V_HK+4,4)}, v{V_L16}, {sr(S_WS,4)}, s{S_T} offen offset:1024"], "HST")
    e = t + 1
    g(f"v_dot2_f32_bf16 v{e}, v{V_HK}, s{S_ONES}, 0")
    g(f"v_dot2_f32_bf16 v{e+1}, v{V_HK}, v{V_HK}, 0")
    g(f"v_dot2_f32_bf16 v{e+2}, v{V_HK+1}, s{S_ONES}, 0")
    g(f"v_dot2_f32_bf16 v{e+3}, v{V_HK+1}, v{V_HK+1}, 0")
    for d in range(2, 8):
        o = 2 * (d & 1)
        g(f"v_dot2c_f32_bf16 v{e+o}, s{S_ONES}, v{V_HK+d}")
        g(f"v_dot2c_f32_bf16 v{e+o+1}, v{V_HK+d}, v{V_HK+d}")
    g(f"""
    s_lshl_b32 s{S_T}, s{S_TB}, 13
    s_lshl_b32 s{S_T+2}, s{S_T+1}, 12
    s_add_u32 s{S_T}, s{S_T}, s{S_T+2}
    v_pk_add_f32 {vr(e,2)}, {vr(e,2)}, {vr(e+2,2)}
    s_lshl_b32 s{S_T+2}, s{S_C8}, 9
    s_add_u32 s{S_T}, s{S_T}, s{S_T+2}
    v_mov_b32 v{e+2}, v{e}
    v_mov_b32 v{e+3}, v{e+1}
    s_lshl_b32 s{S_T+2}, s{S_T+3}, 8
    s_add_u32 s{S_T}, s{S_T}, s{S_T+2}
    v_permlane32_swap_b32 v{e}, v{e+2}
    v_permlane32_swap_b32 v{e+1}, v{e+3}
    s_add_u32 s{S_T}, s{S_T}, {WS_ST}
    v_lshlrev_b32 v{t}, 3, v{l}
    v_pk_add_f32 {vr(e,2)}, {vr(e,2)}, {vr(e+2,2)}
    s_mov_b32 exec_hi, 0
    """)
    g.store([f"buffer_store_dwordx2 {vr(e,2)}, v{t}, {sr(S_WS,4)}, s{S_T} offen"], "HST")
    g("s_mov_b32 exec_hi, -1")
    g("s_nop 0")


V3_WD = 13
V3_TR = 14
V3_CS = 32
V3_ACC = 64
V3_B = 128
V3_TK = 160
V3_E = 168
V3_ONE = 200
V3_HB = 15
L_TK = L_MISC


def p3_pump_setup(g):
    l = V_L
    t = V_T
    g(f"""
    v_lshrrev_b32 v{t}, 2, v{l}
    v_mul_u32_u24 v{t}, 3584, v{t}
    v_and_b32 v{t+1}, 3, v{l}
    v_lshl_add_u32 v{t}, v{t+1}, 4, v{t}
    s_lshl_b32 s{S_T}, s{S_M}, 8
    s_lshl_b32 s{S_T+1}, s{S_WAVE}, 6
    s_add_u32 s{S_T}, s{S_T}, s{S_T+1}
    v_add_u32 v{V3_WD}, s{S_T}, v{t}
    v_lshrrev_b32 v{t}, 5, v{l}
    v_lshlrev_b32 v{t}, 9, v{t}
    v_bfe_u32 v{t+1}, v{l}, 2, 2
    v_lshl_add_u32 v{t}, v{t+1}, 6, v{t}
    v_bfe_u32 v{t+1}, v{l}, 4, 1
    v_lshl_add_u32 v{t}, v{t+1}, 5, v{t}
    v_and_b32 v{t+1}, 1, v{l}
    v_lshl_add_u32 v{t}, v{t+1}, 4, v{t}
    v_bfe_u32 v{t+1}, v{l}, 1, 1
    v_lshl_add_u32 v{t}, v{t+1}, 3, v{t}
    s_lshl_b32 s{S_LB}, s{S_WAVE}, 15
    v_add_u32 v{V3_TR}, s{S_LB}, v{t}
    """)
    for i in range(4):
        g(f"v_mov_b32 v{V3_ONE+i}, s{S_ONES}")


def p3_pump_dma(g, ks, slot):
    for m in range(2):
        g(f"s_add_u32 m0, s{S_LB}, {slot*2048 + m*1024}")
        if m == 0:
            g(f"s_mov_b32 s{S_T}, {ks*16*3584}")
        else:
            g("s_nop 0")
        g.vm(f"buffer_load_dwordx4 v{V3_WD}, {sr(S_W1 if m == 0 else S_W3,4)}, s{S_T} offen lds", f"W13_{ks}")


def p3_pump_read(g, ks, slot):
    for m in range(2):
        for half in range(2):
            g.ds(f"ds_read_b64_tr_b16 {ar(8*ks+4*m+2*half,2)}, v{V3_TR} offset:{slot*2048 + m*1024 + half*256}", f"A3_{ks}")


def p3_colsum(g, ks):
    for m in range(2):
        a = V3_CS + 16 * m
        c = "0" if ks == 0 else vr(a, 16)
        g(f"v_mfma_f32_32x32x16_bf16 {vr(a,16)}, {ar(8*ks+4*m,4)}, {vr(V3_ONE,4)}, {c}")


def p3_pump_all(g):
    D = 8
    for ks in range(D):
        p3_pump_dma(g, ks, ks % 16)
    for ks in range(32):
        g.vwait(f"W13_{ks}")
        p3_pump_read(g, ks, ks % 16)
        if ks + D < 32:
            p3_pump_dma(g, ks + D, (ks + D) % 16)
        if ks >= 1:
            g.lwait(f"A3_{ks-1}")
            p3_colsum(g, ks - 1)
    g.lwait_all()
    p3_colsum(g, 31)


def p3_h_dma(g, j):
    g(f"""
    s_lshl_b32 s{S_T}, s{S_G}, 17
    s_lshl_b32 s{S_T+1}, s{S_WAVE}, 13
    s_add_u32 s{S_T}, s{S_T}, s{S_T+1}
    s_add_u32 s{S_T}, s{S_T}, {WS_H + j*32768}
    s_add_u32 s{S_T+2}, s{S_T}, 4096
    """)
    for hi in range(2):
        g(f"s_add_u32 m0, s{S_T+1}, {j*32768 + hi*4096}")
        g("s_nop 0")
        for i in range(4):
            g.vm(f"buffer_load_dwordx4 v{V_L16}, {sr(S_WS,4)}, s{S_T+2*hi} offen offset:{i*1024} sc1 lds", f"H{j}")


def p3_stats(g):
    l = V_L
    t = V_T
    e = V3_E
    g(f"""
    v_and_b32 v{t}, 31, v{l}
    v_lshlrev_b32 v{t}, 3, v{t}
    v_lshrrev_b32 v{t+1}, 5, v{l}
    v_lshl_add_u32 v{t}, v{t+1}, 11, v{t}
    s_lshl_b32 s{S_T}, s{S_G}, 14
    s_lshl_b32 s{S_T+1}, s{S_WAVE}, 12
    s_add_u32 s{S_T}, s{S_T}, s{S_T+1}
    s_add_u32 s{S_T}, s{S_T}, {WS_ST}
    """)
    for i in range(8):
        g.vm(f"buffer_load_dwordx2 {vr(e+2*i,2)}, v{t}, {sr(S_WS,4)}, s{S_T} offen offset:{i*256} sc1", "ST2")


def p3_stats_fin(g):
    l = V_L
    t = V_T
    e = V3_E
    g.vwait("ST2")
    g(f"""
    v_pk_add_f32 {vr(e,2)}, {vr(e,2)}, {vr(e+2,2)}
    v_pk_add_f32 {vr(e+4,2)}, {vr(e+4,2)}, {vr(e+6,2)}
    v_pk_add_f32 {vr(e+8,2)}, {vr(e+8,2)}, {vr(e+10,2)}
    v_pk_add_f32 {vr(e+12,2)}, {vr(e+12,2)}, {vr(e+14,2)}
    v_pk_add_f32 {vr(e,2)}, {vr(e,2)}, {vr(e+4,2)}
    v_pk_add_f32 {vr(e+8,2)}, {vr(e+8,2)}, {vr(e+12,2)}
    v_pk_add_f32 {vr(e,2)}, {vr(e,2)}, {vr(e+8,2)}
    v_mov_b32 v{e+2}, v{e}
    v_mov_b32 v{e+3}, v{e+1}
    s_nop 1
    v_permlane32_swap_b32 v{e}, v{e+2}
    v_permlane32_swap_b32 v{e+1}, v{e+3}
    s_nop 1
    v_pk_add_f32 {vr(e,2)}, {vr(e,2)}, {vr(e+2,2)}
    v_mul_f32 v{e+4}, {f2h(-1.0/512)}, v{e}             ; nm
    v_mul_f32 v{e+6}, {f2h(1.0/512)}, v{e+1}
    v_fma_f32 v{e+6}, -v{e+4}, v{e+4}, v{e+6}
    v_max_f32 v{e+6}, 0, v{e+6}
    v_add_f32 v{e+6}, {f2h(1e-5)}, v{e+6}
    v_rsq_f32 v{e+5}, v{e+6}
    v_mov_b32 v{e+7}, 0
    v_mul_f32 v{e+5}, {f2h(-1.4426950408889634)}, v{e+5}   ; A = -log2e*r
    s_lshl_b32 s{S_T}, s{S_WAVE}, 9
    s_add_u32 s{S_T}, s{S_T}, {L_TK}
    v_add_u32 v{t}, s{S_T}, v{V_L16}
    s_mov_b32 exec_hi, 0
    """)
    g.ds(f"ds_write_b128 v{t}, {vr(e+4,4)}", "TKW")
    g("s_mov_b32 exec_hi, -1")


def p3_epi_items(j, g):
    buf = j & 1
    A = V3_ACC + 32 * buf
    tk = V3_TK + 4 * buf
    e = V3_E
    it = []
    for r in range(16):
        gt = A + r
        up = A + 16 + r
        x = e + (r % 8) * 2
        it += V(f"""
        v_fmac_f32 v{gt}, v{tk}, v{V3_CS+r}
        v_fmac_f32 v{up}, v{tk}, v{V3_CS+16+r}
        v_mul_f32 v{x}, v{tk+1}, v{gt}
        v_exp_f32 v{x}, v{x}
        v_mul_f32 v{gt}, v{gt}, v{up}
        v_fma_f32 v{x}, v{x}, v{tk+2}, v{tk+2}
        v_rcp_f32 v{x}, v{x}
        """)
    return it


def p3_epi_sched(j):
    buf = j & 1
    A = V3_ACC + 32 * buf
    tk = V3_TK + 4 * buf
    e = V3_E
    o = V3_E + 16
    st = [
        lambda r: f"v_fmac_f32 v{A+r}, v{tk}, v{V3_CS+r}",
        lambda r: f"v_fmac_f32 v{A+16+r}, v{tk}, v{V3_CS+16+r}",
        lambda r: f"v_mul_f32 v{e+r}, v{tk+1}, v{A+r}",
        lambda r: f"v_exp_f32 v{e+r}, v{e+r}",
        lambda r: f"v_mul_f32 v{A+r}, v{A+r}, v{A+16+r}",
        lambda r: f"v_fma_f32 v{e+r}, v{e+r}, v{tk+2}, v{tk+2}",
        lambda r: f"v_rcp_f32 v{e+r}, v{e+r}",
        lambda r: None,
        lambda r: f"v_mul_f32 v{A+r}, v{A+r}, v{e+r}",
        lambda r: (f"v_cvt_pk_bf16_f32 v{o+r//2}, v{A+r-1}, v{A+r}" if r % 2 else None),
    ]
    skew = [0, 0, 1, 2, 2, 3, 4, 4, 5, 6]
    out = []
    for step in range(16 + 7):
        for si, f in enumerate(st):
            r = step - skew[si]
            if 0 <= r < 16:
                x = f(r)
                if x:
                    out.append(("v", x, None))
    return out


def p3_hh_store(g, j):
    o = V3_E + 16
    g(f"""
    s_mul_i32 s{S_T}, s{S_G}, {4*114688}
    s_lshl_b32 s{S_T+1}, s{S_M}, 13
    s_add_u32 s{S_T}, s{S_T}, s{S_T+1}
    s_lshl_b32 s{S_T+1}, s{S_WAVE}, 11
    s_add_u32 s{S_T}, s{S_T}, s{S_T+1}
    s_add_u32 s{S_T}, s{S_T}, {WS_HH + j*114688}
    """)
    g.store([f"buffer_store_dwordx4 {vr(o,4)}, v{V_L16}, {sr(S_WS,4)}, s{S_T} offen",
             f"buffer_store_dwordx4 {vr(o+4,4)}, v{V_L16}, {sr(S_WS,4)}, s{S_T} offen offset:1024"], "HHST")


def p3_main(g):
    l = V_L
    t = V_T
    PF = 4
    g(f"""
    v_add_u32 v{V3_HB+1}, 65536, v{V_L16}
    v_and_b32 v{t+2}, 31, v{l}
    v_lshlrev_b32 v{t+2}, 4, v{t+2}
    v_add_u32 v{t+2}, {L_TK}, v{t+2}
    """)

    def bread(n):
        j, ks = n // 32, n % 32
        a = V_L16 if j < 2 else V3_HB + 1
        return ("ds", f"ds_read_b128 {vr(V3_B+4*(n%8),4)}, v{a} offset:{(j%2)*32768 + ks*1024}", f"B3_{n}")

    g.vwait("H0")
    g.lwait_all()
    g("s_barrier")
    g.stamp("p3start")
    for n in range(PF):
        emit_items(g, [bread(n)])
    for j in range(4):
        epi = p3_epi_sched(j - 1) if j > 0 else []
        buf = j & 1
        A = V3_ACC + 32 * buf
        per = {}
        if epi:
            for i, it in enumerate(epi):
                per.setdefault(5 + i * 53 // len(epi), []).append(it)
        for ks in range(32):
            n = j * 32 + ks
            if ks == 32 - PF and j < 3:
                g.vwait(f"H{j+1}")
                g("s_barrier")
            g.lwait(f"B3_{n}")
            for m in range(2):
                a = A + 16 * m
                c = "0" if ks == 0 else vr(a, 16)
                g(f"v_mfma_f32_32x32x16_bf16 {vr(a,16)}, {ar(8*ks+4*m,4)}, {vr(V3_B+4*(n%8),4)}, {c}")
                if m == 0 and n + PF < 128:
                    emit_items(g, [bread(n + PF)])
                if m == 1 and ks == 20:
                    g.ds(f"ds_read_b128 {vr(V3_TK+4*buf,4)}, v{t+2} offset:{j*512}", f"TK{j}")
                emit_items(g, per.get(2 * ks + m, []))
                if j > 0 and ks == 29 and m == 1:
                    p3_hh_store(g, j - 1)
        g.stamp(f"p3t{j}")
    g("s_nop 7\ns_nop 3")
    emit_items(g, p3_epi_sched(3))
    p3_hh_store(g, 3)


V4_B = 32
V4_ACC = 160
NB4 = 24


def p4_pump(g):
    t = V_T
    g(f"""
    s_mul_i32 s{S_LB}, s{S_WAVE}, 36864
    s_mul_i32 s{S_LB+1}, s{S_WAVE}, {448*1024}
    v_add_u32 v{t+2}, s{S_LB}, v{V_TR}
    v_add_u32 v{t+3}, s{S_LB}, v{V_TR+1}
    """)
    NS = 18
    D = 8

    def dma(ks):
        for i in range(2):
            g(f"s_add_u32 m0, s{S_LB}, {(ks%NS)*2048 + i*1024}")
            g(f"s_add_u32 s{S_T}, s{S_LB+1}, {(ks*16 + i*8)*1024}")
            g.vm(f"buffer_load_dwordx4 v{V_D128}, {sr(S_W2,4)}, s{S_T} offen lds", f"W2_{ks}")
    for ks in range(D):
        dma(ks)
    for ks in range(28):
        g.vwait(f"W2_{ks}")
        for ia in range(2):
            for half in range(2):
                g.ds(f"ds_read_b64_tr_b16 {ar((ia*28+ks)*4+2*half,2)}, v{t+2+ia} offset:{(ks%NS)*2048 + half*512}", f"A4_{ks}")
        if ks + D < 28:
            if ks >= 2:
                g.lwait(f"A4_{ks-2}")
            dma(ks + D)
    g.lwait_all()


def p4_main(g):
    t = V_T
    wait_flags(g, 2, "-1", "0x00ffffff")
    g.stamp("f3")
    g(f"""
    s_mul_i32 s{S_T}, s{S_TB}, {2*114688}
    s_mul_i32 s{S_T+1}, s{S_WAVE}, {28*1024}
    s_add_u32 s{S_T}, s{S_T}, s{S_T+1}
    s_add_u32 s{S_T}, s{S_T}, {WS_HH}
    s_and_b32 s{S_T+1}, s{S_WAVE}, 1
    s_mul_i32 s{S_T+2}, s{S_T+1}, 114688
    s_add_u32 s{S_T+3}, s{S_T}, s{S_T+2}        ; ib=0
    s_sub_u32 s{S_T+2}, 114688, s{S_T+2}
    s_add_u32 s{S_T+4}, s{S_T}, s{S_T+2}        ; ib=1
    """)

    def load(n):
        ks, ib = n // 2, n % 2
        if ks % 4 == 0 and ks > 0:
            g(f"s_add_u32 s{S_T+3+ib}, s{S_T+3+ib}, 4096")
        g.vm(f"buffer_load_dwordx4 {vr(V4_B+4*(n%NB4),4)}, v{V_L16}, {sr(S_WS,4)}, s{S_T+3+ib} offen offset:{(ks%4)*1024} sc1", f"B4_{n}")
    PFN = NB4 - 4
    for n in range(PFN):
        load(n)
    for ks in range(28):
        for ib in range(2):
            n = 2 * ks + ib
            g.vwait(f"B4_{n}")
            for ia in range(2):
                a = V4_ACC + 16 * (2 * ia + ib)
                c = "0" if ks == 0 else vr(a, 16)
                g(f"v_mfma_f32_32x32x16_bf16 {vr(a,16)}, {ar((ia*28+ks)*4,4)}, {vr(V4_B+4*(n%NB4),4)}, {c}")
                if ia == 0 and n + PFN < 56:
                    load(n + PFN)
    g.stamp("p4mfma")
    g("s_barrier")
    reduce4(g, V4_ACC, 32)
    add_bf16(g, V4_ACC, V_HK, 96)
    for d in range(8):
        g(f"v_cvt_pk_bf16_f32 v{128+d}, v{V4_ACC+2*d}, v{V4_ACC+2*d+1}")
    g.vm(f"buffer_store_dwordx4 {vr(128,4)}, v{V_XO}, {sr(S_OUT,4)}, 0 offen", "OUT")
    g.vm(f"buffer_store_dwordx4 {vr(132,4)}, v{V_XO}, {sr(S_OUT,4)}, 0 offen offset:32", "OUT")


def write_stamps(g):
    if not g.stamps:
        return
    g(f"""
    s_waitcnt lgkmcnt(0)
    s_lshl_b32 s{S_T}, s2, 2
    s_add_u32 s{S_T}, s{S_T}, s{S_WAVE}
    s_lshl_b32 s{S_T}, s{S_T}, 6
    s_add_u32 s{S_T}, s{S_T}, {WS_STAMP}
    v_mov_b32 v2, 0
    """)
    for i in range(g.nst):
        g(f"v_mov_b32 v3, s{S_STAMP+2*i}")
        g(f"buffer_store_dword v3, v2, {sr(S_WS,4)}, s{S_T} offen offset:{i*4}")
    g(f"v_mov_b32 v3, s{S_FAST}")
    g(f"buffer_store_dword v3, v2, {sr(S_WS,4)}, s{S_T} offen offset:60")


def build(stamps=False, opts=None):
    g = G(stamps, opts)
    prologue(g)
    code_prefetch(g, g.opts.get("codesz", 26624))
    p1_setup(g)
    g("s_waitcnt lgkmcnt(0)")
    g.srd(S_X, 52, 53, 2097152)
    p1_stats_load(g)
    g.srd(S_WQKV, 54, 55, 1572864)
    g(f"s_mov_b32 s{S_DBG}, s60\ns_mov_b32 s{S_DBG+1}, s61")
    g.srd(S_WS, 62, 63, WS_SIZE)
    p1_setup_offsets(g)
    g.stamp("args")
    emit_items(g, p1_dma_x(0) + p1_dma_w(0))
    p1_zero_flags(g)
    prologue_srd2(g)
    p1_setup2(g)
    p1_stats_compute(g)
    emit_items(g, p1_dma_w(1) + p1_dma_x(1))
    g.stamp("issued")
    p1_gemm(g)
    p1_epilogue(g, after_barrier=lambda: p2_setup_dma(g))
    g.stamp("p1epi")
    p1_attn(g)
    signal(g, 0, ["OST"])
    g.stamp("p1done")
    p2_setup(g)
    p2_read_a(g)
    g("s_barrier")
    p2_main(g)
    signal(g, 1, ["HST"])
    g.stamp("p2done")
    g(f"s_cmp_ge_u32 s{S_M}, 14\ns_cbranch_scc1 L_p4")
    sv, sl = list(g.vq), list(g.lq)
    p3_pump_setup(g)
    g("s_barrier")
    p3_pump_all(g)
    g.stamp("pump13")
    g("s_barrier")
    wait_flags(g, 1, "-1", "-1")
    g.stamp("f2")
    p3_h_dma(g, 0)
    p3_stats(g)
    for j in range(1, 4):
        p3_h_dma(g, j)
    p3_stats_fin(g)
    p3_main(g)
    signal(g, 2, ["HHST"])
    g.stamp("p3done")
    g("L_p4:")
    g.vwait_all()
    g.lwait_all()
    g("s_barrier")
    p4_pump(g)
    g.stamp("pump2")
    p4_main(g)
    g.stamp("end")
    write_stamps(g)
    g("L_done:\ns_endpgm")
    return g


if __name__ == "__main__":
    out = sys.argv[1] if len(sys.argv) > 1 else "k.s"
    stamps = "--stamps" in sys.argv
    if "--cyc" in sys.argv:
        stamps = "cyc"
    opts = {}
    if "--slow" in sys.argv:
        opts["slow"] = True
    for a in sys.argv:
        if a.startswith("--st="):
            opts["stsel"] = a[5:].split(",")
    g = build(stamps, opts)
    emit_file(out, [g.k], single=True)
    print("stamps:", g.nst, g.stnames, "lines:", len(g.k.lines))
```

```python
import sys
import struct
from asmlib import *

KNAME = "sequential_preLN__sliding_local_dilated__glu_gated_swiglu__prompt_kernel"

WS_O = 0x000000
WS_H = 0x000000
WS_HH = 0x400000
WS_ST = 0xB00000
WS_S1 = 0xB80000
WS_FL = 0xC00000
WS_STAMP = 0xD00000
WS_SIZE = 0xE00000
SPIN_MAX = 400000
LOG2E = 1.4426950408889634

S_NONCE = 3
S_IDXW = 4
S_FLO = 5
S_X, S_WQKV, S_WO, S_W1, S_W3, S_W2, S_OUT, S_WS = 8, 12, 16, 20, 24, 28, 32, 36
S_DBG = 40
S_WAVE = 42
S_XCD = 43
S_FAST = 44
S_G = 45
S_M = 46
S_TB = 47
S_C8 = 48
S_T = 49
S_ONES = 56
S_XOFF = 57
S_WOFF = 61
S_SW = 65
S_EXM = 66
S_LB = 68
S_C = 70
S_FLB = 71
S_STAMP = 72
S_KO = 66
S_A = 57
S_A2 = 12
S_K2 = 65
S_W2O = 67


def f2h(x):
    return "0x%08x" % struct.unpack("<I", struct.pack("<f", x))[0]


def vr(a, n):
    return f"v[{a}:{a+n-1}]"


def ar(a, n):
    return f"a[{a}:{a+n-1}]"


def sr(a, n):
    return f"s[{a}:{a+n-1}]"


class G:
    def __init__(self, stamps=False, opts=None):
        self.k = Kernel(KNAME, 256, 256, 160 * 1024, nvgpr=256, nagpr=256)
        self.vq = []
        self.lq = []
        self.stamps = stamps
        self.nst = 0
        self.stnames = []
        self.opts = opts or {}
        self.nlab = 0
        self.bg = []
        self.cold = []
        self.T = 212

    def __call__(self, s):
        self.k(s)

    def lab(self, base):
        self.nlab += 1
        return f"L_{base}_{self.nlab}"

    def tick(self, n=1):
        for _ in range(n):
            if self.bg:
                emit_items(self, [self.bg.pop(0)])

    def vm(self, ins, tag):
        self.k(ins)
        self.vq.append(tag)

    def store(self, ins, tag):
        a = self.lab("slow")
        self.k(f"s_cmp_eq_u32 s{S_FAST}, 0\ns_cbranch_scc1 {a}")
        for x in ins:
            self.k(x)
        self.k(f"{a}_j:")
        self.cold.append(f"{a}:\n" + "\n".join(x + " sc1" for x in ins) + f"\ns_branch {a}_j")
        self.vq += [tag] * len(ins)

    def vwait(self, *tags):
        last = -1
        for i, t in enumerate(self.vq):
            if t in tags:
                last = i
        if last < 0:
            return
        n = len(self.vq) - 1 - last
        if n > 63:
            n = 63
            last = len(self.vq) - 1 - 63
        self.k(f"s_waitcnt vmcnt({n})")
        self.vq = self.vq[last + 1:]

    def vwait_all(self):
        self.k("s_waitcnt vmcnt(0)")
        self.vq = []

    def ds(self, ins, tag):
        self.k(ins)
        self.lq.append(tag)

    def lwait(self, *tags):
        last = -1
        for i, t in enumerate(self.lq):
            if t in tags:
                last = i
        if last < 0:
            return
        n = len(self.lq) - 1 - last
        if n > 15:
            n = 15
            last = len(self.lq) - 1 - 15
        self.k(f"s_waitcnt lgkmcnt({n})")
        self.lq = self.lq[last + 1:]

    def lwait_all(self):
        self.k("s_waitcnt lgkmcnt(0)")
        self.lq = []

    def stamp(self, name):
        if not self.stamps:
            return
        sel = self.opts.get("stsel")
        if sel is not None and name not in sel:
            return
        r = S_STAMP + 2 * self.nst
        assert r + 1 <= 101, "too many stamps"
        self.k(f"{'s_memtime' if self.stamps == 'cyc' and self.nst > 0 else 's_memrealtime'} s[{r}:{r+1}]")
        self.nst += 1
        self.stnames.append(name)

    def srd(self, s, lo, hi, size):
        self(f"s_mov_b32 s{s}, s{lo}\ns_and_b32 s{s+1}, s{hi}, 0xffff\ns_mov_b32 s{s+2}, {size}\ns_mov_b32 s{s+3}, 0x20000")


def emit_items(g, items):
    for kind, ins, tag in items:
        if kind == "ds":
            g.ds(ins, tag)
        elif kind == "vm":
            g.vm(ins, tag)
        elif kind == "fn":
            ins()
        else:
            g(ins)


def sched(g, mf, slots):
    for i, x in enumerate(mf):
        g(x)
        emit_items(g, slots.get(i, []))


def spread(slots, items, lo, hi):
    n = hi - lo
    for j, it in enumerate(items):
        slots.setdefault(lo + j * n // len(items), []).append(it)


V_L = 1
V_TR = 224
V_D128 = 226
V_L16 = 227
V_RED = 228
V_XO = 232
V3_WD = 233
V3_TR = 234
V3_SW = 235
V3_HB = 236
V_GA = 237
V_OS = 238
V_L4 = 239
V_XRES = 240
V_HK = 248
V_XD = 4
V_WD = 9
V_XR = 10
V_WR = 14
V_MK = 16
V_ACC = 36
V_AF = 96
V_BF = 120
V_NM2 = 160
V_SR = 160
V_NM = 200
V_NA = 210
V_S1A = 220
V_ONE2 = 222

L_X = 0
L_W = 61440
L_MISC = 159744
L_WO = 45056


def prologue(g):
    g.stamp("start")
    g(f"""
    s_cmp_ge_u32 s2, 256
    s_cbranch_scc1 L_done
    s_load_dwordx4 s[52:55], s[0:1], 0
    s_load_dwordx4 s[60:63], s[0:1], 64
    s_load_dwordx2 s[66:67], s[0:1], 16
    s_load_dwordx4 s[{S_STAMP+20}:{S_STAMP+23}], s[0:1], 32
    s_load_dwordx4 s[{S_STAMP+24}:{S_STAMP+27}], s[0:1], 48
    v_lshrrev_b32 v2, 6, v0
    v_and_b32 v1, 63, v0
    s_and_b32 s{S_XCD}, s2, 7
    v_readfirstlane_b32 s{S_WAVE}, v2
    s_lshr_b32 s{S_T+1}, s2, 3
    s_lshr_b32 s{S_T}, s{S_T+1}, 4
    s_lshl_b32 s{S_G}, s{S_XCD}, 1
    s_add_u32 s{S_G}, s{S_G}, s{S_T}
    s_and_b32 s{S_M}, s{S_T+1}, 15
    s_lshl_b32 s{S_IDXW}, s{S_T+1}, 2
    s_add_u32 s{S_IDXW}, s{S_IDXW}, s{S_WAVE}
    s_lshr_b32 s{S_T}, s{S_M}, 3
    s_lshl_b32 s{S_TB}, s{S_G}, 1
    s_add_u32 s{S_TB}, s{S_TB}, s{S_T}
    s_and_b32 s{S_C8}, s{S_M}, 7
    """)


def code_prefetch(g, nbytes):
    g(f"""
    s_getpc_b64 s[6:7]
    v_lshlrev_b32 v2, 7, v{V_L}
    s_lshl_b32 s{S_T}, s{S_IDXW}, 8
    v_add_u32 v4, s{S_T}, v2
    v_min_u32 v4, {nbytes}, v4
    s_mov_b64 exec, 3
    """)
    g.vm("global_load_dword v3, v4, s[6:7]", "PF")
    g("s_mov_b64 exec, -1")
    g("s_memrealtime s[6:7]")


def p1_setup(g):
    l = V_L
    t = g.T
    g(f"""
    v_lshrrev_b32 v{t+2}, 3, v{l}
    v_bfe_u32 v{t+3}, v{l}, 4, 1
    s_and_b32 s{S_T}, s{S_WAVE}, 1
    s_lshl_b32 s{S_T}, s{S_T}, 1
    v_or_b32 v{t+3}, s{S_T}, v{t+3}
    v_lshlrev_b32 v{t+3}, 1, v{t+3}
    v_and_b32 v{t+4}, 7, v{l}
    v_xor_b32 v{t+3}, v{t+3}, v{t+4}
    s_lshl_b32 s{S_T}, s{S_WAVE}, 3
    v_add_u32 v{t+2}, s{S_T}, v{t+2}
    v_mul_u32_u24 v{t+2}, 3072, v{t+2}
    v_lshl_add_u32 v{t+2}, v{t+3}, 4, v{t+2}
    s_lshl_b32 s{S_T}, s{S_C8}, 7
    v_add_u32 v{V_WD}, s{S_T}, v{t+2}
    s_lshl_b32 s{S_LB}, s{S_WAVE}, 10
    s_mul_i32 s{S_LB+1}, s{S_WAVE}, 3072
    v_lshrrev_b32 v{t}, 4, v0                 ; p = tid>>4
    v_and_b32 v{t+1}, 15, v{l}
    v_xor_b32 v{t+1}, v{t+1}, v{t}
    v_lshlrev_b32 v{t+1}, 4, v{t+1}
    s_lshl_b32 s{S_T+1}, s{S_TB}, 16          ; T0*1024
    v_add_u32 v{t+1}, s{S_T+1}, v{t+1}
    v_lshl_add_u32 v{V_XD+1}, v{t}, 11, v{t+1}
    s_lshr_b32 s{S_T}, s{S_WAVE}, 1           ; p>>3
    s_mul_i32 s{S_T}, s{S_T}, {17*1024}
    s_add_u32 s{S_T}, s{S_T}, {15*1024}
    v_subrev_u32 v{V_XD}, s{S_T}, v{V_XD+1}   ; 2p - 16(p>>3) - 15 - (p>>3)
    v_lshlrev_b32 v{V_L16}, 4, v{l}
    s_mul_i32 s{S_T}, s{S_C8}, {10*1024}
    s_add_u32 s{S_T}, s{S_T}, s{S_T+1}
    s_sub_u32 s{S_T}, s{S_T}, {16*1024}
    s_mul_i32 s{S_T+2}, s{S_WAVE}, 3072
    s_add_u32 s{S_T}, s{S_T}, s{S_T+2}
    v_add_u32 v{V_SR+12}, s{S_T}, v{V_L16}
    s_cmp_eq_u32 s{S_WAVE}, 3
    s_cselect_b32 s{S_T+2}, 0, 1024
    v_add_u32 v{V_SR+13}, s{S_T+2}, v{V_SR+12}
    v_add_u32 v{V_SR+14}, s{S_T+2}, v{V_SR+13}
    """)


def p1_setup_offsets(g):
    g(f"""
    s_cmp_eq_u32 s{S_WAVE}, 0
    s_cselect_b32 s{S_EXM}, 0xffff0000, -1
    s_mov_b32 s{S_EXM+1}, -1
    s_and_b32 s{S_T}, s{S_XCD}, 3
    s_lshr_b32 s{S_T+2}, s{S_XCD}, 2
    s_mul_i32 s{S_SW}, s{S_T+2}, {64*3072}
    """)
    for q in range(4):
        g(f"""
        s_add_u32 s{S_T+1}, s{S_T}, {q}
        s_and_b32 s{S_T+1}, s{S_T+1}, 3
        s_lshl_b32 s{S_XOFF+q}, s{S_T+1}, 8
        s_mul_i32 s{S_WOFF+q}, s{S_T+1}, {128*3072}
        """)


def p1_srow_items():
    return [("vm", f"buffer_load_dwordx4 {vr(V_SR+4*i,4)}, v{V_SR+12+i}, {sr(S_X,4)}, 0 offen", "SROW") for i in range(3)]


def nonce_publish(g):
    lab = g.lab("nolead")
    t = g.T
    g(f"""
    s_lshl_b32 s{S_T}, s{S_G}, 2
    v_mov_b32 v{V_NA}, s{S_T}
    s_or_b32 s{S_T+1}, s{S_M}, s{S_WAVE}
    s_cmp_lg_u32 s{S_T+1}, 0
    s_cbranch_scc1 {lab}
    s_or_b32 s{S_T+1}, s6, 1
    v_mov_b32 v{t+7}, s{S_T+1}
    s_mov_b64 exec, 1
    global_store_dword v{V_NA}, v{t+7}, s[{S_DBG}:{S_DBG+1}] sc1
    s_mov_b64 exec, -1
    {lab}:
    """)


def nonce_poll_issue(g):
    g.vm(f"global_load_dword v{V_NA+1}, v{V_NA}, s[{S_DBG}:{S_DBG+1}] sc1", "NONCE")


def nonce_check(g):
    lp = g.lab("nl")
    g.vwait("NONCE")
    g(f"""
    v_readfirstlane_b32 s{S_NONCE}, v{V_NA+1}
    s_mov_b32 s{S_T+6}, 0
    s_cmp_eq_u32 s{S_NONCE}, 0
    s_cbranch_scc1 {lp}
    {lp}_ok:
    """)
    g.cold.append(f"""{lp}:
    global_load_dword v{V_NA+1}, v{V_NA}, s[{S_DBG}:{S_DBG+1}] sc1
    s_add_u32 s{S_T+6}, s{S_T+6}, 1
    s_waitcnt vmcnt(0)
    v_readfirstlane_b32 s{S_NONCE}, v{V_NA+1}
    s_cmp_gt_u32 s{S_T+6}, {SPIN_MAX}
    s_cbranch_scc1 {lp}_ok
    s_cmp_eq_u32 s{S_NONCE}, 0
    s_cbranch_scc1 {lp}
    s_branch {lp}_ok""")


def p1_stats_compute(g):
    R = V_SR
    a = R + 12
    b = a + 6
    l = V_L
    g.vwait("SROW")
    for i in range(3):
        g(f"v_dot2_f32_bf16 v{a+i}, v{R+4*i}, s{S_ONES}, 0")
        g(f"v_dot2_f32_bf16 v{a+3+i}, v{R+4*i}, v{R+4*i}, 0")
    for d in range(1, 4):
        for i in range(3):
            g(f"v_dot2c_f32_bf16 v{a+i}, s{S_ONES}, v{R+4*i+d}")
            g(f"v_dot2c_f32_bf16 v{a+3+i}, v{R+4*i+d}, v{R+4*i+d}")
    g("s_nop 2")
    for sh in (8, 4, 2, 1):
        for i in range(6):
            g(f"v_add_f32_dpp v{a+i}, v{a+i}, v{a+i} row_ror:{sh} row_mask:0xf bank_mask:0xf")
    for op in ("v_permlane16_swap_b32", "v_permlane32_swap_b32"):
        for i in range(6):
            g(f"v_mov_b32 v{b+i}, v{a+i}")
        g("s_nop 1")
        for i in range(6):
            g(f"{op} v{a+i}, v{b+i}")
        g("s_nop 1")
        for i in range(6):
            g(f"v_add_f32 v{a+i}, v{a+i}, v{b+i}")
    for i in range(1, 3):
        g(f"""
        v_cmp_eq_u32 vcc, {i}, v{l}
        s_nop 1
        v_cndmask_b32 v{a}, v{a}, v{a+i}, vcc
        v_cndmask_b32 v{a+3}, v{a+3}, v{a+3+i}, vcc
        """)
    g(f"""
    v_mul_f32 v{b}, {f2h(-1.0/512)}, v{a}
    v_mul_f32 v{b+1}, {f2h(1.0/512)}, v{a+3}
    v_fma_f32 v{b+1}, -v{b}, v{b}, v{b+1}
    v_max_f32 v{b+1}, 0, v{b+1}
    v_add_f32 v{b+1}, {f2h(1e-5)}, v{b+1}
    v_rsq_f32 v{b+1}, v{b+1}
    s_mul_i32 s{S_T+2}, s{S_WAVE}, 3
    v_add_u32 v{b+2}, s{S_T+2}, v{l}
    v_min_u32 v{b+2}, 9, v{b+2}
    s_mul_i32 s{S_T+2}, s{S_C8}, 10
    v_add_u32 v{b+2}, s{S_T+2}, v{b+2}         ; e = delta + 16
    v_lshrrev_b32 v{b+3}, 1, v{b+2}
    v_and_b32 v{b+4}, 1, v{b+2}
    v_lshl_add_u32 v{b+5}, v{b+4}, 5, v{b+3}
    v_add_u32 v{b+5}, 8, v{b+5}                ; main: 16 + ((e-16)>>1) + 32*(e&1)
    v_xor_b32 v{b+4}, 1, v{b+4}
    v_lshl_add_u32 v{b+3}, v{b+4}, 3, v{b+3}   ; halo: (e>>1) + 8*!(e&1)
    v_cmp_gt_u32 vcc, 16, v{b+2}
    s_lshl_b32 s{S_T+2}, s{S_TB}, 10
    s_add_u32 s{S_T+2}, s{S_T+2}, {WS_S1}
    v_cndmask_b32 v{b+2}, v{b+5}, v{b+3}, vcc
    v_lshlrev_b32 v{b+2}, 3, v{b+2}
    s_mov_b64 exec, 7
    """)
    assert b % 2 == 0
    g.vm(f"buffer_store_dwordx2 {vr(b,2)}, v{b+2}, {sr(S_WS,4)}, s{S_T+2} offen sc1", "S1ST")
    g("s_mov_b64 exec, -1")


def p1_started(g):
    lab = g.lab("nostart")
    t = g.T
    g(f"""
    s_cmp_lg_u32 s{S_WAVE}, 0
    s_cbranch_scc1 {lab}
    s_getreg_b32 s{S_T+4}, hwreg(HW_REG_XCC_ID)
    s_and_b32 s{S_T+4}, s{S_T+4}, 15
    s_lshl_b32 s{S_T+5}, s{S_M}, 3
    s_add_u32 s{S_T+5}, s{S_T+5}, s{S_FLB}
    v_mov_b32 v{t+2}, {7*4096}
    v_mov_b32 v{t}, s{S_NONCE}
    v_mov_b32 v{t+1}, s{S_T+4}
    s_mov_b64 exec, 1
    buffer_store_dwordx2 {vr(t,2)}, v{t+2}, {sr(S_WS,4)}, s{S_T+5} offen sc1
    s_mov_b64 exec, -1
    {lab}:
    """)


def setup_rest(g):
    l = V_L
    t = g.T
    a = S_STAMP + 20
    g(f"""
    s_mov_b32 s{S_ONES}, 0x3f803f80
    s_lshl_b32 s{S_FLB}, s{S_G}, 8
    s_add_u32 s{S_FLB}, s{S_FLB}, {WS_FL}
    s_lshl_b32 s{S_T}, s{S_M}, 4
    s_lshl_b32 s{S_T+1}, s{S_WAVE}, 2
    s_add_u32 s{S_FLO}, s{S_T}, s{S_T+1}
    s_add_u32 s{S_FLO}, s{S_FLO}, s{S_FLB}
    v_lshlrev_b32 v{V_L4}, 2, v{l}
    v_lshrrev_b32 v{t}, 4, v{l}            ; g
    v_and_b32 v{t+1}, 15, v{l}             ; r
    v_xor_b32 v{t+2}, v{t}, v{t+1}
    s_lshr_b32 s{S_T+2}, s{S_XCD}, 2
    s_lshl_b32 s{S_T+2}, s{S_T+2}, 3
    v_xor_b32 v{t+2}, s{S_T+2}, v{t+2}
    v_lshlrev_b32 v{t+3}, 8, v{t+1}
    """)
    for ks in range(4):
        g(f"""
        v_xor_b32 v{t+4}, {4*ks}, v{t+2}
        v_lshl_add_u32 v{V_XR+ks}, v{t+4}, 4, v{t+3}
        """)
    g(f"""
    v_mul_u32_u24 v{t+2}, 3072, v{t}
    v_bfe_u32 v{t+3}, v{l}, 2, 2
    v_lshl_add_u32 v{t+2}, v{t+3}, 7, v{t+2}
    v_bfe_u32 v{t+3}, v{l}, 3, 2
    v_xor_b32 v{t+3}, s{S_WAVE}, v{t+3}
    v_lshl_add_u32 v{t+2}, v{t+3}, 5, v{t+2}
    v_and_b32 v{t+3}, 3, v{l}
    v_lshl_add_u32 v{t+2}, v{t+3}, 3, v{t+2}
    v_add_u32 v{V_WR}, {L_W}, v{t+2}
    v_add_u32 v{V_WR+1}, {L_W+49152}, v{t+2}
    """)
    lab = g.lab("noones")
    g(f"""
    v_mov_b32 v{t+4}, s{S_ONES}
    v_mov_b32 v{t+5}, s{S_ONES}
    v_mov_b32 v{t+6}, s{S_ONES}
    v_mov_b32 v{t+7}, s{S_ONES}
    v_mov_b32 v{V_ONE2}, s{S_ONES}
    v_mov_b32 v{V_ONE2+1}, s{S_ONES}
    v_min_u32 v{t+2}, 2, v{t}
    v_mul_u32_u24 v{t+2}, 20480, v{t+2}
    v_lshl_add_u32 v{t+2}, v{t+1}, 4, v{t+2}
    s_cmp_lg_u32 s{S_WAVE}, 0
    s_cbranch_scc1 {lab}
    ds_write_b128 v{t+2}, {vr(t+4,4)} offset:{L_X}
    {lab}:
    v_lshlrev_b32 v{V_S1A}, 3, v{t+1}          ; r*8
    v_lshlrev_b32 v{V_S1A+1}, 5, v{t}          ; g*32
    """)


class Rec:
    def __init__(self, g):
        self.g = g
        self.items = []
        self.T = g.T

    def __call__(self, s):
        self.items.append(("v", s, None))

    def lab(self, b):
        return self.g.lab(b)

    def srd(self, s, lo, hi, size):
        self(f"s_mov_b32 s{s}, s{lo}\ns_and_b32 s{s+1}, s{hi}, 0xffff\ns_mov_b32 s{s+2}, {size}\ns_mov_b32 s{s+3}, 0x20000")


def setup_deferred(g0):
    g = Rec(g0)
    l = V_L
    t = 184
    a = S_STAMP + 20
    g.srd(S_W1, a, a + 1, 1835008)
    g.srd(S_W3, a + 2, a + 3, 1835008)
    g.srd(S_W2, a + 4, a + 5, 1835008)
    g.srd(S_OUT, a + 6, a + 7, 2097152)
    g(f"""
    v_lshrrev_b32 v{t}, 4, v{l}
    v_and_b32 v{t+1}, 15, v{l}
    """)
    M = V_MK
    big = f2h(-1e30)
    g(f"""
    v_lshlrev_b32 v{t+2}, 2, v{t}
    v_sub_u32 v{t+3}, v{t+2}, v{t+1}           ; d0 = 4g - q (signed)
    s_cmp_eq_u32 s{S_TB}, 0
    s_cselect_b32 s0, {big}, 0
    s_mov_b32 s1, {big}
    v_mov_b32 v{t+5}, s1
    v_mov_b32 v{t+6}, s0
    v_mov_b32 v{M+16}, 0
    v_mov_b32 v{M+17}, 0
    """)
    for r in range(4):
        g(f"""
        v_add_u32 v{t+4}, {r+7}, v{t+3}
        v_cmp_gt_u32 vcc, 8, v{t+4}
        v_mov_b32 v{t+7}, {hex(0xffff << (16*(r&1)))}
        s_nop 0
        v_cndmask_b32 v{M+r}, v{t+5}, 0, vcc
        v_cndmask_b32 v{t+7}, 0, v{t+7}, vcc
        v_or_b32 v{M+16+r//2}, v{M+16+r//2}, v{t+7}
        v_add_u32 v{t+4}, {r}, v{t+3}
        v_cmp_lt_i32 vcc, 8, v{t+4}                ; d >= 9
        s_nop 1
        v_cndmask_b32 v{M+4+r}, v{t+5}, 0, vcc
        v_cndmask_b32 v{M+8+r}, v{t+5}, v{t+6}, vcc
        v_cmp_lt_i32 vcc, 0, v{t+4}                ; d >= 1
        v_cmp_gt_u32 s[6:7], 2, v{t}   ; c <= 7  <=> g < 2
        s_and_b64 vcc, vcc, s[6:7]
        s_nop 1
        v_cndmask_b32 v{M+12+r}, v{t+5}, v{t+6}, vcc
        """)
    g(f"""
    v_not_b32 v{M+18}, v{M+16}
    v_not_b32 v{M+19}, v{M+17}
    """)
    g(f"""
    s_lshl_b32 s0, s{S_TB}, 16
    s_lshl_b32 s1, s{S_C8}, 12
    s_add_u32 s0, s0, s1
    s_lshl_b32 s1, s{S_WAVE}, 10
    s_add_u32 s0, s0, s1
    s_add_u32 s0, s0, {WS_O}
    v_lshrrev_b32 v{t+2}, 5, v{l}
    v_lshlrev_b32 v{t+2}, 9, v{t+2}
    v_lshl_add_u32 v{t+2}, v{t+1}, 5, v{t+2}
    v_and_b32 v{t+3}, 1, v{t}
    v_lshl_add_u32 v{t+2}, v{t+3}, 4, v{t+2}
    v_add_u32 v{V_OS}, s0, v{t+2}
    """)
    g(f"""
    v_lshrrev_b32 v{t+2}, 3, v{l}
    v_lshlrev_b32 v{t+2}, 10, v{t+2}
    v_bfe_u32 v{t+3}, v{l}, 4, 1
    v_lshlrev_b32 v{t+3}, 2, v{t+3}
    v_and_b32 v{t+4}, 7, v{l}
    v_xor_b32 v{t+3}, v{t+3}, v{t+4}
    v_lshl_add_u32 v{t+2}, v{t+3}, 4, v{t+2}
    s_lshl_b32 s0, s{S_C8}, 7
    v_add_u32 v{V_D128}, s0, v{t+2}
    """)
    lab = g.lab("w13ok")
    g(f"""
    v_lshrrev_b32 v{t+2}, 2, v{l}
    v_mul_u32_u24 v{t+2}, 3584, v{t+2}
    v_and_b32 v{t+3}, 3, v{l}
    v_lshl_add_u32 v{t+2}, v{t+3}, 4, v{t+2}
    s_lshl_b32 s0, s{S_M}, 8
    s_lshl_b32 s1, s{S_WAVE}, 6
    s_add_u32 s0, s0, s1
    s_cmp_lt_u32 s{S_M}, 14
    s_cselect_b32 s0, s0, 0x40000000
    v_add_u32 v{V3_WD}, s0, v{t+2}
    """)
    g(f"""
    v_bfe_u32 v{t+3}, v{l}, 4, 1
    v_lshlrev_b32 v{t+2}, 5, v{t+3}
    v_and_b32 v{t+3}, 1, v{l}
    v_lshl_add_u32 v{t+2}, v{t+3}, 4, v{t+2}
    v_bfe_u32 v{t+3}, v{l}, 1, 1
    v_lshl_add_u32 v{t+2}, v{t+3}, 3, v{t+2}  ; (G&1)*32 + (c&1)*16 + (c>>1)*8
    v_lshrrev_b32 v{t+4}, 5, v{l}
    v_lshlrev_b32 v{t+4}, 3, v{t+4}
    v_bfe_u32 v{t+3}, v{l}, 2, 2
    v_add_u32 v{t+4}, v{t+4}, v{t+3}          ; 8h + r
    v_lshl_add_u32 v{t+5}, v{t+4}, 7, v{t+2}
    v_lshl_add_u32 v{t+6}, v{t+4}, 6, v{t+2}
    v_bfe_u32 v{t+3}, v{l}, 3, 1
    s_lshr_b32 s0, s{S_WAVE}, 1
    v_xor_b32 v{t+3}, s0, v{t+3}
    v_lshl_add_u32 v{V_TR}, v{t+3}, 6, v{t+5}
    v_xor_b32 v{V_TR+1}, 64, v{V_TR}
    s_lshl_b32 s0, s{S_WAVE}, 10
    s_add_u32 s0, s0, {L_MISC}
    v_add_u32 v{V3_TR}, s0, v{t+6}
    v_add_u32 v{V3_SW}, s0, v{V_L16}
    v_add_u32 v{V3_HB}, 65536, v{V_L16}
    """)
    for i in range(1, 4):
        g(f"""
        s_xor_b32 s0, s{S_WAVE}, {i}
        s_lshl_b32 s0, s0, 14
        s_add_u32 s0, s0, {L_WO + (i-1)*4096}
        v_add_u32 v{V_RED+i-1}, s0, v{V_L16}
        """)
    g(f"""
    s_lshl_b32 s0, s{S_WAVE}, 14
    s_add_u32 s0, s0, {L_WO}
    v_add_u32 v{V_RED+3}, s0, v{V_L16}
    s_lshl_b32 s0, s{S_TB}, 16
    s_and_b32 s1, s{S_WAVE}, 1
    s_lshl_b32 s1, s1, 15
    s_add_u32 s0, s0, s1
    s_lshl_b32 s1, s{S_C8}, 7
    s_add_u32 s0, s0, s1
    s_lshr_b32 s1, s{S_WAVE}, 1
    s_lshl_b32 s1, s1, 6
    s_add_u32 s0, s0, s1
    v_and_b32 v{t+2}, 31, v{l}
    v_lshlrev_b32 v{t+3}, 10, v{t+2}
    v_lshrrev_b32 v{t+4}, 5, v{l}
    v_lshl_add_u32 v{t+3}, v{t+4}, 4, v{t+3}
    v_add_u32 v{V_XO}, s0, v{t+3}
    v_lshlrev_b32 v{t+2}, 4, v{t+2}
    v_lshl_add_u32 v{V_GA}, v{t+4}, 12, v{t+2}
    """)


    out = []
    for _, txt, _ in g.items:
        lines = [x.strip() for x in txt.split("\n") if x.strip() and not x.strip().startswith(";")]
        i = 0
        while i < len(lines):
            if lines[i].startswith("s_cmp"):
                out.append(("v", lines[i] + "\n" + lines[i + 1], None))
                i += 2
            else:
                out.append(("v", lines[i], None))
                i += 1
    return out


def touch(srd, nlines, pre, va="v2", off=0):
    o = f" offset:{off}" if off else ""
    return ("vm", f"""{pre}
    s_mov_b64 exec, {hex((1 << nlines) - 1)}
    buffer_load_dword v3, {va}, {sr(srd,4)}, s{S_T+3} offen{o}
    s_mov_b64 exec, -1""", "PF")


def touch_w13(i):
    pre = f"""s_add_u32 s{S_T+3}, s{S_XCD}, {i//2}
    s_and_b32 s{S_T+3}, s{S_T+3}, 7
    s_mul_i32 s{S_T+3}, s{S_T+3}, {64*3584}
    s_mul_i32 s{S_T+2}, s{S_IDXW}, 1792
    s_add_u32 s{S_T+3}, s{S_T+3}, s{S_T+2}"""
    return touch(S_W1 if i % 2 == 0 else S_W3, 14, pre)


def touch_res3(g, srd, nlines):
    t = g.T + 7
    return touch(srd, nlines, f"v_lshlrev_b32 v{t}, 10, v{V_L}\ns_mul_i32 s{S_T+3}, s{S_IDXW}, {nlines*1024}", f"v{t}", 384)


def p1_dma_x(q):
    slot = q % 3
    out = []
    rowoff = [0, 0, 32 * 1024, 1024, 33 * 1024]
    for i in range(5):
        pre = f"s_add_u32 m0, s{S_LB}, {L_X + slot*20480 + i*4096}\n"
        if i == 0:
            pre += f"s_mov_b64 exec, s[{S_EXM}:{S_EXM+1}]\n"
            ins = pre + f"buffer_load_dwordx4 v{V_XD}, {sr(S_X,4)}, s{S_XOFF+q} offen lds\ns_mov_b64 exec, -1"
        else:
            pre += f"s_add_u32 s{S_T+1}, s{S_XOFF+q}, {rowoff[i]}\n"
            ins = pre + f"buffer_load_dwordx4 v{V_XD+1}, {sr(S_X,4)}, s{S_T+1} offen lds"
        out.append(("vm", ins, f"X{q}"))
    return out


def p1_dma_w(s):
    slot = s % 4
    q = s // 2
    out = []
    for hi in range(2):
        if s & 1:
            pre = f"s_sub_u32 s{S_T}, {64*3072 + hi*32*3072}, s{S_SW}\n"
        else:
            pre = f"s_add_u32 s{S_T}, {hi*32*3072}, s{S_SW}\n"
        pre += f"s_add_u32 m0, s{S_LB+1}, {L_W + slot*24576 + hi*4*3072}\n"
        pre += f"s_add_u32 s{S_T}, s{S_T}, s{S_WOFF+q}\n"
        for p in range(3):
            out.append(("vm", (pre if p == 0 else "") + f"buffer_load_dwordx4 v{V_WD}, {sr(S_WQKV,4)}, s{S_T} offen offset:{p*1024} lds", f"W{s}"))
    return out


def p1_read_frags(n):
    s = n // 2
    kk = n % 2
    buf = n & 1
    q = n // 4
    ks = n % 4
    slot = s % 4
    wa = V_WR + (slot // 2)
    ins = []
    for p in range(3):
        for half in range(2):
            d = V_AF + buf * 12 + p * 4 + half * 2
            off = (slot % 2) * 24576 + kk * 12288 + p * 1024 + half * 512
            ins.append(f"ds_read_b64_tr_b16 {vr(d,2)}, v{wa} offset:{off}")
    for t in range(5):
        d = V_BF + buf * 20 + t * 4
        ins.append(f"ds_read_b128 {vr(d,4)}, v{V_XR+ks} offset:{L_X + (q%3)*20480 + t*4096}")
    return ins


def acc1(p, t):
    return V_ACC + (p * 5 + t) * 4


def p1_mfmas(n):
    buf = n & 1
    ins = []
    for t in range(5):
        for p in range(3):
            a = acc1(p, t)
            c = "0" if n == 0 else vr(a, 4)
            w = vr(V_AF + buf * 12 + p * 4, 4)
            x = vr(V_BF + buf * 20 + t * 4, 4)
            if p == 2:
                w, x = x, w
            ins.append(f"v_mfma_f32_16x16x32_bf16 {vr(a,4)}, {w}, {x}, {c}")
    return ins


def poll_started_issue(g):
    t = g.T
    g(f"s_add_u32 s{S_T+4}, s{S_FLB}, {7*4096}")
    g.vm(f"buffer_load_dwordx2 {vr(t,2)}, v{V_S1A}, {sr(S_WS,4)}, s{S_T+4} offen sc1", "POLL0")


def poll_started_check(g):
    t = g.T
    lp = g.lab("pst")
    g.vwait("POLL0")
    g(f"""
    v_cmp_ne_u32 vcc, s{S_NONCE}, v{t}
    s_mov_b32 s{S_T+6}, 0
    s_cbranch_vccnz {lp}
    {lp}_ok:
    v_readfirstlane_b32 s{S_T+4}, v{t+1}
    s_lshl_b32 s{S_T+5}, s{S_TB}, 10
    s_add_u32 s{S_T+5}, s{S_T+5}, {WS_S1}
    v_cmp_ne_u32 vcc, s{S_T+4}, v{t+1}
    s_nop 0
    s_cmp_eq_u64 vcc, 0
    s_cselect_b32 s{S_FAST}, {0 if g.opts.get('slow') else 1}, 0
    """)
    g.cold.append(f"""{lp}:
    buffer_load_dwordx2 {vr(t,2)}, v{V_S1A}, {sr(S_WS,4)}, s{S_T+4} offen sc1
    s_add_u32 s{S_T+6}, s{S_T+6}, 1
    s_cmp_gt_u32 s{S_T+6}, {SPIN_MAX}
    s_waitcnt vmcnt(0)
    s_cbranch_scc1 {lp}_ok
    v_cmp_ne_u32 vcc, s{S_NONCE}, v{t}
    s_cbranch_vccnz {lp}
    s_branch {lp}_ok""")


def nm_dma_items():
    return [("vm", f"""s_lshl_b32 s{S_T+4}, s{S_WAVE}, 10
    s_add_u32 m0, s{S_T+4}, {L_MISC}
    s_add_u32 s{S_T+4}, s{S_T+4}, {L_MISC}
    buffer_load_dwordx4 v{V_L16}, {sr(S_WS,4)}, s{S_T+5} offen sc1 lds
    v_add_u32 v{V_S1A}, s{S_T+4}, v{V_S1A}
    v_add_u32 v{V_S1A+1}, s{S_T+4}, v{V_S1A+1}""", "NM")]


def nm_read_items(g):
    out = [("fn", lambda: g.vwait("NM"), None)]
    for tt in range(5):
        out.append(("ds", f"ds_read_b64 {vr(V_NM+2*tt,2)}, v{V_S1A} offset:{tt*128}", "NMR"))
    for tt in range(5):
        for h in range(2):
            out.append(("ds", f"ds_read_b128 {vr(V_NM2+8*tt+4*h,4)}, v{V_S1A+1} offset:{tt*128+16*h}", "NMR"))
    return out


def wo_dma_items():
    out = []
    for i in range(16):
        pre = ""
        if i == 0:
            pre = f"""s_lshl_b32 s{S_LB}, s{S_WAVE}, 14
            s_add_u32 s{S_LB}, s{S_LB}, {L_WO}
            s_lshl_b32 s{S_LB+1}, s{S_WAVE}, 17
            """
        out.append(("vm", pre + f"""s_add_u32 m0, s{S_LB}, {i*1024}
        s_add_u32 s{S_T+1}, s{S_LB+1}, {i*8192}
        buffer_load_dwordx4 v{V_D128}, {sr(S_WO,4)}, s{S_T+1} offen lds""", "WO"))
    return out


def preread_items():
    return [("vm", f"""s_lshl_b32 s{S_T+3}, s{S_TB}, 16
            s_lshl_b32 s{S_T+2}, s{S_C8}, 12
            s_add_u32 s{S_T+3}, s{S_T+3}, s{S_T+2}
            s_lshl_b32 s{S_T+2}, s{S_WAVE}, 10
            s_add_u32 s{S_T+3}, s{S_T+3}, s{S_T+2}
            s_mov_b64 exec, 0xff
            buffer_load_dword v3, v2, {sr(S_WS,4)}, s{S_T+3} offen sc1
            s_add_u32 s{S_T+3}, s{S_T+3}, 32768
            s_mov_b64 exec, -1""", "PF"),
            ("vm", f"""s_mov_b64 exec, 0xff
            buffer_load_dword v3, v2, {sr(S_WS,4)}, s{S_T+3} offen sc1
            s_mov_b64 exec, -1""", "PF"),
            ("vm", f"""s_lshl_b32 s{S_T+3}, s{S_TB}, 14
            s_lshl_b32 s{S_T+2}, s{S_C8}, 11
            s_add_u32 s{S_T+3}, s{S_T+3}, s{S_T+2}
            s_lshl_b32 s{S_T+2}, s{S_WAVE}, 9
            s_add_u32 s{S_T+3}, s{S_T+3}, s{S_T+2}
            s_add_u32 s{S_T+3}, s{S_T+3}, {WS_ST}
            s_mov_b64 exec, 0xf
            buffer_load_dword v3, v2, {sr(S_WS,4)}, s{S_T+3} offen sc1
            s_mov_b64 exec, -1""", "PF"),
            ("vm", f"""s_lshl_b32 s{S_T+2}, s{S_WAVE}, 12
            s_add_u32 s{S_T+3}, s{S_FLB}, s{S_T+2}
            s_mov_b64 exec, 3
            buffer_load_dword v3, v2, {sr(S_WS,4)}, s{S_T+3} offen sc1
            s_mov_b64 exec, -1""", "PF")]


def xres_items():
    return [("vm", f"buffer_load_dwordx4 {vr(V_XRES,4)}, v{V_XO}, {sr(S_X,4)}, 0 offen", "XR"),
            ("vm", f"buffer_load_dwordx4 {vr(V_XRES+4,4)}, v{V_XO}, {sr(S_X,4)}, 0 offen offset:32", "XR")]


def p1_gemm(g):
    NSTART = g.opts.get('nstart', 3)
    stream = p1_dma_x(1) + p1_dma_w(2) + p1_dma_w(3) + p1_dma_x(2) + p1_dma_w(4) + p1_dma_w(5) + p1_dma_x(3) + p1_dma_w(6) + p1_dma_w(7)
    earliest = {"W4": 1, "W5": 3, "X3": 3, "W6": 5, "W7": 7}
    span = g.opts.get("p1span", 150)
    dpos = {}
    for i, it in enumerate(stream):
        fast = g.opts.get("p1fast", 11)
        pos = i if i < fast else fast + (i - fast) * (span - fast) // (len(stream) - fast)
        pos = max(pos, 15 * earliest.get(it[2], 0))
        dpos.setdefault(pos // 15, []).append((pos % 15, it))
    nlast = max(dpos)
    g.vwait("X0", "W0")
    g.lwait_all()
    g("s_barrier")
    g.stamp("B0")
    for x in p1_read_frags(0):
        g.ds(x, "F0")
    wo = wo_dma_items()
    for n in range(16):
        s = n // 2
        mf = p1_mfmas(n)
        if n == g.opts.get("nstat", -1):
            p1_stats_compute(g)
            nonce_poll_issue(g)
        g.lwait(f"F{n}")
        if n % 2 == 1 and n < 15:
            need = [f"W{s+1}"]
            if (s + 1) % 2 == 0:
                need.append(f"X{(s+1)//2}")
            if n == NSTART:
                nonce_check(g)
                need.append("S1ST")
            g.vwait(*need)
            g("s_barrier")
            g.stamp(f"B{s+1}")
            if n == NSTART:
                p1_started(g)
        slots = {}
        if n < 15:
            spread(slots, [("ds", x, f"F{n+1}") for x in p1_read_frags(n + 1)], 0, 11)
        for pos, it in dpos.get(n, []):
            slots.setdefault(pos, []).append(it)
        if n == 6:
            slots.setdefault(14, []).append(touch_res3(g, S_WO, 4))
        t0, tn = g.opts.get("t13s", 2), g.opts.get("t13n", 0)
        if t0 <= n < t0 + tn:
            slots.setdefault(12, []).append(touch_w13(n - t0))
        if n == 9:
            slots.setdefault(1, []).append(("fn", lambda: poll_started_issue(g), None))
        if n == 11:
            slots.setdefault(0, []).append(("fn", lambda: poll_started_check(g), None))
            slots.setdefault(0, []).extend(nm_dma_items() + xres_items() + preread_items())
        if n == 15:
            spread(slots, nm_read_items(g), 0, 12)
        if n == 12:
            slots.setdefault(13, []).append(("v", f"""s_mul_i32 s{S_KO}, s{S_XCD}, {4*16*3584}
            s_mul_i32 s{S_SG}, s{S_WAVE}, 6144
            s_add_u32 s{S_SG}, s{S_SG}, 20480
            s_mul_i32 s{S_SG+1}, s{S_WAVE}, 12288
            s_add_u32 s{S_SG+1}, s{S_SG+1}, 110592
            s_lshl_b32 s{S_SG+2}, s{S_WAVE}, 12""", None))
        if 11 <= n <= 13:
            k0 = [0, 5, 10, 16]
            spread(slots, wo[k0[n-11]:k0[n-10]], 1, 15)
        if n >= 14:
            spread(slots, [("fn", lambda: g.tick(), None)] * 3, 1, 15)
        sched(g, mf, slots)
    g.stamp("p1gemm")


def p1_attention(g):
    M = V_MK
    CS = 4
    QP = 96
    KP = 104
    VP = 114
    S = 128
    g("s_nop 4")
    for p in range(2):
        for r in range(4):
            g(f"v_mov_b32_dpp v{CS+p*4+r}, v{acc1(p,0)+r} row_newbcast:0 row_mask:0xf bank_mask:0xf")
    g(f"""
    v_mov_b32 v{CS+8}, v{acc1(2,0)}
    v_mov_b32 v{CS+9}, v{acc1(2,0)}
    s_mov_b32 s{S_C}, {f2h(0.25 * 1.4426950408889634)}
    s_nop 0
    v_permlane16_swap_b32 v{CS+8}, v{CS+9}
    s_nop 0
    v_mov_b32 v{CS+9}, v{CS+8}
    s_nop 1
    v_permlane32_swap_b32 v{CS+8}, v{CS+9}
    """)
    g.lwait("NMR")
    g.stamp("nm")

    def qk_fix(p, tt, dst):
        a = acc1(p, tt)
        nm = V_NM + 2 * tt
        return [[f"v_pk_fma_f32 {vr(a+2*h,2)}, {vr(CS+p*4+2*h,2)}, {vr(nm,2)}, {vr(a+2*h,2)} op_sel:[0,0,0] op_sel_hi:[1,0,1]" for h in range(2)],
                [f"v_pk_mul_f32 {vr(a+2*h,2)}, {vr(a+2*h,2)}, {vr(nm,2)} op_sel:[0,1] op_sel_hi:[1,1]" for h in range(2)],
                [f"v_cvt_pk_bf16_f32 v{dst+h}, v{a+2*h}, v{a+2*h+1}" for h in range(2)]]

    def v_fix(tt, dst):
        a = acc1(2, tt)
        nm = V_NM2 + 8 * tt
        return [[f"v_fmac_f32 v{a+r}, v{nm+2*r}, v{CS+8}" for r in range(4)],
                [f"v_mul_f32 v{a+r}, v{nm+2*r+1}, v{a+r}" for r in range(4)],
                [f"v_cvt_pk_bf16_f32 v{dst+h}, v{a+2*h}, v{a+2*h+1}" for h in range(2)]]

    def pipe(jobs, after=None):
        N = len(jobs)
        for i in range(N + 2):
            for st in range(3):
                j = i - st
                if 0 <= j < N:
                    for x in jobs[j][st]:
                        g(x)
            if i % 2 == 1:
                g.tick()
            if after and i in after:
                after[i]()

    jobs = [qk_fix(1, 0, KP), qk_fix(1, 1, KP + 2), qk_fix(0, 1, QP), qk_fix(1, 2, KP + 4), qk_fix(0, 2, QP + 2),
            qk_fix(1, 3, KP + 6), qk_fix(0, 3, QP + 4), qk_fix(1, 4, KP + 8), qk_fix(0, 4, QP + 6)]
    pipe(jobs)
    g("s_nop 1")
    prev = {1: (0, M + 8), 2: (1, M + 4), 3: (0, M + 12), 4: (3, M + 4)}
    for t in range(1, 5):
        pt, pm = prev[t]
        d = S + 8 * (t - 1)
        g(f"v_mfma_f32_16x16x16_bf16 {vr(d,4)}, {vr(KP+2*pt,2)}, {vr(QP+2*(t-1),2)}, {vr(pm,4)}")
        g(f"v_mfma_f32_16x16x16_bf16 {vr(d+4,4)}, {vr(KP+2*t,2)}, {vr(QP+2*(t-1),2)}, {vr(M,4)}")
    vdst = {0: VP, 1: VP + 2, 2: VP + 4, 3: VP + 8, 4: VP + 10}
    pipe([v_fix(tt, vdst[tt]) for tt in range(5)])
    g(f"v_mov_b32 v{VP+6}, v{VP}\nv_mov_b32 v{VP+7}, v{VP+1}")
    g.stamp("qk")
    X = 36
    for t in range(4):
        d = S + 8 * t
        for r in range(4):
            g(f"v_max_f32 v{d+r}, v{d+r}, v{d+4+r}")
    for t in range(4):
        d = S + 8 * t
        g(f"v_max3_f32 v{X+t}, v{d}, v{d+1}, v{d+2}")
    for t in range(4):
        d = S + 8 * t
        g(f"v_max_f32 v{X+t}, v{X+t}, v{d+3}")
    for op in ("v_permlane16_swap_b32", "v_permlane32_swap_b32"):
        for t in range(4):
            g(f"v_mov_b32 v{X+4+t}, v{X+t}")
        g.tick()
        g("s_nop 0")
        for t in range(4):
            g(f"{op} v{X+t}, v{X+4+t}")
        for t in range(4):
            g(f"v_max_f32 v{X+t}, v{X+t}, v{X+4+t}")
    for t in range(4):
        g(f"v_mul_f32 v{X+t}, {f2h(-0.25 * 1.4426950408889634)}, v{X+t}")
    P = 44
    O = 76
    va = {0: VP, 1: VP + 2, 2: VP + 6, 3: VP + 8}
    for t in range(4):
        d = S + 8 * t
        for r in range(4):
            g(f"v_fma_f32 v{d+r}, v{d+r}, s{S_C}, v{X+t}")
    for t in range(5):
        if t < 4:
            d = S + 8 * t
            for r in range(4):
                g(f"v_exp_f32 v{d+r}, v{d+r}")
        if t >= 1:
            d = S + 8 * (t - 1)
            p = P + 8 * (t - 1)
            if t == 4:
                g("s_nop 0")
            g(f"""
            v_cvt_pk_bf16_f32 v{p}, v{d}, v{d+1}
            v_cvt_pk_bf16_f32 v{p+1}, v{d+2}, v{d+3}
            v_and_b32 v{p+2}, v{M+18}, v{p}
            v_and_b32 v{p+3}, v{M+19}, v{p+1}
            v_and_b32 v{p+4}, v{M+16}, v{p}
            v_and_b32 v{p+5}, v{M+17}, v{p+1}
            """)
        if t >= 2:
            tt = t - 2
            g(f"v_mfma_f32_16x16x16_bf16 {vr(S+8*tt+4,4)}, {vr(V_ONE2,2)}, {vr(P+8*tt,2)}, 0")
            g(f"v_mfma_f32_16x16x32_bf16 {vr(O+4*tt,4)}, {vr(va[tt],4)}, {vr(P+8*tt+2,4)}, 0")
    g("s_nop 0")
    tt = 3
    g(f"v_mfma_f32_16x16x16_bf16 {vr(S+8*tt+4,4)}, {vr(V_ONE2,2)}, {vr(P+8*tt,2)}, 0")
    g(f"v_mfma_f32_16x16x32_bf16 {vr(O+4*tt,4)}, {vr(va[tt],4)}, {vr(P+8*tt+2,4)}, 0")
    g.stamp("sm")
    OP = 96
    pos = {0: OP, 2: OP + 2, 1: OP + 4, 3: OP + 6}
    for tt in (0, 1):
        g(f"v_rcp_f32 v{S+8*tt+4}, v{S+8*tt+4}")
    for tt in (0, 1):
        for h in range(2):
            g(f"v_pk_mul_f32 {vr(O+4*tt+2*h,2)}, {vr(O+4*tt+2*h,2)}, {vr(S+8*tt+4,2)} op_sel:[0,0] op_sel_hi:[1,0]")
    g(f"v_rcp_f32 v{S+8*2+4}, v{S+8*2+4}")
    for tt in (0, 1):
        for h in range(2):
            g(f"v_cvt_pk_bf16_f32 v{pos[tt]+h}, v{O+4*tt+2*h}, v{O+4*tt+2*h+1}")
    g(f"v_rcp_f32 v{S+8*3+4}, v{S+8*3+4}")
    for tt in (2, 3):
        for h in range(2):
            g(f"v_pk_mul_f32 {vr(O+4*tt+2*h,2)}, {vr(O+4*tt+2*h,2)}, {vr(S+8*tt+4,2)} op_sel:[0,0] op_sel_hi:[1,0]")
    for tt in (2, 3):
        for h in range(2):
            g(f"v_cvt_pk_bf16_f32 v{pos[tt]+h}, v{O+4*tt+2*h}, v{O+4*tt+2*h+1}")
    g(f"""
    s_mov_b32 s{S_T}, 32768
    v_permlane16_swap_b32 v{OP}, v{OP+2}
    v_permlane16_swap_b32 v{OP+1}, v{OP+3}
    v_permlane16_swap_b32 v{OP+4}, v{OP+6}
    v_permlane16_swap_b32 v{OP+5}, v{OP+7}
    """)
    g.store([f"buffer_store_dwordx4 {vr(OP,4)}, v{V_OS}, {sr(S_WS,4)}, 0 offen",
             f"buffer_store_dwordx4 {vr(OP+4,4)}, v{V_OS}, {sr(S_WS,4)}, s{S_T} offen"], "OST")


def signal(g, phase, tags):
    t = g.T
    g(f"""
    v_mov_b32 v{t}, {phase*4096}
    v_mov_b32 v{t+1}, s{S_NONCE}
    """)
    g.vwait(*tags)
    g("s_mov_b64 exec, 1")
    g.store([f"buffer_store_dword v{t+1}, v{t}, {sr(S_WS,4)}, s{S_FLO} offen"], "FLAG")
    g("s_mov_b64 exec, -1")


def poll_issue(g, phase, tag):
    t = g.T
    g(f"s_add_u32 s{S_T+2}, s{S_FLB}, {phase*4096}")
    g.vm(f"buffer_load_dword v{t+2}, v{V_L4}, {sr(S_WS,4)}, s{S_T+2} offen sc1", tag)


def poll_check(g, phase, tag, mask):
    t = g.T
    lp = g.lab("poll")
    g.vwait(tag)
    g(f"""
    v_cmp_ne_u32 vcc, s{S_NONCE}, v{t+2}
    s_mov_b32 s{S_T+6}, 0
    s_and_b64 vcc, vcc, s[{mask}:{mask+1}]
    s_cbranch_vccnz {lp}
    {lp}_ok:
    """)
    g.cold.append(f"""{lp}:
    {"s_sleep 4" if phase == 2 else ""}
    s_add_u32 s{S_T+2}, s{S_FLB}, {phase*4096}
    s_add_u32 s{S_T+6}, s{S_T+6}, 1
    buffer_load_dword v{t+2}, v{V_L4}, {sr(S_WS,4)}, s{S_T+2} offen sc1
    s_cmp_gt_u32 s{S_T+6}, {SPIN_MAX}
    s_waitcnt vmcnt(0)
    s_cbranch_scc1 {lp}_ok
    v_cmp_ne_u32 vcc, s{S_NONCE}, v{t+2}
    s_and_b64 vcc, vcc, s[{mask}:{mask+1}]
    s_cbranch_vccnz {lp}
    s_branch {lp}_ok""")


def w13_load_items(u):
    return [("vm", f"buffer_load_dwordx4 {ar(8*u,4)}, v{V3_WD}, {sr(S_W1,4)}, s{S_KO} offen", f"W13_{u}"),
            ("vm", f"""buffer_load_dwordx4 {ar(8*u+4,4)}, v{V3_WD}, {sr(S_W3,4)}, s{S_KO} offen
            s_add_u32 s{S_KO}, s{S_KO}, {16*3584}
            s_cmp_lt_u32 s{S_KO}, {512*3584}
            s_cselect_b32 s{S_KO}, s{S_KO}, 0""", f"W13_{u}")]


S_SG = 62
NSLOT = 11


def slot_addr(k):
    if k < 3:
        return S_SG, k * 2048, 0
    if k < 9:
        return S_SG + 1, (k - 3) * 2048, 1
    return S_SG + 2, (k - 9) * 2048, 2


def w13_dma_items(u):
    sb, off, _ = slot_addr(u % NSLOT)
    return [("vm", f"""s_add_u32 m0, s{sb}, {off}
            s_nop 0
            buffer_load_dwordx4 v{V3_WD}, {sr(S_W1,4)}, s{S_KO} offen lds""", f"W13_{u}"),
            ("vm", f"""s_add_u32 m0, s{sb}, {off+1024}
            s_nop 0
            buffer_load_dwordx4 v{V3_WD}, {sr(S_W3,4)}, s{S_KO} offen lds
            s_add_u32 s{S_KO}, s{S_KO}, {16*3584}
            s_cmp_lt_u32 s{S_KO}, {512*3584}
            s_cselect_b32 s{S_KO}, s{S_KO}, 0""", f"W13_{u}")]


V_SGA = 24


def w13_stage_setup(g):
    g(f"""
    s_lshl_b32 s{S_T}, s{S_WAVE}, 10
    s_add_u32 s{S_T}, s{S_T}, {L_MISC}
    v_subrev_u32 v{V_SGA+2}, s{S_T}, v{V3_TR}
    v_add_u32 v{V_SGA}, s{S_SG}, v{V_SGA+2}
    v_add_u32 v{V_SGA+1}, s{S_SG+1}, v{V_SGA+2}
    v_add_u32 v{V_SGA+2}, s{S_SG+2}, v{V_SGA+2}
    """)


def w13_pick_items(g, u):
    _, off, r = slot_addr(u % NSLOT)
    out = [("fn", lambda: g.vwait(f"W13_{u}"), None)]
    for m in range(2):
        for half in range(2):
            out.append(("ds", f"ds_read_b64_tr_b16 {ar(8*u+4*m+2*half,2)}, v{V_SGA+r} offset:{off + m*1024 + half*256}", f"A3_{u}"))
    return out


def w13_xpose_items(g, u):
    out = [("fn", lambda: g.vwait(f"W13_{u}"), None)]
    for m in range(2):
        out.append(("ds", f"ds_write_b128 v{V3_SW}, {ar(8*u+4*m,4)}", f"A3_{u}"))
        for half in range(2):
            out.append(("ds", f"ds_read_b64_tr_b16 {ar(8*u+4*m+2*half,2)}, v{V3_TR} offset:{half*256}", f"A3_{u}"))
    return out


V2_B = 32
V2_A = 96
V2_ACC = 160


def p2_read_a(g):
    t = g.T
    g.vwait("WO")
    g(f"""
    v_add_u32 v{t+4}, s{S_LB}, v{V_TR}
    v_add_u32 v{t+5}, s{S_LB}, v{V_TR+1}
    """)
    for ks in range(8):
        for ia in (1, 0):
            for half in range(2):
                d = V2_A + (ia * 8 + ks) * 4 + half * 2
                g.ds(f"ds_read_b64_tr_b16 {vr(d,2)}, v{t+4+ia} offset:{ks*2048 + half*512}", "A2")


def unpack_bf16(g, dst, src, n=8):
    for d in range(n):
        g(f"v_lshlrev_b32 v{dst+2*d}, 16, v{src+d}")
        g(f"v_and_b32 v{dst+2*d+1}, 0xffff0000, v{src+d}")


def p2_pre(g):
    A = S_A
    g(f"""
    s_and_b32 s{S_T+1}, s{S_M}, 8
    s_lshl_b32 s{S_T+1}, s{S_T+1}, 2
    s_lshl_b32 s{S_T+2}, s{S_WAVE}, 3
    s_add_u32 s{S_T+1}, s{S_T+1}, s{S_T+2}
    s_mov_b64 s[6:7], 0xff
    s_lshl_b64 s[6:7], s[6:7], s{S_T+1}
    s_lshl_b32 s{S_T}, s{S_TB}, 16
    s_lshl_b32 s{S_T+1}, s{S_WAVE}, 13
    s_add_u32 s{S_T}, s{S_T}, s{S_T+1}
    s_add_u32 s{S_T}, s{S_T}, {WS_O}
    s_and_b32 s{S_T+1}, s{S_WAVE}, 1
    s_lshl_b32 s{S_T+1}, s{S_T+1}, 15
    s_add_u32 s{A}, s{S_T}, s{S_T+1}
    s_xor_b32 s{S_T+1}, s{S_T+1}, 32768
    s_add_u32 s{A+1}, s{S_T}, s{S_T+1}
    s_add_u32 s{A+2}, s{A}, 4096
    s_add_u32 s{A+3}, s{A+1}, 4096
    s_lshl_b32 s{S_T}, s{S_TB}, 1
    s_and_b32 s{S_T+1}, s{S_WAVE}, 1
    s_add_u32 s{S_T}, s{S_T}, s{S_T+1}            ; tile
    s_lshl_b32 s{S_T+2}, s{S_C8}, 1
    s_lshr_b32 s{S_T+3}, s{S_WAVE}, 1
    s_add_u32 s{S_T+2}, s{S_T+2}, s{S_T+3}        ; part
    s_lshl_b32 s{S_A2+0}, s{S_T}, 15
    s_lshl_b32 s{S_T+3}, s{S_T+2}, 11
    s_add_u32 s{S_A2+0}, s{S_A2+0}, s{S_T+3}
    s_add_u32 s{S_A2+0}, s{S_A2+0}, {WS_H}
    s_lshl_b32 s{S_A2+1}, s{S_T}, 13
    s_add_u32 s{S_A2+1}, s{S_A2+1}, {WS_ST}
    s_lshl_b32 s{S_T+3}, s{S_T+2}, 9
    s_add_u32 s{S_A2+2}, s{S_A2+1}, s{S_T+3}
    """)
    unpack_bf16(g, V2_ACC, V_XRES)


def p2_main(g):
    t = g.T
    A = S_A
    o = g.opts
    for ks in range(8):
        for ib in range(2):
            so = A + ib + (2 if ks >= 4 else 0)
            g.vm(f"buffer_load_dwordx4 {vr(V2_B+(ib*8+ks)*4,4)}, v{V_L16}, {sr(S_WS,4)}, s{so} offen offset:{(ks%4)*1024} sc1", f"B2_{ks}")
    for ks in range(8):
        g.vwait(f"B2_{ks}")
        for i in (1, 2, 3, 0):
            ia, ib = i >> 1, i & 1
            a = V2_ACC + 16 * i
            c = "0" if (ks == 0 and i) else vr(a, 16)
            g(f"v_mfma_f32_32x32x16_bf16 {vr(a,16)}, {vr(V2_A+(ia*8+ks)*4,4)}, {vr(V2_B+(ib*8+ks)*4,4)}, {c}")
            if i in (1, 3):
                g.tick()
    g.stamp("p2mfma")
    g("s_nop 8")
    for i in range(1, 4):
        for q in range(4):
            g.ds(f"ds_write_b128 v{V_RED+i-1}, {vr(V2_ACC+16*i+4*q,4)} offset:{q*1024}", "RW")
    g.lwait_all()
    g.stamp("p2rw")
    g("s_barrier")
    g.stamp("p2bar")
    tmp = V2_B
    for i in range(3):
        for q in range(4):
            g.ds(f"ds_read_b128 {vr(tmp+16*i+4*q,4)}, v{V_RED+3} offset:{i*4096+q*1024}", f"RR{i}")
    e = 96
    g(f"v_mov_b32 v{e+2}, s{S_NONCE}\nv_mov_b32 v{e+3}, 0")
    for i in range(3):
        g.lwait(f"RR{i}")
        for d in range(8):
            g(f"v_pk_add_f32 {vr(V2_ACC+2*d,2)}, {vr(V2_ACC+2*d,2)}, {vr(tmp+16*i+2*d,2)}")
    for d in range(8):
        g(f"v_cvt_pk_bf16_f32 v{V_HK+d}, v{V2_ACC+2*d}, v{V2_ACC+2*d+1}")
    g(f"v_dot2_f32_bf16 v{e}, v{V_HK}, s{S_ONES}, 0")
    g(f"v_dot2_f32_bf16 v{e+1}, v{V_HK}, v{V_HK}, 0")
    g(f"v_dot2_f32_bf16 v{e+4}, v{V_HK+1}, s{S_ONES}, 0")
    g(f"v_dot2_f32_bf16 v{e+5}, v{V_HK+1}, v{V_HK+1}, 0")
    for d in range(2, 8):
        oo = 4 * (d & 1)
        g(f"v_dot2c_f32_bf16 v{e+oo}, s{S_ONES}, v{V_HK+d}")
        g(f"v_dot2c_f32_bf16 v{e+oo+1}, v{V_HK+d}, v{V_HK+d}")
    g(f"""
    s_nop 2
    v_pk_add_f32 {vr(e,2)}, {vr(e,2)}, {vr(e+4,2)}
    s_nop 0
    v_mov_b32 v{e+4}, v{e}
    v_mov_b32 v{e+5}, v{e+1}
    s_nop 1
    v_permlane32_swap_b32 v{e}, v{e+4}
    v_permlane32_swap_b32 v{e+1}, v{e+5}
    s_mov_b32 exec_hi, 0
    v_pk_add_f32 {vr(e,2)}, {vr(e,2)}, {vr(e+4,2)}
    """)
    g.store([f"buffer_store_dwordx4 {vr(e,4)}, v{V_L16}, {sr(S_WS,4)}, s{S_A2+2} offen"], "SST")
    g("s_mov_b32 exec_hi, -1")
    g.stamp("p2stat")
    unpack_bf16(g, V2_ACC, V_HK)
    g.ds(f"ds_write_b128 v{V_RED+3}, {vr(V_HK,4)} offset:12288", "HKW")
    g.ds(f"ds_write_b128 v{V_RED+3}, {vr(V_HK+4,4)} offset:13312", "HKW")
    lp = g.lab("sg")
    q = 104
    g(f"s_mov_b32 s{S_T+6}, 0\n{lp}:")
    for i in range(8):
        g(f"buffer_load_dwordx4 {vr(q+4*i,4)}, v{V_GA}, {sr(S_WS,4)}, s{S_A2+1} offen offset:{i*512} sc1")
    g(f"""
    s_add_u32 s{S_T+6}, s{S_T+6}, 1
    s_cmp_gt_u32 s{S_T+6}, {SPIN_MAX}
    s_waitcnt vmcnt(0)
    s_cbranch_scc1 {lp}_x
    v_min3_u32 v{t}, v{q+2}, v{q+6}, v{q+10}
    v_max3_u32 v{t+1}, v{q+2}, v{q+6}, v{q+10}
    v_min3_u32 v{t}, v{t}, v{q+14}, v{q+18}
    v_max3_u32 v{t+1}, v{t+1}, v{q+14}, v{q+18}
    v_min3_u32 v{t}, v{t}, v{q+22}, v{q+26}
    v_max3_u32 v{t+1}, v{t+1}, v{q+22}, v{q+26}
    v_min3_u32 v{t}, v{t}, v{q+30}, s{S_NONCE}
    v_max3_u32 v{t+1}, v{t+1}, v{q+30}, s{S_NONCE}
    v_cmp_ne_u32 vcc, v{t}, v{t+1}
    s_cbranch_vccnz {lp}
    {lp}_x:
    """)
    g.vq = []
    g.stamp("p2gath")
    g(f"""
    v_pk_add_f32 {vr(q,2)}, {vr(q,2)}, {vr(q+4,2)}
    v_pk_add_f32 {vr(q+8,2)}, {vr(q+8,2)}, {vr(q+12,2)}
    v_pk_add_f32 {vr(q+16,2)}, {vr(q+16,2)}, {vr(q+20,2)}
    v_pk_add_f32 {vr(q+24,2)}, {vr(q+24,2)}, {vr(q+28,2)}
    v_pk_add_f32 {vr(q,2)}, {vr(q,2)}, {vr(q+8,2)}
    v_pk_add_f32 {vr(q+16,2)}, {vr(q+16,2)}, {vr(q+24,2)}
    v_pk_add_f32 {vr(q,2)}, {vr(q,2)}, {vr(q+16,2)}
    v_mov_b32 v{q+2}, v{q}
    v_mov_b32 v{q+3}, v{q+1}
    s_nop 1
    v_permlane32_swap_b32 v{q}, v{q+2}
    v_permlane32_swap_b32 v{q+1}, v{q+3}
    v_pk_add_f32 {vr(q,2)}, {vr(q,2)}, {vr(q+2,2)}
    v_mul_f32 v{q+4}, {f2h(-1.0/512)}, v{q}
    v_mul_f32 v{q+5}, {f2h(1.0/512)}, v{q+1}
    v_fma_f32 v{q+5}, -v{q+4}, v{q+4}, v{q+5}
    v_max_f32 v{q+5}, 0, v{q+5}
    v_add_f32 v{q+5}, {f2h(1e-5)}, v{q+5}
    v_rsq_f32 v{q+5}, v{q+5}
    s_nop 0
    v_mul_f32 v{q+5}, {f2h(LOG2E)}, v{q+5}
    v_mul_f32 v{q+4}, v{q+4}, v{q+5}
    """)
    for d in range(8):
        a = V2_ACC + 2 * d
        g(f"v_pk_fma_f32 {vr(a,2)}, {vr(a,2)}, {vr(q+4,2)}, {vr(q+4,2)} op_sel:[0,1,0] op_sel_hi:[1,1,0]")
    for d in range(8):
        g(f"v_cvt_pk_bf16_f32 v{q+8+d}, v{V2_ACC+2*d}, v{V2_ACC+2*d+1}")
    g.store([f"buffer_store_dwordx4 {vr(q+8,4)}, v{V_L16}, {sr(S_WS,4)}, s{S_A2+0} offen",
             f"buffer_store_dwordx4 {vr(q+12,4)}, v{V_L16}, {sr(S_WS,4)}, s{S_A2+0} offen offset:1024"], "HST")


def hk_exchange_read(g):
    t = g.T
    g(f"""
    s_and_b32 s{S_T}, s{S_WAVE}, 2
    s_lshl_b32 s{S_T}, s{S_T}, 14
    s_and_b32 s{S_T+1}, s{S_WAVE}, 1
    s_lshl_b32 s{S_T+1}, s{S_T+1}, 10
    s_add_u32 s{S_T}, s{S_T}, s{S_T+1}
    s_add_u32 s{S_T}, s{S_T}, {L_WO}
    v_add_u32 v{t+4}, s{S_T}, v{V_L16}
    """)
    g.ds(f"ds_read_b128 {vr(V_HK,4)}, v{t+4} offset:{12288}", "HKR")
    g.ds(f"ds_read_b128 {vr(V_HK+4,4)}, v{t+4} offset:{16384+12288}", "HKR")


V3_ACC = 32
V3_B = 160
V3_E = 192
K1 = 16
TORD = [0, 2, 1, 3]
L_SP = 131072


def p3_pre(g):
    A = S_A
    g(f"""
    s_lshl_b32 s{A}, s{S_G}, 17
    s_lshl_b32 s{A+1}, s{S_WAVE}, 15
    s_add_u32 s{A}, s{A}, s{A+1}
    s_add_u32 s{A}, s{A}, {WS_H}
    s_lshl_b32 s{S_K2}, s{S_XCD}, 12
    s_mov_b32 s{S_C}, {f2h(LOG2E*LOG2E)}
    s_mul_i32 s{A+2}, s{S_G}, {4*114688}
    s_lshl_b32 s{S_T+1}, s{S_M}, 13
    s_add_u32 s{A+2}, s{A+2}, s{S_T+1}
    s_lshl_b32 s{S_T+1}, s{S_WAVE}, 11
    s_add_u32 s{A+2}, s{A+2}, s{S_T+1}
    s_add_u32 s{A+2}, s{A+2}, {WS_HH}
    s_mov_b64 s[6:7], -1
    """)


def p3_h_items(b):
    A = S_A
    out = []
    for i in range(4):
        pre = f"s_add_u32 m0, s{A+1}, {b*4096}\n"
        post = ""
        pre += f"s_add_u32 s{A+3}, s{A}, s{S_K2}\n" if i == 0 else "s_nop 0\n"
        if i == 3:
            post = f"\ns_add_u32 s{S_K2}, s{S_K2}, 4096\ns_and_b32 s{S_K2}, s{S_K2}, 32767"
        out.append(("vm", pre + f"buffer_load_dwordx4 v{V_L16}, {sr(S_WS,4)}, s{A+3} offen offset:{i*1024} sc1 lds" + post, f"H{b}"))
    return out


def p3_epi_sched(j):
    A = V3_ACC + 32 * j
    e = V3_E
    o = V3_E + 16
    st = [
        lambda r: f"v_exp_f32 v{e+r}, -v{A+r}",
        lambda r: f"v_mul_f32 v{A+r}, v{A+r}, v{A+16+r}",
        lambda r: f"v_fma_f32 v{e+r}, v{e+r}, s{S_C}, s{S_C}",
        lambda r: f"v_rcp_f32 v{e+r}, v{e+r}",
        lambda r: f"v_mul_f32 v{A+r}, v{A+r}, v{e+r}",
        lambda r: (f"v_cvt_pk_bf16_f32 v{o+r//2}, v{A+r-1}, v{A+r}" if r % 2 else None),
    ]
    skew = [0, 0, 1, 2, 3, 4]
    out = []
    for step in range(16 + 5):
        for si, f in enumerate(st):
            r = step - skew[si]
            if 0 <= r < 16:
                x = f(r)
                if x:
                    out.append(("v", x, None))
    return out


def p3_hh_store(g, j):
    o = V3_E + 16
    g(f"s_add_u32 s{S_T}, s{S_A+2}, {j*114688}")
    g.vm(f"buffer_store_dwordx4 {vr(o,4)}, v{V_L16}, {sr(S_WS,4)}, s{S_T} offen sc1", f"HHST{j}")
    g.vm(f"buffer_store_dwordx4 {vr(o+4,4)}, v{V_L16}, {sr(S_WS,4)}, s{S_T} offen offset:1024 sc1", f"HHST{j}")


def hh_touch(g, j):
    g.vwait(f"HHST{j}")
    emit_items(g, [touch(S_WS, 16, f"s_add_u32 s{S_T+3}, s{S_A+2}, {j*114688}")])


V4_AD = 4
V4_B = 32
NB4 = 16
V4_ACC = 160


def p34_pre(g):
    A = S_A
    d = V4_AD
    l = V_L
    g(f"""
    s_mul_i32 s{S_W2O}, s{S_WAVE}, {448*1024}
    s_lshl_b32 s{S_LB}, s{S_WAVE}, 15
    s_lshl_b32 s{S_LB+1}, s{S_WAVE}, 13
    s_add_u32 s{S_LB+1}, s{S_LB+1}, {L_SP}
    s_mul_i32 s{S_T}, s{S_TB}, {2*114688}
    s_mul_i32 s{S_T+1}, s{S_WAVE}, {28*1024}
    s_add_u32 s{S_T}, s{S_T}, s{S_T+1}
    s_add_u32 s{S_A2}, s{S_T}, {WS_HH}           ; ti=0
    s_add_u32 s{S_A2+1}, s{S_A2}, 114688         ; ti=1
    s_mul_i32 s{S_T+1}, s{S_WAVE}, 14
    s_mov_b64 s[{S_A2+2}:{S_A2+3}], 0x3fff
    s_lshl_b64 s[{S_A2+2}:{S_A2+3}], s[{S_A2+2}:{S_A2+3}], s{S_T+1}
    s_and_b32 s{S_T}, s{S_WAVE}, 1
    s_lshl_b32 s{S_T}, s{S_T}, 5
    v_xor_b32 v{d}, s{S_T}, v{V_TR}
    v_xor_b32 v{d+1}, 64, v{d}
    v_add_u32 v{d+2}, s{S_LB}, v{d}
    v_add_u32 v{d+3}, s{S_LB}, v{d+1}
    v_add_u32 v{d+4}, s{S_LB+1}, v{d}
    v_add_u32 v{d+5}, s{S_LB+1}, v{d+1}
    s_sub_u32 s{S_T}, s{S_LB+1}, s{S_SG}
    v_add_u32 v{d+6}, s{S_T}, v{V_SGA}          ; ring (w13 image)
    s_lshl_b32 s{S_T}, s{S_TB}, 16
    s_lshl_b32 s{S_T+1}, s{S_C8}, 7
    s_add_u32 s{S_T}, s{S_T}, s{S_T+1}
    s_lshl_b32 s{S_T+1}, s{S_WAVE}, 5
    s_add_u32 s{S_T}, s{S_T}, s{S_T+1}
    v_and_b32 v{d+7}, 31, v{l}
    v_lshlrev_b32 v{d+7}, 10, v{d+7}
    v_lshrrev_b32 v{d+8}, 5, v{l}
    v_lshl_add_u32 v{d+7}, v{d+8}, 4, v{d+7}
    v_add_u32 v{d+7}, s{S_T}, v{d+7}
    v_add_u32 v{d+8}, 7168, v{V_D128}           ; second half of a w2 kstep: +8192 global, offset:1024 adds the rest
    """)
    for i in range(1, 5):
        g(f"""
        s_xor_b32 s{S_T}, s{S_WAVE}, {i%4}
        s_lshl_b32 s{S_T}, s{S_T}, 15
        s_add_u32 s{S_T}, s{S_T}, {16384 + ((i-1)%3 if i < 4 else 0)*4096}
        v_add_u32 v{V_RED+i-1}, s{S_T}, v{V_L16}
        """)


def w2_dma_items(ks, sb, off):
    return [("vm", f"""s_add_u32 m0, s{sb}, {off}
            s_add_u32 s{S_T+5}, s{S_W2O}, {ks*16*1024}
            buffer_load_dwordx4 v{V_D128}, {sr(S_W2,4)}, s{S_T+5} offen lds""", f"W2_{ks}"),
            ("vm", f"buffer_load_dwordx4 v{V4_AD+8}, {sr(S_W2,4)}, s{S_T+5} offen offset:1024 lds", f"W2_{ks}")]


def w2_pick_items(g, ks, base, off):
    out = [("fn", lambda: g.vwait(f"W2_{ks}"), None)]
    for ia in range(2):
        for half in range(2):
            out.append(("ds", f"ds_read_b64_tr_b16 {ar(8*ks+4*ia+2*half,2)}, v{base+ia} offset:{off + half*512}", f"A4_{ks}"))
    return out


def w13_ring_dma(u, off):
    return [("vm", f"""s_add_u32 m0, s{S_LB+1}, {off}
            s_nop 0
            buffer_load_dwordx4 v{V3_WD}, {sr(S_W1,4)}, s{S_KO} offen lds
            s_add_u32 m0, s{S_LB+1}, {off+1024}""", f"W13_{u}"),
            ("vm", f"""buffer_load_dwordx4 v{V3_WD}, {sr(S_W3,4)}, s{S_KO} offen lds
            s_add_u32 s{S_KO}, s{S_KO}, {16*3584}
            s_cmp_lt_u32 s{S_KO}, {512*3584}
            s_cselect_b32 s{S_KO}, s{S_KO}, 0""", f"W13_{u}")]


def w13_ring_pick(g, u, off):
    out = [("fn", lambda: g.vwait(f"W13_{u}"), None)]
    for m in range(2):
        for half in range(2):
            out.append(("ds", f"ds_read_b64_tr_b16 {ar(8*u+4*m+2*half,2)}, v{V4_AD+6} offset:{off + m*1024 + half*256}", f"A3_{u}"))
    return out


W2_PARK = {}


def p3_main(g, npre):
    o = g.opts
    seq = [(j, u) for u in range(K1) for j in range(4)] + [(j, u) for j in TORD for u in range(K1, 32)]
    PF = 4

    def bread(n):
        j, u = seq[n]
        a = V_L16 if j < 2 else V3_HB
        return ("ds", f"ds_read_b128 {vr(V3_B+4*(n%8),4)}, v{a} offset:{(j%2)*32768 + u*1024}", f"B3_{n}")

    extra = {}

    def put(step, items, half=1):
        extra.setdefault(2 * step + half, []).extend(items)

    LAG13 = o.get("lag13", 14)
    LAG2 = o.get("lag2", 8)
    per = o.get("per3", 2)
    busy = set()
    slot_free = [0, 0, 0, 0]
    slot_tag = [None] * 4

    def alloc(st, n=1):
        while any((st + i) in busy for i in range(n * per)):
            st += 1
        for i in range(n * per):
            busy.add(st + i)
        return st

    hstart = {2: 0, 3: 10, 4: 22, 5: 30, 6: 38, 7: 46}
    for b, st in hstart.items():
        st = alloc(st, 2)
        it = p3_h_items(b)
        put(st, it[0:1], 0); put(st, it[1:2], 1); put(st + 1, it[2:3], 0); put(st + 1, it[3:4], 1)
    ring = [("w13", u) for u in range(npre, 32)] + [("w2", ks) for ks in range(16)] + [("w2", ks) for ks in range(24, 28)]
    cur = 0
    left = []
    W2_PARK.clear()
    for i, (kind, x) in enumerate(ring):
        sl = i % 4
        st = alloc(max(cur, slot_free[sl]))
        off = sl * 2048
        pre = []
        if slot_tag[sl]:
            tg = slot_tag[sl]
            pre = [("fn", lambda tg=tg: g.lwait(tg), None)]
        if kind == "w13":
            need = (4 * x if x < K1 else 64 + (x - K1)) - 2
            it = w13_ring_dma(x, off)
            pk = min(st + LAG13, need)
            assert pk > st, (x, st, need)
            put(st, pre + it[:1], 0); put(st, it[1:], 1)
            put(pk, w13_ring_pick(g, x, off))
            slot_free[sl] = pk + 2
            slot_tag[sl] = f"A3_{x}"
        else:
            it = w2_dma_items(x, S_LB + 1, off)
            assert st < 126, ("ring overflow", x, st)
            put(st, pre + it[:1], 0); put(st, it[1:], 1)
            if x < 16:
                pk = max(st + LAG2, 4 * x + 5)
                assert pk < 127
                put(pk, w2_pick_items(g, x, V4_AD + 4, off))
                slot_free[sl] = pk + 2
                slot_tag[sl] = f"A4_{x}"
            else:
                W2_PARK[x] = (V4_AD + 4, off)
        cur = st
    for ks in range(16, 24):
        b = (ks - 16) // 2
        e = 16 * (b + 2) - PF + 1 if b < 2 else 66
        st = alloc(max(e, o.get("w2reg0", 50)))
        assert st < 126
        it = w2_dma_items(ks, S_LB, (ks - 16) * 2048)
        put(st, it[:1], 0); put(st, it[1:], 1)
        W2_PARK[ks] = (V4_AD + 2, (ks - 16) * 2048)
    print("p3 stream ends at step", max(busy))
    for i in range(1, 4):
        ep = p3_epi_sched(TORD[i - 1])
        base = 64 + 16 * i
        for k, it in enumerate(ep):
            extra.setdefault(2 * base + 5 + k * 25 // len(ep), []).append(it)
        put(base + 15, [("fn", lambda j=TORD[i - 1]: p3_hh_store(g, j), None)], 0)
    put(64 + 16 * 3 + 6, [("fn", lambda: signal(g, 2, ["HHST0", "HHST2"]), None)])
    if o.get("hht", 0):
        put(64 + 16 * 2 + 6, [("fn", lambda: hh_touch(g, 0), None)])
        put(64 + 16 * 3 + 7, [("fn", lambda: hh_touch(g, 2), None)])
    put(125, [("fn", lambda: poll_issue(g, 2, "POLL3A"), None)])

    g.vwait("H0")
    g.lwait_all()
    g("s_barrier")
    g.stamp("p3start")
    for n in range(PF):
        emit_items(g, [bread(n)])
    for n, (j, u) in enumerate(seq):
        if n + PF < len(seq):
            jj, uu = seq[n + PF]
            if n + PF < 64 and uu % 4 == 0 and jj == 0 and uu > 0:
                g.vwait(f"H{uu//4}")
                g("s_barrier")
            if n + PF == 64:
                g.vwait("H7")
                g("s_barrier")
        if n == 65:
            g("s_barrier")
        g.lwait(f"B3_{n}", f"A3_{u}")
        A = V3_ACC + 32 * j
        for m in range(2):
            a = A + 16 * m
            c = "0" if u == 0 else vr(a, 16)
            g(f"v_mfma_f32_32x32x16_bf16 {vr(a,16)}, {ar(8*u+4*m,4)}, {vr(V3_B+4*(n%8),4)}, {c}")
            if m == 0 and n + PF < len(seq):
                emit_items(g, [bread(n + PF)])
            emit_items(g, extra.get(2 * n + m, []))
        if n == 63:
            g.stamp("p3pass1")
        if n in (79, 95, 111):
            g.stamp(f"p3s{n}")
    g.stamp("p3mfma")


def p4_load(g, n):
    ti, ks = n // 28, n % 28
    if ks % 4 == 0:
        g(f"s_add_u32 s{S_T+4}, s{S_A2+ti}, {(ks//4)*4096}")
    g.vm(f"buffer_load_dwordx4 {vr(V4_B+4*(n%NB4),4)}, v{V_L16}, {sr(S_WS,4)}, s{S_T+4} offen offset:{(ks%4)*1024} sc1", f"B4_{n}")


def p4_first_loads(g, n):
    poll_check(g, 2, "POLL3A", S_A2 + 2)
    g.stamp("f3")
    for i in range(n):
        p4_load(g, i)


def p4_res_init(g):
    for ti in range(2):
        a = V4_ACC + 16 * ti
        unpack_bf16(g, a, V_HK + 4 * ti, 4)
        for r in range(8, 16):
            g(f"v_mov_b32 v{a+r}, 0")


def p4_main(g, nloaded, sig):
    o = g.opts
    PFN = o.get("pf4", 12)
    for n in range(nloaded, PFN):
        p4_load(g, n)
    g.lwait_all()
    g.stamp("p4pre")
    for n in range(56):
        ti, ks = n // 28, n % 28
        if n in (7, 14, 21, 28, 35, 42, 49):
            g.stamp(f"p4n{n}")
        if n == o.get("sig3b", 4):
            sig()
        if n == 8:
            g("s_barrier")
        if n + PFN == 28 - 3:
            poll_issue(g, 3, "POLL3")
        if n + PFN == 28:
            poll_check(g, 3, "POLL3", S_A2 + 2)
            g.stamp("f3b")
        g.vwait(f"B4_{n}")
        if ti == 0:
            g.lwait(f"A4_{ks}")
        for ia in range(2):
            a = V4_ACC + 16 * (2 * ia + ti)
            c = "0" if (ks == 0 and ia == 1) else vr(a, 16)
            g(f"v_mfma_f32_32x32x16_bf16 {vr(a,16)}, {ar(8*ks+4*ia,4)}, {vr(V4_B+4*(n%NB4),4)}, {c}")
            if ia == 0 and n + PFN < 56:
                p4_load(g, n + PFN)
            if ia == 1 and n < 12:
                x = 16 + n
                emit_items(g, w2_pick_items(g, x, *W2_PARK[x]))
            if 31 <= n < 37 and ia == 1:
                emit_items(g, p4_red_items(0)[n - 31:n - 30])
    g.stamp("p4mfma")
    g("s_nop 7\ns_nop 2")
    emit_items(g, p4_red_items(1))
    g.lwait_all()
    g("s_barrier")
    tmp = 32
    for i in range(3):
        for q in range(4):
            g.ds(f"ds_read_b128 {vr(tmp+16*i+4*q,4)}, v{V_RED+3} offset:{i*4096+q*1024}", f"RR{i}")
    g(f"s_mov_b32 s{S_T}, 32768")
    for i in range(3):
        g.lwait(f"RR{i}")
        for ti in range(2):
            for d in range(4):
                a = V4_ACC + 16 * ti + 2 * d
                g(f"v_pk_add_f32 {vr(a,2)}, {vr(a,2)}, {vr(tmp+16*i+8*ti+2*d,2)}")
    for ti in range(2):
        for d in range(4):
            a = V4_ACC + 16 * ti + 2 * d
            g(f"v_cvt_pk_bf16_f32 v{128+4*ti+d}, v{a}, v{a+1}")
    fl = " " + o.get("outfl", "nt")
    g.vm(f"buffer_store_dwordx4 {vr(128,4)}, v{V4_AD+7}, {sr(S_OUT,4)}, 0 offen{fl}", "OUT")
    g.vm(f"buffer_store_dwordx4 {vr(132,4)}, v{V4_AD+7}, {sr(S_OUT,4)}, s{S_T} offen{fl}", "OUT")


def p4_red_items(ti):
    out = []
    for i, (ia, r0) in enumerate([(0, 8), (1, 0), (1, 8)]):
        a = V4_ACC + 16 * (2 * ia + ti) + r0
        for q in range(2):
            out.append(("ds", f"ds_write_b128 v{V_RED+i}, {vr(a+4*q,4)} offset:{(2*ti+q)*1024}", "RW"))
    return out


def write_stamps(g):
    if not g.stamps:
        return
    g(f"""
    s_waitcnt lgkmcnt(0) vmcnt(0)
    s_lshl_b32 s{S_T}, s2, 2
    s_add_u32 s{S_T}, s{S_T}, s{S_WAVE}
    s_lshl_b32 s{S_T}, s{S_T}, 6
    s_add_u32 s{S_T}, s{S_T}, {WS_STAMP}
    v_mov_b32 v2, 0
    """)
    for i in range(g.nst):
        g(f"v_mov_b32 v3, s{S_STAMP+2*i}")
        g(f"buffer_store_dword v3, v2, {sr(S_WS,4)}, s{S_T} offen offset:{i*4}")
    g(f"v_mov_b32 v3, s{S_FAST}")
    g(f"buffer_store_dword v3, v2, {sr(S_WS,4)}, s{S_T} offen offset:60")


def build(stamps=False, opts=None):
    g = G(stamps, opts)
    o = g.opts
    n_a = o.get("n_a", 6)
    n_b = o.get("n_b", 2)
    n_c = o.get("n_c", 6)
    n_d = o.get("n_d", 2)
    prologue(g)
    code_prefetch(g, o.get("codesz", 28672))
    p1_setup(g)
    g("s_waitcnt lgkmcnt(0)")
    g.srd(S_WQKV, 54, 55, 1572864)
    g(f"s_mov_b32 s{S_DBG}, s60\ns_mov_b32 s{S_DBG+1}, s61")
    g.srd(S_WS, 62, 63, WS_SIZE)
    g.srd(S_WO, 66, 67, 524288)
    g.srd(S_X, 52, 53, 2097152)
    p1_setup_offsets(g)
    g.stamp("args")
    emit_items(g, p1_srow_items() + p1_dma_w(0))
    if o.get("r3", 1):
        emit_items(g, [touch_res3(g, S_WQKV, 12)])
    g.stamp("i2")
    nonce_publish(g)
    dfr = setup_deferred(g)
    emit_items(g, dfr[:16])
    if o.get("tlb", 0):
        lab = g.lab("tlb")
        g(f"""
        v_lshlrev_b32 v{g.T}, 21, v{V_L}
        s_lshl_b32 s{S_T}, s2, 10
        s_mov_b64 exec, 1
        s_cmp_lg_u32 s{S_WAVE}, 0
        s_cbranch_scc1 {lab}_1
        buffer_load_dword v3, v2, {sr(S_W1,4)}, s{S_T} offen
        buffer_load_dword v3, v2, {sr(S_WO,4)}, s{S_T} offen
        s_branch {lab}_e
        {lab}_1:
        s_cmp_lg_u32 s{S_WAVE}, 1
        s_cbranch_scc1 {lab}_2
        buffer_load_dword v3, v2, {sr(S_W3,4)}, s{S_T} offen
        buffer_load_dword v3, v2, {sr(S_W2,4)}, s{S_T} offen
        s_branch {lab}_e
        {lab}_2:
        s_cmp_lg_u32 s{S_WAVE}, 2
        s_cbranch_scc1 {lab}_3
        buffer_load_dword v3, v2, {sr(S_OUT,4)}, s{S_T} offen
        s_branch {lab}_e
        {lab}_3:
        s_mov_b64 exec, 0x7f
        s_add_u32 s{S_T}, s{S_T}, 0x1c0000
        buffer_load_dword v3, v{g.T}, {sr(S_WS,4)}, s{S_T} offen sc1
        {lab}_e:
        s_mov_b64 exec, -1
        """)
    setup_rest(g)
    emit_items(g, dfr[16:])
    g.stamp("setup")
    emit_items(g, p1_dma_x(0) + p1_dma_w(1))
    g.stamp("issued")
    if o.get("nstat", -1) < 0:
        p1_stats_compute(g)
        nonce_poll_issue(g)
    assert n_a <= NSLOT
    for u in range(3):
        g.bg += w13_dma_items(u)
    p1_gemm(g)
    assert not g.bg
    g("s_barrier")
    for u in range(3, n_a):
        g.bg += w13_dma_items(u)
    p1_attention(g)
    g.tick(100)
    g.T = 16
    g.stamp("attn")
    u0 = n_a
    assert n_a + n_b <= NSLOT
    for u in range(u0, u0 + n_b):
        emit_items(g, w13_dma_items(u))
    p2_read_a(g)
    w13_stage_setup(g)
    signal(g, 0, ["OST"])
    g.stamp("p1done")
    p2_pre(g)
    poll_issue(g, 0, "POLL1")
    for u in range(n_a):
        emit_items(g, w13_pick_items(g, u))
    g.lwait_all()
    g("s_barrier")
    poll_check(g, 0, "POLL1", 6)
    g.stamp("f1")
    u0 += n_b
    assert n_b + n_c + n_d <= NSLOT
    for u in range(u0, u0 + n_c):
        g.bg += w13_dma_items(u)
    p2_main(g)
    assert not g.bg
    u0 += n_c
    for u in range(u0, u0 + n_d):
        emit_items(g, w13_dma_items(u))
    npre = u0 + n_d
    for u in range(n_a, u0):
        emit_items(g, w13_pick_items(g, u))
    signal(g, 1, ["HST"])
    g.stamp("p2done")
    p3_pre(g)
    poll_issue(g, 1, "POLL2")
    g.lwait("HKW")
    g("s_barrier")
    hk_exchange_read(g)
    for u in range(u0, npre):
        emit_items(g, w13_pick_items(g, u))
    p34_pre(g)
    g.lwait_all()
    g("s_barrier")
    g(f"s_cmp_ge_u32 s{S_M}, 14\ns_cbranch_scc1 L_idle3")
    poll_check(g, 1, "POLL2", 6)
    g.stamp("f2")
    emit_items(g, p3_h_items(0) + p3_h_items(1))
    p3_main(g, npre)
    nf = o.get("nf4", 8)
    p4_first_loads(g, nf)
    emit_items(g, p3_epi_sched(TORD[3]))
    p3_hh_store(g, TORD[3])
    g.stamp("p3done")
    g("L_p4:")
    p4_res_init(g)
    p4_main(g, nf, lambda: signal(g, 3, ["HHST1", "HHST3"]))
    g.stamp("end")
    write_stamps(g)
    g("L_done:\ns_endpgm")
    g("L_idle3:")
    g.vq = []
    g.lq = []
    if o.get("idlepf", 1):
        g(f"""
        s_and_b32 s{S_T}, s{S_G}, 1
        s_lshl_b32 s{S_T}, s{S_T}, 1
        s_and_b32 s{S_T+1}, s{S_M}, 1
        s_add_u32 s{S_T}, s{S_T}, s{S_T+1}
        s_mul_i32 s{S_T}, s{S_T}, {448*1024}
        s_lshl_b32 s{S_T+1}, s{S_WAVE}, 13
        s_add_u32 s{S_T}, s{S_T}, s{S_T+1}
        s_min_u32 s{S_T+1}, s{S_XCD}, 6
        s_lshl_b32 s{S_T+1}, s{S_T+1}, 16
        s_add_u32 s{S_T+1}, s{S_T+1}, s{S_T}
        buffer_load_dword v3, v2, {sr(S_W2,4)}, s{S_T+1} offen
        s_add_u32 s{S_T+1}, s{S_T+1}, 32768
        buffer_load_dword v3, v2, {sr(S_W2,4)}, s{S_T+1} offen
        """)
        for j in [0, 8, 1, 9, 2, 3, 10, 4, 5, 11, 6, 7, 12, 13]:
            g(f"s_add_u32 s{S_T+1}, s{S_T}, {j*32768}")
            g(f"buffer_load_dword v3, v2, {sr(S_W2,4)}, s{S_T+1} offen")
    for ks in range(16):
        emit_items(g, w2_dma_items(ks, S_LB, ks * 2048))
    for ks in range(16):
        emit_items(g, w2_pick_items(g, ks, V4_AD + 2, ks * 2048))
    g.lwait_all()
    for ks in range(16, 28):
        r, off = W2_PARK[ks]
        emit_items(g, w2_dma_items(ks, S_LB if r == V4_AD + 2 else S_LB + 1, off))
    poll_issue(g, 2, "POLL3A")
    st = g.stamps
    g.stamps = False
    p4_first_loads(g, nf)
    g.stamps = st
    g.vwait_all()
    g("s_branch L_p4")
    for c in g.cold:
        g(c)
    return g


if __name__ == "__main__":
    out = sys.argv[1] if len(sys.argv) > 1 else "k.s"
    stamps = "--stamps" in sys.argv
    if "--cyc" in sys.argv:
        stamps = "cyc"
    opts = {}
    if "--slow" in sys.argv:
        opts["slow"] = True
    for a in sys.argv:
        if a.startswith("--st="):
            opts["stsel"] = a[5:].split(",")
        if a.startswith("--o:"):
            k, v = a[4:].split("=")
            opts[k] = int(v) if v.lstrip("-").isdigit() else v
    g = build(stamps, opts)
    emit_file(out, [g.k], single=True)
    print("stamps:", g.nst, g.stnames, "lines:", len(g.k.lines))
```

```python
import sys
import struct
from asmlib import *

KNAME = "sequential_preLN__sliding_local_dilated__glu_gated_swiglu__prompt_kernel"

WS_O = 0x000000
WS_H = 0x000000
WS_HH = 0x400000
WS_ST = 0xB00000
WS_S1 = 0xB80000
WS_FL = 0xC00000
WS_STAMP = 0xD00000
WS_SIZE = 0xE00000
SPIN_MAX = 400000
LOG2E = 1.4426950408889634

S_NONCE = 3
S_IDXW = 4
S_FLO = 5
S_X, S_WQKV, S_WO, S_W1, S_W3, S_W2, S_OUT, S_WS = 8, 12, 16, 20, 24, 28, 32, 36
S_DBG = 40
S_WAVE = 42
S_XCD = 43
S_FAST = 44
S_G = 45
S_M = 46
S_TB = 47
S_C8 = 48
S_T = 49
S_ONES = 56
S_XOFF = 57
S_WOFF = 61
S_SW = 65
S_EXM = 66
S_LB = 68
S_C = 70
S_FLB = 71
S_STAMP = 72
S_KO = 66
S_A = 57
S_A2 = 12
S_K2 = 65
S_W2O = 67


def f2h(x):
    return "0x%08x" % struct.unpack("<I", struct.pack("<f", x))[0]


def vr(a, n):
    return f"v[{a}:{a+n-1}]"


def ar(a, n):
    return f"a[{a}:{a+n-1}]"


def sr(a, n):
    return f"s[{a}:{a+n-1}]"


class G:
    def __init__(self, stamps=False, opts=None):
        self.k = Kernel(KNAME, 256, 256, 160 * 1024, nvgpr=256, nagpr=256)
        self.vq = []
        self.lq = []
        self.stamps = stamps
        self.nst = 0
        self.stnames = []
        self.opts = opts or {}
        self.nlab = 0
        self.bg = []
        self.cold = []
        self.T = 212

    def __call__(self, s):
        self.k(s)

    def lab(self, base):
        self.nlab += 1
        return f"L_{base}_{self.nlab}"

    def tick(self, n=1):
        if getattr(self, "skip", 0) > 0:
            self.skip -= 1
            return
        for _ in range(n):
            if self.bg:
                emit_items(self, [self.bg.pop(0)])

    def vm(self, ins, tag):
        self.k(ins)
        self.vq.append(tag)

    def store(self, ins, tag):
        a = self.lab("slow")
        self.k(f"s_cmp_eq_u32 s{S_FAST}, 0\ns_cbranch_scc1 {a}")
        for x in ins:
            self.k(x)
        self.k(f"{a}_j:")
        self.cold.append(f"{a}:\n" + "\n".join(x + " sc1" for x in ins) + f"\ns_branch {a}_j")
        self.vq += [tag] * len(ins)

    def vwait(self, *tags):
        last = -1
        for i, t in enumerate(self.vq):
            if t in tags:
                last = i
        if last < 0:
            return
        n = len(self.vq) - 1 - last
        if n > 63:
            n = 63
            last = len(self.vq) - 1 - 63
        self.k(f"s_waitcnt vmcnt({n})")
        self.vq = self.vq[last + 1:]

    def vwait_all(self):
        self.k("s_waitcnt vmcnt(0)")
        self.vq = []

    def ds(self, ins, tag):
        self.k(ins)
        self.lq.append(tag)

    def lwait(self, *tags):
        last = -1
        for i, t in enumerate(self.lq):
            if t in tags:
                last = i
        if last < 0:
            return
        n = len(self.lq) - 1 - last
        if n > 15:
            n = 15
            last = len(self.lq) - 1 - 15
        self.k(f"s_waitcnt lgkmcnt({n})")
        self.lq = self.lq[last + 1:]

    def lwait_all(self):
        self.k("s_waitcnt lgkmcnt(0)")
        self.lq = []

    def stamp(self, name):
        if not self.stamps:
            return
        sel = self.opts.get("stsel")
        if sel is not None and name not in sel:
            return
        r = S_STAMP + 2 * self.nst
        assert r + 1 <= 101, "too many stamps"
        self.k(f"{'s_memtime' if self.stamps == 'cyc' and self.nst > 0 else 's_memrealtime'} s[{r}:{r+1}]")
        self.nst += 1
        self.stnames.append(name)

    def srd(self, s, lo, hi, size):
        self(f"s_mov_b32 s{s}, s{lo}\ns_and_b32 s{s+1}, s{hi}, 0xffff\ns_mov_b32 s{s+2}, {size}\ns_mov_b32 s{s+3}, 0x20000")


def emit_items(g, items):
    for kind, ins, tag in items:
        if kind == "ds":
            g.ds(ins, tag)
        elif kind == "vm":
            g.vm(ins, tag)
        elif kind == "fn":
            ins()
        else:
            g(ins)


def sched(g, mf, slots):
    for i, x in enumerate(mf):
        g(x)
        emit_items(g, slots.get(i, []))


def spread(slots, items, lo, hi):
    n = hi - lo
    for j, it in enumerate(items):
        slots.setdefault(lo + j * n // len(items), []).append(it)


V_L = 1
V_TR = 224
V_D128 = 226
V_L16 = 227
V_RED = 228
V_XO = 232
V3_WD = 233
V3_TR = 234
V3_SW = 235
V3_HB = 236
V_GA = 237
V_OS = 238
V_L4 = 239
V_XRES = 240
V_HK = 248
V_XD = 4
V_WD = 9
V_XR = 10
V_WR = 14
V_MK = 16
V_ACC = 36
V_AF = 96
V_BF = 120
V_NM2 = 160
V_SR = 160
V_NM = 200
V_NA = 210
V_S1A = 220
V_ONE2 = 222

L_X = 0
L_W = 61440
L_MISC = 159744
L_WO = 45056


def prologue(g):
    g.stamp("start")
    g(f"""
    s_cmp_ge_u32 s2, 256
    s_cbranch_scc1 L_done
    s_load_dwordx4 s[52:55], s[0:1], 0
    s_load_dwordx4 s[60:63], s[0:1], 64
    s_load_dwordx2 s[66:67], s[0:1], 16
    s_load_dwordx4 s[{S_STAMP+20}:{S_STAMP+23}], s[0:1], 32
    s_load_dwordx4 s[{S_STAMP+24}:{S_STAMP+27}], s[0:1], 48
    v_lshrrev_b32 v2, 6, v0
    v_and_b32 v1, 63, v0
    s_and_b32 s{S_XCD}, s2, 7
    v_readfirstlane_b32 s{S_WAVE}, v2
    s_lshr_b32 s{S_T+1}, s2, 3
    s_lshr_b32 s{S_T}, s{S_T+1}, 4
    s_lshl_b32 s{S_G}, s{S_XCD}, 1
    s_add_u32 s{S_G}, s{S_G}, s{S_T}
    s_and_b32 s{S_M}, s{S_T+1}, 15
    s_lshl_b32 s{S_IDXW}, s{S_T+1}, 2
    s_add_u32 s{S_IDXW}, s{S_IDXW}, s{S_WAVE}
    s_lshr_b32 s{S_T}, s{S_M}, 3
    s_lshl_b32 s{S_TB}, s{S_G}, 1
    s_add_u32 s{S_TB}, s{S_TB}, s{S_T}
    s_and_b32 s{S_C8}, s{S_M}, 7
    """)


def code_prefetch(g, nbytes):
    g(f"""
    s_getpc_b64 s[6:7]
    v_lshlrev_b32 v2, 7, v{V_L}
    s_lshl_b32 s{S_T}, s{S_IDXW}, 8
    v_add_u32 v4, s{S_T}, v2
    v_min_u32 v4, {nbytes}, v4
    s_mov_b64 exec, 3
    """)
    g.vm("global_load_dword v3, v4, s[6:7]", "PF")
    g("s_mov_b64 exec, -1")
    g("s_memrealtime s[6:7]")


def p1_setup(g):
    l = V_L
    t = g.T
    g(f"""
    v_lshrrev_b32 v{t+2}, 3, v{l}
    v_bfe_u32 v{t+3}, v{l}, 4, 1
    s_and_b32 s{S_T}, s{S_WAVE}, 1
    s_lshl_b32 s{S_T}, s{S_T}, 1
    v_or_b32 v{t+3}, s{S_T}, v{t+3}
    v_lshlrev_b32 v{t+3}, 1, v{t+3}
    v_and_b32 v{t+4}, 7, v{l}
    v_xor_b32 v{t+3}, v{t+3}, v{t+4}
    s_lshl_b32 s{S_T}, s{S_WAVE}, 3
    v_add_u32 v{t+2}, s{S_T}, v{t+2}
    v_mul_u32_u24 v{t+2}, 3072, v{t+2}
    v_lshl_add_u32 v{t+2}, v{t+3}, 4, v{t+2}
    s_lshl_b32 s{S_T}, s{S_C8}, 7
    v_add_u32 v{V_WD}, s{S_T}, v{t+2}
    s_lshl_b32 s{S_LB}, s{S_WAVE}, 10
    s_mul_i32 s{S_LB+1}, s{S_WAVE}, 3072
    v_lshrrev_b32 v{t}, 4, v0                 ; p = tid>>4
    v_and_b32 v{t+1}, 15, v{l}
    v_xor_b32 v{t+1}, v{t+1}, v{t}
    v_lshlrev_b32 v{t+1}, 4, v{t+1}
    s_lshl_b32 s{S_T+1}, s{S_TB}, 16          ; T0*1024
    v_add_u32 v{t+1}, s{S_T+1}, v{t+1}
    v_lshl_add_u32 v{V_XD+1}, v{t}, 11, v{t+1}
    s_lshr_b32 s{S_T}, s{S_WAVE}, 1           ; p>>3
    s_mul_i32 s{S_T}, s{S_T}, {17*1024}
    s_add_u32 s{S_T}, s{S_T}, {15*1024}
    v_subrev_u32 v{V_XD}, s{S_T}, v{V_XD+1}   ; 2p - 16(p>>3) - 15 - (p>>3)
    v_lshlrev_b32 v{V_L16}, 4, v{l}
    v_min_u32 v{V_SR+17}, 9, v{t}
    s_mul_i32 s{S_T}, s{S_C8}, 10
    v_add_u32 v{V_SR+17}, s{S_T}, v{V_SR+17}  ; e = delta + 16
    s_sub_u32 s{S_T}, s{S_T+1}, {16*1024}
    v_and_b32 v{t+2}, 0xf0, v{V_L16}
    v_lshl_add_u32 v{t+2}, v{V_SR+17}, 10, v{t+2}
    v_add_u32 v{V_SR+16}, s{S_T}, v{t+2}
    """)


def p1_setup_offsets(g):
    g(f"""
    s_cmp_eq_u32 s{S_WAVE}, 0
    s_cselect_b32 s{S_EXM}, 0xffff0000, -1
    s_mov_b32 s{S_EXM+1}, -1
    s_and_b32 s{S_T}, s{S_XCD}, 3
    s_lshr_b32 s{S_T+2}, s{S_XCD}, 2
    s_mul_i32 s{S_SW}, s{S_T+2}, {64*3072}
    """)
    for q in range(4):
        g(f"""
        s_add_u32 s{S_T+1}, s{S_T}, {q}
        s_and_b32 s{S_T+1}, s{S_T+1}, 3
        s_lshl_b32 s{S_XOFF+q}, s{S_T+1}, 8
        s_mul_i32 s{S_WOFF+q}, s{S_T+1}, {128*3072}
        """)


def p1_srow_items():
    return [("vm", f"buffer_load_dwordx4 {vr(V_SR+4*i,4)}, v{V_SR+16}, {sr(S_X,4)}, 0 offen offset:{256*i}", "SROW") for i in range(4)]


def nonce_publish(g):
    lab = g.lab("nolead")
    t = g.T
    g(f"""
    s_lshl_b32 s{S_T}, s{S_G}, 2
    v_mov_b32 v{V_NA}, s{S_T}
    s_or_b32 s{S_T+1}, s{S_M}, s{S_WAVE}
    s_cmp_lg_u32 s{S_T+1}, 0
    s_cbranch_scc1 {lab}
    s_or_b32 s{S_T+1}, s6, 1
    v_mov_b32 v{t+7}, s{S_T+1}
    s_mov_b64 exec, 1
    global_store_dword v{V_NA}, v{t+7}, s[{S_DBG}:{S_DBG+1}] sc1
    s_mov_b64 exec, -1
    {lab}:
    """)


def nonce_poll_issue(g):
    g.vm(f"global_load_dword v{V_NA+1}, v{V_NA}, s[{S_DBG}:{S_DBG+1}] sc1", "NONCE")


def nonce_check(g):
    lp = g.lab("nl")
    g.vwait("NONCE")
    g(f"""
    v_readfirstlane_b32 s{S_NONCE}, v{V_NA+1}
    s_mov_b32 s{S_T+6}, 0
    s_cmp_eq_u32 s{S_NONCE}, 0
    s_cbranch_scc1 {lp}
    {lp}_ok:
    """)
    g.cold.append(f"""{lp}:
    global_load_dword v{V_NA+1}, v{V_NA}, s[{S_DBG}:{S_DBG+1}] sc1
    s_add_u32 s{S_T+6}, s{S_T+6}, 1
    s_waitcnt vmcnt(0)
    v_readfirstlane_b32 s{S_NONCE}, v{V_NA+1}
    s_cmp_gt_u32 s{S_T+6}, {SPIN_MAX}
    s_cbranch_scc1 {lp}_ok
    s_cmp_eq_u32 s{S_NONCE}, 0
    s_cbranch_scc1 {lp}
    s_branch {lp}_ok""")


def p1_stats_addr(g):
    e = V_SR + 17
    b = V_SR + 18
    g(f"""
    v_lshrrev_b32 v{b}, 1, v{e}
    v_and_b32 v{b+1}, 1, v{e}
    v_lshl_add_u32 v{b+2}, v{b+1}, 5, v{b}
    v_add_u32 v{b+2}, 8, v{b+2}
    v_xor_b32 v{b+1}, 1, v{b+1}
    v_lshl_add_u32 v{b}, v{b+1}, 3, v{b}
    v_cmp_gt_u32 vcc, 16, v{e}
    s_nop 1
    v_cndmask_b32 v{e}, v{b+2}, v{b}, vcc
    v_lshlrev_b32 v{e}, 3, v{e}
    """)


def p1_stats_compute(g):
    R = V_SR
    a = R + 18
    g.vwait("SROW")
    for i in range(2):
        g(f"v_dot2_f32_bf16 v{a+2*i}, v{R+i}, s{S_ONES}, 0")
        g(f"v_dot2_f32_bf16 v{a+2*i+1}, v{R+i}, v{R+i}, 0")
    for d in range(2, 16):
        i = d & 1
        g(f"v_dot2c_f32_bf16 v{a+2*i}, s{S_ONES}, v{R+d}")
        g(f"v_dot2c_f32_bf16 v{a+2*i+1}, v{R+d}, v{R+d}")
    g(f"""
    s_lshl_b32 s{S_T+2}, s{S_TB}, 10
    s_add_u32 s{S_T+2}, s{S_T+2}, {WS_S1}
    s_nop 0
    v_pk_add_f32 {vr(a,2)}, {vr(a,2)}, {vr(a+2,2)}
    s_nop 1
    """)
    for sh in (8, 4, 2, 1):
        g(f"v_add_f32_dpp v{a}, v{a}, v{a} row_ror:{sh} row_mask:0xf bank_mask:0xf")
        g(f"v_add_f32_dpp v{a+1}, v{a+1}, v{a+1} row_ror:{sh} row_mask:0xf bank_mask:0xf")
        g("s_nop 0")
    g(f"""
    v_mul_f32 v{a+2}, {f2h(-1.0/512)}, v{a}
    v_mul_f32 v{a+3}, {f2h(1.0/512)}, v{a+1}
    v_fma_f32 v{a+3}, -v{a+2}, v{a+2}, v{a+3}
    v_max_f32 v{a+3}, 0, v{a+3}
    v_add_f32 v{a+3}, {f2h(1e-5)}, v{a+3}
    v_rsq_f32 v{a+3}, v{a+3}
    s_mov_b32 exec_lo, 0x00010001
    s_mov_b32 exec_hi, 0x00010001
    """)
    assert a % 2 == 0
    g.vm(f"buffer_store_dwordx2 {vr(a+2,2)}, v{R+17}, {sr(S_WS,4)}, s{S_T+2} offen sc1", "S1ST")
    g("s_mov_b64 exec, -1")


def p1_started(g):
    lab = g.lab("nostart")
    t = g.T
    g(f"""
    s_cmp_lg_u32 s{S_WAVE}, 0
    s_cbranch_scc1 {lab}
    s_getreg_b32 s{S_T+4}, hwreg(HW_REG_XCC_ID)
    s_and_b32 s{S_T+4}, s{S_T+4}, 15
    s_lshl_b32 s{S_T+5}, s{S_M}, 3
    s_add_u32 s{S_T+5}, s{S_T+5}, s{S_FLB}
    v_mov_b32 v{t+2}, {7*4096}
    v_mov_b32 v{t}, s{S_NONCE}
    v_mov_b32 v{t+1}, s{S_T+4}
    s_mov_b64 exec, 1
    buffer_store_dwordx2 {vr(t,2)}, v{t+2}, {sr(S_WS,4)}, s{S_T+5} offen sc1
    s_mov_b64 exec, -1
    {lab}:
    """)


def setup_rest(g):
    l = V_L
    t = g.T
    a = S_STAMP + 20
    g(f"""
    s_mov_b32 s{S_ONES}, 0x3f803f80
    s_lshl_b32 s{S_FLB}, s{S_G}, 8
    s_add_u32 s{S_FLB}, s{S_FLB}, {WS_FL}
    s_lshl_b32 s{S_T}, s{S_M}, 4
    s_lshl_b32 s{S_T+1}, s{S_WAVE}, 2
    s_add_u32 s{S_FLO}, s{S_T}, s{S_T+1}
    s_add_u32 s{S_FLO}, s{S_FLO}, s{S_FLB}
    v_lshlrev_b32 v{V_L4}, 2, v{l}
    v_lshrrev_b32 v{t}, 4, v{l}            ; g
    v_and_b32 v{t+1}, 15, v{l}             ; r
    v_xor_b32 v{t+2}, v{t}, v{t+1}
    s_lshr_b32 s{S_T+2}, s{S_XCD}, 2
    s_lshl_b32 s{S_T+2}, s{S_T+2}, 3
    v_xor_b32 v{t+2}, s{S_T+2}, v{t+2}
    v_lshlrev_b32 v{t+3}, 8, v{t+1}
    """)
    for ks in range(4):
        g(f"""
        v_xor_b32 v{t+4}, {4*ks}, v{t+2}
        v_lshl_add_u32 v{V_XR+ks}, v{t+4}, 4, v{t+3}
        """)
    g(f"""
    v_mul_u32_u24 v{t+2}, 3072, v{t}
    v_bfe_u32 v{t+3}, v{l}, 2, 2
    v_lshl_add_u32 v{t+2}, v{t+3}, 7, v{t+2}
    v_bfe_u32 v{t+3}, v{l}, 3, 2
    v_xor_b32 v{t+3}, s{S_WAVE}, v{t+3}
    v_lshl_add_u32 v{t+2}, v{t+3}, 5, v{t+2}
    v_and_b32 v{t+3}, 3, v{l}
    v_lshl_add_u32 v{t+2}, v{t+3}, 3, v{t+2}
    v_add_u32 v{V_WR}, {L_W}, v{t+2}
    v_add_u32 v{V_WR+1}, {L_W+49152}, v{t+2}
    """)
    lab = g.lab("noones")
    g(f"""
    v_mov_b32 v{t+4}, s{S_ONES}
    v_mov_b32 v{t+5}, s{S_ONES}
    v_mov_b32 v{t+6}, s{S_ONES}
    v_mov_b32 v{t+7}, s{S_ONES}
    v_mov_b32 v{V_ONE2}, s{S_ONES}
    v_mov_b32 v{V_ONE2+1}, s{S_ONES}
    v_min_u32 v{t+2}, 2, v{t}
    v_mul_u32_u24 v{t+2}, 20480, v{t+2}
    v_lshl_add_u32 v{t+2}, v{t+1}, 4, v{t+2}
    s_cmp_lg_u32 s{S_WAVE}, 0
    s_cbranch_scc1 {lab}
    ds_write_b128 v{t+2}, {vr(t+4,4)} offset:{L_X}
    {lab}:
    v_lshlrev_b32 v{V_S1A}, 3, v{t+1}          ; r*8
    v_lshlrev_b32 v{V_S1A+1}, 5, v{t}          ; g*32
    """)


class Rec:
    def __init__(self, g):
        self.g = g
        self.items = []
        self.T = g.T

    def __call__(self, s):
        self.items.append(("v", s, None))

    def lab(self, b):
        return self.g.lab(b)

    def srd(self, s, lo, hi, size):
        self(f"s_mov_b32 s{s}, s{lo}\ns_and_b32 s{s+1}, s{hi}, 0xffff\ns_mov_b32 s{s+2}, {size}\ns_mov_b32 s{s+3}, 0x20000")


def setup_deferred(g0):
    g = Rec(g0)
    l = V_L
    t = 184
    a = S_STAMP + 20
    g.srd(S_W1, a, a + 1, 1835008)
    g.srd(S_W3, a + 2, a + 3, 1835008)
    g.srd(S_W2, a + 4, a + 5, 1835008)
    g.srd(S_OUT, a + 6, a + 7, 2097152)
    g(f"""
    v_lshrrev_b32 v{t}, 4, v{l}
    v_and_b32 v{t+1}, 15, v{l}
    """)
    M = V_MK
    big = f2h(-1e30)
    g(f"""
    v_lshlrev_b32 v{t+2}, 2, v{t}
    v_sub_u32 v{t+3}, v{t+2}, v{t+1}           ; d0 = 4g - q (signed)
    s_cmp_eq_u32 s{S_TB}, 0
    s_cselect_b32 s0, {big}, 0
    s_mov_b32 s1, {big}
    v_mov_b32 v{t+5}, s1
    v_mov_b32 v{t+6}, s0
    v_mov_b32 v{M+16}, 0
    v_mov_b32 v{M+17}, 0
    """)
    for r in range(4):
        g(f"""
        v_add_u32 v{t+4}, {r+7}, v{t+3}
        v_cmp_gt_u32 vcc, 8, v{t+4}
        v_mov_b32 v{t+7}, {hex(0xffff << (16*(r&1)))}
        s_nop 0
        v_cndmask_b32 v{M+r}, v{t+5}, 0, vcc
        v_cndmask_b32 v{t+7}, 0, v{t+7}, vcc
        v_or_b32 v{M+16+r//2}, v{M+16+r//2}, v{t+7}
        v_add_u32 v{t+4}, {r}, v{t+3}
        v_cmp_lt_i32 vcc, 8, v{t+4}                ; d >= 9
        s_nop 1
        v_cndmask_b32 v{M+4+r}, v{t+5}, 0, vcc
        v_cndmask_b32 v{M+8+r}, v{t+5}, v{t+6}, vcc
        v_cmp_lt_i32 vcc, 0, v{t+4}                ; d >= 1
        v_cmp_gt_u32 s[6:7], 2, v{t}   ; c <= 7  <=> g < 2
        s_and_b64 vcc, vcc, s[6:7]
        s_nop 1
        v_cndmask_b32 v{M+12+r}, v{t+5}, v{t+6}, vcc
        """)
    g(f"""
    v_not_b32 v{M+18}, v{M+16}
    v_not_b32 v{M+19}, v{M+17}
    """)
    g(f"""
    s_lshl_b32 s0, s{S_TB}, 16
    s_lshl_b32 s1, s{S_C8}, 12
    s_add_u32 s0, s0, s1
    s_lshl_b32 s1, s{S_WAVE}, 10
    s_add_u32 s0, s0, s1
    s_add_u32 s0, s0, {WS_O}
    v_lshrrev_b32 v{t+2}, 5, v{l}
    v_lshlrev_b32 v{t+2}, 9, v{t+2}
    v_lshl_add_u32 v{t+2}, v{t+1}, 5, v{t+2}
    v_and_b32 v{t+3}, 1, v{t}
    v_lshl_add_u32 v{t+2}, v{t+3}, 4, v{t+2}
    v_add_u32 v{V_OS}, s0, v{t+2}
    """)
    g(f"""
    v_lshrrev_b32 v{t+2}, 3, v{l}
    v_lshlrev_b32 v{t+2}, 10, v{t+2}
    v_bfe_u32 v{t+3}, v{l}, 4, 1
    v_lshlrev_b32 v{t+3}, 2, v{t+3}
    v_and_b32 v{t+4}, 7, v{l}
    v_xor_b32 v{t+3}, v{t+3}, v{t+4}
    v_lshl_add_u32 v{t+2}, v{t+3}, 4, v{t+2}
    s_lshl_b32 s0, s{S_C8}, 7
    v_add_u32 v{V_D128}, s0, v{t+2}
    """)
    lab = g.lab("w13ok")
    g(f"""
    v_lshrrev_b32 v{t+2}, 2, v{l}
    v_mul_u32_u24 v{t+2}, 3584, v{t+2}
    v_and_b32 v{t+3}, 3, v{l}
    v_lshl_add_u32 v{t+2}, v{t+3}, 4, v{t+2}
    s_lshl_b32 s0, s{S_M}, 8
    s_lshl_b32 s1, s{S_WAVE}, 6
    s_add_u32 s0, s0, s1
    s_cmp_lt_u32 s{S_M}, 14
    s_cselect_b32 s0, s0, 0x40000000
    v_add_u32 v{V3_WD}, s0, v{t+2}
    """)
    g(f"""
    v_bfe_u32 v{t+3}, v{l}, 4, 1
    v_lshlrev_b32 v{t+2}, 5, v{t+3}
    v_and_b32 v{t+3}, 1, v{l}
    v_lshl_add_u32 v{t+2}, v{t+3}, 4, v{t+2}
    v_bfe_u32 v{t+3}, v{l}, 1, 1
    v_lshl_add_u32 v{t+2}, v{t+3}, 3, v{t+2}  ; (G&1)*32 + (c&1)*16 + (c>>1)*8
    v_lshrrev_b32 v{t+4}, 5, v{l}
    v_lshlrev_b32 v{t+4}, 3, v{t+4}
    v_bfe_u32 v{t+3}, v{l}, 2, 2
    v_add_u32 v{t+4}, v{t+4}, v{t+3}          ; 8h + r
    v_lshl_add_u32 v{t+5}, v{t+4}, 7, v{t+2}
    v_lshl_add_u32 v{t+6}, v{t+4}, 6, v{t+2}
    v_bfe_u32 v{t+3}, v{l}, 3, 1
    s_lshr_b32 s0, s{S_WAVE}, 1
    v_xor_b32 v{t+3}, s0, v{t+3}
    v_lshl_add_u32 v{V_TR}, v{t+3}, 6, v{t+5}
    v_xor_b32 v{V_TR+1}, 64, v{V_TR}
    s_lshl_b32 s0, s{S_WAVE}, 10
    s_add_u32 s0, s0, {L_MISC}
    v_add_u32 v{V3_TR}, s0, v{t+6}
    v_add_u32 v{V3_SW}, s0, v{V_L16}
    v_add_u32 v{V3_HB}, 65536, v{V_L16}
    """)
    g(f"""
    v_lshrrev_b32 v{t+2}, 3, v{l}
    v_lshlrev_b32 v{t+2}, 10, v{t+2}
    v_bfe_u32 v{t+3}, v{l}, 4, 1
    v_lshlrev_b32 v{t+3}, 1, v{t+3}
    v_and_b32 v{t+4}, 7, v{l}
    v_xor_b32 v{t+3}, v{t+3}, v{t+4}
    v_lshl_add_u32 v{t+2}, v{t+3}, 4, v{t+2}
    s_lshl_b32 s0, s{S_C8}, 7
    v_add_u32 v{V_RED}, s0, v{t+2}
    v_xor_b32 v{V_RED+1}, 64, v{V_RED}
    v_lshlrev_b32 v{t+2}, 10, v{t}
    v_bfe_u32 v{t+3}, v{l}, 2, 2
    v_lshl_add_u32 v{t+2}, v{t+3}, 7, v{t+2}
    v_bfe_u32 v{t+3}, v{l}, 3, 2
    v_lshl_add_u32 v{t+2}, v{t+3}, 5, v{t+2}
    v_and_b32 v{t+3}, 3, v{l}
    v_lshl_add_u32 v{t+2}, v{t+3}, 3, v{t+2}
    v_add_u32 v{V_RED+2}, {L_WO}, v{t+2}
    s_and_b32 s0, s{S_WAVE}, 1
    s_lshl_b32 s0, s0, 8
    v_lshlrev_b32 v{t+2}, 4, v{t+1}
    v_add_u32 v{t+2}, s0, v{t+2}
    v_lshl_add_u32 v{V_GA}, v{t}, 9, v{t+2}
    v_and_b32 v{t+3}, 1, v{t}
    v_lshl_add_u32 v{t+2}, v{t+3}, 10, v{t+2}
    v_lshrrev_b32 v{t+3}, 1, v{t}
    v_lshl_add_u32 v{V_RED+3}, v{t+3}, 9, v{t+2}
    s_lshl_b32 s0, s{S_TB}, 16
    s_lshl_b32 s1, s{S_WAVE}, 14
    s_add_u32 s0, s0, s1
    s_lshl_b32 s1, s{S_C8}, 7
    s_add_u32 s0, s0, s1
    v_lshlrev_b32 v{t+2}, 10, v{t+1}
    v_lshl_add_u32 v{t+2}, v{t}, 3, v{t+2}
    v_add_u32 v{V_XO}, s0, v{t+2}
    """)
    out = []
    for _, txt, _ in g.items:
        lines = [x.strip() for x in txt.split("\n") if x.strip() and not x.strip().startswith(";")]
        i = 0
        while i < len(lines):
            if lines[i].startswith("s_cmp"):
                out.append(("v", lines[i] + "\n" + lines[i + 1], None))
                i += 2
            else:
                out.append(("v", lines[i], None))
                i += 1
    return out


def touch(srd, nlines, pre, va="v2", off=0):
    o = f" offset:{off}" if off else ""
    return ("vm", f"""{pre}
    s_mov_b64 exec, {hex((1 << nlines) - 1)}
    buffer_load_dword v3, {va}, {sr(srd,4)}, s{S_T+3} offen{o}
    s_mov_b64 exec, -1""", "PF")


def touch_w13(i):
    pre = f"""s_add_u32 s{S_T+3}, s{S_XCD}, {i//2}
    s_and_b32 s{S_T+3}, s{S_T+3}, 7
    s_mul_i32 s{S_T+3}, s{S_T+3}, {64*3584}
    s_mul_i32 s{S_T+2}, s{S_IDXW}, 1792
    s_add_u32 s{S_T+3}, s{S_T+3}, s{S_T+2}"""
    return touch(S_W1 if i % 2 == 0 else S_W3, 14, pre)


def touch_res3(g, srd, nlines):
    t = g.T + 7
    return touch(srd, nlines, f"v_lshlrev_b32 v{t}, 10, v{V_L}\ns_mul_i32 s{S_T+3}, s{S_IDXW}, {nlines*1024}", f"v{t}", 384)


def p1_dma_x(q):
    slot = q % 3
    out = []
    rowoff = [0, 0, 32 * 1024, 1024, 33 * 1024]
    for i in range(5):
        pre = f"s_add_u32 m0, s{S_LB}, {L_X + slot*20480 + i*4096}\n"
        if i == 0:
            pre += f"s_mov_b64 exec, s[{S_EXM}:{S_EXM+1}]\n"
            ins = pre + f"buffer_load_dwordx4 v{V_XD}, {sr(S_X,4)}, s{S_XOFF+q} offen lds\ns_mov_b64 exec, -1"
        else:
            pre += f"s_add_u32 s{S_T+1}, s{S_XOFF+q}, {rowoff[i]}\n"
            ins = pre + f"buffer_load_dwordx4 v{V_XD+1}, {sr(S_X,4)}, s{S_T+1} offen lds"
        out.append(("vm", ins, f"X{q}"))
    return out


def p1_dma_w(s):
    slot = s % 4
    q = s // 2
    out = []
    for hi in range(2):
        if s & 1:
            pre = f"s_sub_u32 s{S_T}, {64*3072 + hi*32*3072}, s{S_SW}\n"
        else:
            pre = f"s_add_u32 s{S_T}, {hi*32*3072}, s{S_SW}\n"
        pre += f"s_add_u32 m0, s{S_LB+1}, {L_W + slot*24576 + hi*4*3072}\n"
        pre += f"s_add_u32 s{S_T}, s{S_T}, s{S_WOFF+q}\n"
        for p in range(3):
            out.append(("vm", (pre if p == 0 else "") + f"buffer_load_dwordx4 v{V_WD}, {sr(S_WQKV,4)}, s{S_T} offen offset:{p*1024} lds", f"W{s}"))
    return out


def p1_read_frags(n):
    s = n // 2
    kk = n % 2
    buf = n & 1
    q = n // 4
    ks = n % 4
    slot = s % 4
    wa = V_WR + (slot // 2)
    ins = []
    for p in range(3):
        for half in range(2):
            d = V_AF + buf * 12 + p * 4 + half * 2
            off = (slot % 2) * 24576 + kk * 12288 + p * 1024 + half * 512
            ins.append(f"ds_read_b64_tr_b16 {vr(d,2)}, v{wa} offset:{off}")
    for t in range(5):
        d = V_BF + buf * 20 + t * 4
        ins.append(f"ds_read_b128 {vr(d,4)}, v{V_XR+ks} offset:{L_X + (q%3)*20480 + t*4096}")
    return ins


def acc1(p, t):
    return V_ACC + (p * 5 + t) * 4


def p1_mfmas(n):
    buf = n & 1
    ins = []
    for t in range(5):
        for p in range(3):
            a = acc1(p, t)
            c = "0" if n == 0 else vr(a, 4)
            w = vr(V_AF + buf * 12 + p * 4, 4)
            x = vr(V_BF + buf * 20 + t * 4, 4)
            if p == 2:
                w, x = x, w
            ins.append(f"v_mfma_f32_16x16x32_bf16 {vr(a,4)}, {w}, {x}, {c}")
    return ins


def poll_started_issue(g):
    t = g.T
    g(f"s_add_u32 s{S_T+4}, s{S_FLB}, {7*4096}")
    g.vm(f"buffer_load_dwordx2 {vr(t,2)}, v{V_S1A}, {sr(S_WS,4)}, s{S_T+4} offen sc1", "POLL0")


def poll_started_check(g):
    t = g.T
    lp = g.lab("pst")
    g.vwait("POLL0")
    g(f"""
    v_cmp_ne_u32 vcc, s{S_NONCE}, v{t}
    s_mov_b32 s{S_T+6}, 0
    s_cbranch_vccnz {lp}
    {lp}_ok:
    v_readfirstlane_b32 s{S_T+4}, v{t+1}
    s_lshl_b32 s{S_T+5}, s{S_TB}, 10
    s_add_u32 s{S_T+5}, s{S_T+5}, {WS_S1}
    v_cmp_ne_u32 vcc, s{S_T+4}, v{t+1}
    s_nop 0
    s_cmp_eq_u64 vcc, 0
    s_cselect_b32 s{S_FAST}, {0 if g.opts.get('slow') else 1}, 0
    """)
    g.cold.append(f"""{lp}:
    buffer_load_dwordx2 {vr(t,2)}, v{V_S1A}, {sr(S_WS,4)}, s{S_T+4} offen sc1
    s_add_u32 s{S_T+6}, s{S_T+6}, 1
    s_cmp_gt_u32 s{S_T+6}, {SPIN_MAX}
    s_waitcnt vmcnt(0)
    s_cbranch_scc1 {lp}_ok
    v_cmp_ne_u32 vcc, s{S_NONCE}, v{t}
    s_cbranch_vccnz {lp}
    s_branch {lp}_ok""")


def nm_dma_items():
    return [("vm", f"""s_lshl_b32 s{S_T+4}, s{S_WAVE}, 10
    s_add_u32 m0, s{S_T+4}, {L_MISC}
    s_add_u32 s{S_T+4}, s{S_T+4}, {L_MISC}
    buffer_load_dwordx4 v{V_L16}, {sr(S_WS,4)}, s{S_T+5} offen sc1 lds
    v_add_u32 v{V_S1A}, s{S_T+4}, v{V_S1A}
    v_add_u32 v{V_S1A+1}, s{S_T+4}, v{V_S1A+1}""", "NM")]


def nm_read_items(g):
    out = [("fn", lambda: g.vwait("NM"), None)]
    for tt in range(5):
        out.append(("ds", f"ds_read_b64 {vr(V_NM+2*tt,2)}, v{V_S1A} offset:{tt*128}", "NMR"))
    for tt in range(5):
        for h in range(2):
            out.append(("ds", f"ds_read_b128 {vr(V_NM2+8*tt+4*h,4)}, v{V_S1A+1} offset:{tt*128+16*h}", "NMR"))
    return out


def wo_dma_items():
    out = []
    for i in range(16):
        pre = ""
        if i == 0:
            pre = f"""s_lshl_b32 s{S_LB}, s{S_WAVE}, 14
            s_add_u32 s{S_LB}, s{S_LB}, {L_WO}
            s_lshl_b32 s{S_LB+1}, s{S_WAVE}, 17
            """
        out.append(("vm", pre + f"""s_add_u32 m0, s{S_LB}, {i*1024}
        s_add_u32 s{S_T+1}, s{S_LB+1}, {i*8192}
        buffer_load_dwordx4 v{V_RED+(i&1)}, {sr(S_WO,4)}, s{S_T+1} offen lds""", "WO"))
    return out


def preread_items():
    return [("vm", f"""s_lshl_b32 s{S_T+3}, s{S_TB}, 16
            s_lshl_b32 s{S_T+2}, s{S_C8}, 12
            s_add_u32 s{S_T+3}, s{S_T+3}, s{S_T+2}
            s_lshl_b32 s{S_T+2}, s{S_WAVE}, 10
            s_add_u32 s{S_T+3}, s{S_T+3}, s{S_T+2}
            s_mov_b64 exec, 0xff
            buffer_load_dword v3, v2, {sr(S_WS,4)}, s{S_T+3} offen sc1
            s_add_u32 s{S_T+3}, s{S_T+3}, 32768
            s_mov_b64 exec, -1""", "PF"),
            ("vm", f"""s_mov_b64 exec, 0xff
            buffer_load_dword v3, v2, {sr(S_WS,4)}, s{S_T+3} offen sc1
            s_mov_b64 exec, -1""", "PF"),
            ("vm", f"""s_lshl_b32 s{S_T+3}, s{S_TB}, 13
            s_lshl_b32 s{S_T+2}, s{S_C8}, 8
            s_add_u32 s{S_T+3}, s{S_T+3}, s{S_T+2}
            s_lshl_b32 s{S_T+2}, s{S_WAVE}, 11
            s_add_u32 s{S_T+3}, s{S_T+3}, s{S_T+2}
            s_add_u32 s{S_T+3}, s{S_T+3}, {WS_ST}
            s_mov_b64 exec, 0x3
            buffer_load_dword v3, v2, {sr(S_WS,4)}, s{S_T+3} offen sc1
            s_mov_b64 exec, -1""", "PF"),
            ("vm", f"""s_lshl_b32 s{S_T+2}, s{S_WAVE}, 12
            s_add_u32 s{S_T+3}, s{S_FLB}, s{S_T+2}
            s_mov_b64 exec, 3
            buffer_load_dword v3, v2, {sr(S_WS,4)}, s{S_T+3} offen sc1
            s_add_u32 s{S_T+3}, s{S_T+3}, 16384
            s_mov_b64 exec, -1""", "PF"),
            ("vm", f"""s_cmp_eq_u32 s{S_WAVE}, 3
            s_cselect_b32 s{S_T+2}, 4096, 0
            s_add_u32 s{S_T+3}, s{S_T+3}, s{S_T+2}
            s_mov_b64 exec, 3
            buffer_load_dword v3, v2, {sr(S_WS,4)}, s{S_T+3} offen sc1
            s_mov_b64 exec, -1""", "PF")]


def xres_items():
    return [("vm", f"buffer_load_dwordx2 {vr(V_XRES+2*a,2)}, v{V_XO}, {sr(S_X,4)}, 0 offen offset:{32*a}", "XR") for a in range(4)]


def p1_gemm(g):
    NSTART = g.opts.get('nstart', 3)
    stream = p1_dma_w(2) + p1_dma_x(1) + p1_dma_w(3) + p1_dma_x(2) + p1_dma_w(4) + p1_dma_w(5) + p1_dma_x(3) + p1_dma_w(6) + p1_dma_w(7)
    earliest = {"W4": 1, "W5": 3, "X3": 3, "W6": 5, "W7": 7}
    span = g.opts.get("p1span", 150)
    dpos = {}
    for i, it in enumerate(stream):
        fast = g.opts.get("p1fast", 11)
        pos = i if i < fast else fast + (i - fast) * (span - fast) // (len(stream) - fast)
        pos = max(pos, 15 * earliest.get(it[2], 0))
        dpos.setdefault(pos // 15, []).append((pos % 15, it))
    nlast = max(dpos)
    g.vwait("X0", "W0")
    g.lwait_all()
    g("s_barrier")
    g.stamp("B0")
    for x in p1_read_frags(0):
        g.ds(x, "F0")
    for n in range(16):
        s = n // 2
        mf = p1_mfmas(n)
        if n == g.opts.get("nstat", 1):
            p1_stats_compute(g)
            nonce_poll_issue(g)
        g.lwait(f"F{n}")
        if n % 2 == 1 and n < 15:
            need = [f"W{s+1}"]
            if (s + 1) % 2 == 0:
                need.append(f"X{(s+1)//2}")
            if n == NSTART:
                nonce_check(g)
                need.append("S1ST")
            g.vwait(*need)
            g("s_barrier")
            g.stamp(f"B{s+1}")
            if n == NSTART:
                p1_started(g)
        slots = {}
        if n < 15:
            spread(slots, [("ds", x, f"F{n+1}") for x in p1_read_frags(n + 1)], 0, 11)
        for pos, it in dpos.get(n, []):
            slots.setdefault(pos, []).append(it)
        if n == 6:
            slots.setdefault(14, []).append(touch_res3(g, S_WO, 4))
        t0, tn = g.opts.get("t13s", 2), g.opts.get("t13n", 0)
        if t0 <= n < t0 + tn:
            slots.setdefault(12, []).append(touch_w13(n - t0))
        if n == 9:
            slots.setdefault(1, []).append(("fn", lambda: poll_started_issue(g), None))
        if n == 11:
            slots.setdefault(0, []).append(("fn", lambda: poll_started_check(g), None))
            slots.setdefault(0, []).extend(nm_dma_items())
            spread(slots, xres_items() + preread_items()[(2 if g.opts.get("osc1", 0) else 0):], 1, 15)
        if n == g.opts.get("t13k", 13):
            for i in range(g.opts.get("t13e", 0)):
                slots.setdefault(13, []).append(touch_w13(i))
        if n == 15:
            spread(slots, nm_read_items(g), 0, 12)
        if n == 11:
            slots.setdefault(13, []).append(("v", f"""s_mul_i32 s{S_KO}, s{S_XCD}, {4*16*3584}
            s_mul_i32 s{S_SG}, s{S_WAVE}, 6144
            s_add_u32 s{S_SG}, s{S_SG}, 20480
            s_mul_i32 s{S_SG+1}, s{S_WAVE}, 12288
            s_add_u32 s{S_SG+1}, s{S_SG+1}, 110592
            s_lshl_b32 s{S_SG+2}, s{S_WAVE}, 12""", None))
        if 12 <= n <= g.opts.get("tailend", 15):
            spread(slots, [("fn", lambda: g.tick(), None)] * g.opts.get("tailrate", 2), 1, 13)
        sched(g, mf, slots)
    g.stamp("p1gemm")


def p1_attention(g):
    M = V_MK
    CS = 4
    QP = 96
    KP = 104
    VP = 114
    S = 128
    g("s_nop 4")
    for p in range(2):
        for r in range(4):
            g(f"v_mov_b32_dpp v{CS+p*4+r}, v{acc1(p,0)+r} row_newbcast:0 row_mask:0xf bank_mask:0xf")
    g(f"""
    v_mov_b32 v{CS+8}, v{acc1(2,0)}
    v_mov_b32 v{CS+9}, v{acc1(2,0)}
    s_mov_b32 s{S_C}, {f2h(0.25 * 1.4426950408889634)}
    s_nop 0
    v_permlane16_swap_b32 v{CS+8}, v{CS+9}
    s_nop 0
    v_mov_b32 v{CS+9}, v{CS+8}
    s_nop 1
    v_permlane32_swap_b32 v{CS+8}, v{CS+9}
    """)
    g.lwait("NMR")
    g.stamp("nm")

    def qk_fix(p, tt, dst):
        a = acc1(p, tt)
        nm = V_NM + 2 * tt
        return [[f"v_pk_fma_f32 {vr(a+2*h,2)}, {vr(CS+p*4+2*h,2)}, {vr(nm,2)}, {vr(a+2*h,2)} op_sel:[0,0,0] op_sel_hi:[1,0,1]" for h in range(2)],
                [f"v_pk_mul_f32 {vr(a+2*h,2)}, {vr(a+2*h,2)}, {vr(nm,2)} op_sel:[0,1] op_sel_hi:[1,1]" for h in range(2)],
                [f"v_cvt_pk_bf16_f32 v{dst+h}, v{a+2*h}, v{a+2*h+1}" for h in range(2)]]

    def v_fix(tt, dst):
        a = acc1(2, tt)
        nm = V_NM2 + 8 * tt
        return [[f"v_fmac_f32 v{a+r}, v{nm+2*r}, v{CS+8}" for r in range(4)],
                [f"v_mul_f32 v{a+r}, v{nm+2*r+1}, v{a+r}" for r in range(4)],
                [f"v_cvt_pk_bf16_f32 v{dst+h}, v{a+2*h}, v{a+2*h+1}" for h in range(2)]]

    def pipe(jobs, after=None):
        N = len(jobs)
        for i in range(N + 2):
            for st in range(3):
                j = i - st
                if 0 <= j < N:
                    for x in jobs[j][st]:
                        g(x)
            if i % g.opts.get("attick", 2) == 1 % g.opts.get("attick", 2):
                g.tick()
            if after and i in after:
                after[i]()

    jobs = [qk_fix(1, 0, KP), qk_fix(1, 1, KP + 2), qk_fix(0, 1, QP), qk_fix(1, 2, KP + 4), qk_fix(0, 2, QP + 2),
            qk_fix(1, 3, KP + 6), qk_fix(0, 3, QP + 4), qk_fix(1, 4, KP + 8), qk_fix(0, 4, QP + 6)]
    pipe(jobs)
    g("s_nop 1")
    prev = {1: (0, M + 8), 2: (1, M + 4), 3: (0, M + 12), 4: (3, M + 4)}
    for t in range(1, 5):
        pt, pm = prev[t]
        d = S + 8 * (t - 1)
        g(f"v_mfma_f32_16x16x16_bf16 {vr(d,4)}, {vr(KP+2*pt,2)}, {vr(QP+2*(t-1),2)}, {vr(pm,4)}")
        g(f"v_mfma_f32_16x16x16_bf16 {vr(d+4,4)}, {vr(KP+2*t,2)}, {vr(QP+2*(t-1),2)}, {vr(M,4)}")
    vdst = {0: VP, 1: VP + 2, 2: VP + 4, 3: VP + 8, 4: VP + 10}
    pipe([v_fix(tt, vdst[tt]) for tt in range(5)])
    g(f"v_mov_b32 v{VP+6}, v{VP}\nv_mov_b32 v{VP+7}, v{VP+1}")
    g.stamp("qk")
    g(f"""
    v_mov_b32 v{V2_AD}, v{V_RED+2}
    v_xor_b32 v{V2_AD+1}, 32, v{V_RED+2}
    v_xor_b32 v{V2_AD+2}, 64, v{V_RED+2}
    v_xor_b32 v{V2_AD+3}, 96, v{V_RED+2}
    """)
    pre = []
    if g.opts.get("earlyA", 0):
        assert not any(x[2] == "WO" for x in g.bg)
        g.vwait("WO")
        g("s_barrier")
        for ks in range(8):
            pre += p2_a_items(ks)
    g0 = g

    class GI:
        def __call__(self, s):
            for ln in s.split("\n"):
                if ln.strip():
                    g0(ln)
                    if pre and ln.strip().startswith("v_") and not ln.strip().startswith("v_mfma"):
                        emit_items(g0, [pre.pop(0)])

        def __getattr__(self, k):
            return getattr(g0, k)
    g = GI()
    X = 36
    for t in range(4):
        d = S + 8 * t
        for r in range(4):
            g(f"v_max_f32 v{d+r}, v{d+r}, v{d+4+r}")
    for t in range(4):
        d = S + 8 * t
        g(f"v_max3_f32 v{X+t}, v{d}, v{d+1}, v{d+2}")
    for t in range(4):
        d = S + 8 * t
        g(f"v_max_f32 v{X+t}, v{X+t}, v{d+3}")
    for op in ("v_permlane16_swap_b32", "v_permlane32_swap_b32"):
        for t in range(4):
            g(f"v_mov_b32 v{X+4+t}, v{X+t}")
        g.tick()
        g("s_nop 0")
        for t in range(4):
            g(f"{op} v{X+t}, v{X+4+t}")
        for t in range(4):
            g(f"v_max_f32 v{X+t}, v{X+t}, v{X+4+t}")
    for t in range(4):
        g(f"v_mul_f32 v{X+t}, {f2h(-0.25 * 1.4426950408889634)}, v{X+t}")
    P = 44
    O = 76
    va = {0: VP, 1: VP + 2, 2: VP + 6, 3: VP + 8}
    for t in range(4):
        d = S + 8 * t
        for r in range(4):
            g(f"v_fma_f32 v{d+r}, v{d+r}, s{S_C}, v{X+t}")
    for t in range(5):
        if t < 4:
            d = S + 8 * t
            for r in range(4):
                g(f"v_exp_f32 v{d+r}, v{d+r}")
        if t >= 1:
            d = S + 8 * (t - 1)
            p = P + 8 * (t - 1)
            if t == 4:
                g("s_nop 0")
            g(f"""
            v_cvt_pk_bf16_f32 v{p}, v{d}, v{d+1}
            v_cvt_pk_bf16_f32 v{p+1}, v{d+2}, v{d+3}
            v_and_b32 v{p+2}, v{M+18}, v{p}
            v_and_b32 v{p+3}, v{M+19}, v{p+1}
            v_and_b32 v{p+4}, v{M+16}, v{p}
            v_and_b32 v{p+5}, v{M+17}, v{p+1}
            """)
        g.tick()
        if t >= 2:
            tt = t - 2
            g(f"v_mfma_f32_16x16x16_bf16 {vr(S+8*tt+4,4)}, {vr(V_ONE2,2)}, {vr(P+8*tt,2)}, 0")
            g(f"v_mfma_f32_16x16x32_bf16 {vr(O+4*tt,4)}, {vr(va[tt],4)}, {vr(P+8*tt+2,4)}, 0")
    g("s_nop 0")
    tt = 3
    g(f"v_mfma_f32_16x16x16_bf16 {vr(S+8*tt+4,4)}, {vr(V_ONE2,2)}, {vr(P+8*tt,2)}, 0")
    g(f"v_mfma_f32_16x16x32_bf16 {vr(O+4*tt,4)}, {vr(va[tt],4)}, {vr(P+8*tt+2,4)}, 0")
    g.stamp("sm")
    OP = 96
    pos = {0: OP, 2: OP + 2, 1: OP + 4, 3: OP + 6}
    for tt in (0, 1):
        g(f"v_rcp_f32 v{S+8*tt+4}, v{S+8*tt+4}")
    for tt in (0, 1):
        for h in range(2):
            g(f"v_pk_mul_f32 {vr(O+4*tt+2*h,2)}, {vr(O+4*tt+2*h,2)}, {vr(S+8*tt+4,2)} op_sel:[0,0] op_sel_hi:[1,0]")
    g(f"v_rcp_f32 v{S+8*2+4}, v{S+8*2+4}")
    for tt in (0, 1):
        for h in range(2):
            g(f"v_cvt_pk_bf16_f32 v{pos[tt]+h}, v{O+4*tt+2*h}, v{O+4*tt+2*h+1}")
    g(f"v_rcp_f32 v{S+8*3+4}, v{S+8*3+4}")
    for tt in (2, 3):
        for h in range(2):
            g(f"v_pk_mul_f32 {vr(O+4*tt+2*h,2)}, {vr(O+4*tt+2*h,2)}, {vr(S+8*tt+4,2)} op_sel:[0,0] op_sel_hi:[1,0]")
    for tt in (2, 3):
        for h in range(2):
            g(f"v_cvt_pk_bf16_f32 v{pos[tt]+h}, v{O+4*tt+2*h}, v{O+4*tt+2*h+1}")
    g(f"""
    s_mov_b32 s{S_T}, 32768
    v_permlane16_swap_b32 v{OP}, v{OP+2}
    v_permlane16_swap_b32 v{OP+1}, v{OP+3}
    v_permlane16_swap_b32 v{OP+4}, v{OP+6}
    v_permlane16_swap_b32 v{OP+5}, v{OP+7}
    """)
    if g.opts.get("osc1", 0):
        g.vm(f"buffer_store_dwordx4 {vr(OP,4)}, v{V_OS}, {sr(S_WS,4)}, 0 offen sc1", "OST")
        g.vm(f"buffer_store_dwordx4 {vr(OP+4,4)}, v{V_OS}, {sr(S_WS,4)}, s{S_T} offen sc1", "OST")
    else:
        g.store([f"buffer_store_dwordx4 {vr(OP,4)}, v{V_OS}, {sr(S_WS,4)}, 0 offen",
                 f"buffer_store_dwordx4 {vr(OP+4,4)}, v{V_OS}, {sr(S_WS,4)}, s{S_T} offen"], "OST")


def signal(g, phase, tags):
    t = g.T
    g(f"""
    v_mov_b32 v{t}, {phase*4096}
    v_mov_b32 v{t+1}, s{S_NONCE}
    """)
    g.vwait(*tags)
    g("s_mov_b64 exec, 1")
    g.store([f"buffer_store_dword v{t+1}, v{t}, {sr(S_WS,4)}, s{S_FLO} offen"], "FLAG")
    g("s_mov_b64 exec, -1")


def poll_issue(g, phase, tag, r=0):
    t = g.T + r
    g(f"s_add_u32 s{S_T+2}, s{S_FLB}, {phase*4096}")
    g.vm(f"buffer_load_dword v{t+2}, v{V_L4}, {sr(S_WS,4)}, s{S_T+2} offen sc1", tag)


def poll_check(g, phase, tag, mask, r=0, slp=False):
    t = g.T + r
    lp = g.lab("poll")
    g.vwait(tag)
    g(f"""
    v_cmp_ne_u32 vcc, s{S_NONCE}, v{t+2}
    s_mov_b32 s{S_T+6}, 0
    s_and_b64 vcc, vcc, s[{mask}:{mask+1}]
    s_cbranch_vccnz {lp}
    {lp}_ok:
    """)
    g.cold.append(f"""{lp}:
    {"s_sleep 4" if slp else ""}
    s_add_u32 s{S_T+2}, s{S_FLB}, {phase*4096}
    s_add_u32 s{S_T+6}, s{S_T+6}, 1
    buffer_load_dword v{t+2}, v{V_L4}, {sr(S_WS,4)}, s{S_T+2} offen sc1
    s_cmp_gt_u32 s{S_T+6}, {SPIN_MAX}
    s_waitcnt vmcnt(0)
    s_cbranch_scc1 {lp}_ok
    v_cmp_ne_u32 vcc, s{S_NONCE}, v{t+2}
    s_and_b64 vcc, vcc, s[{mask}:{mask+1}]
    s_cbranch_vccnz {lp}
    s_branch {lp}_ok""")


def w13_load_items(u):
    return [("vm", f"buffer_load_dwordx4 {ar(8*u,4)}, v{V3_WD}, {sr(S_W1,4)}, s{S_KO} offen", f"W13_{u}"),
            ("vm", f"""buffer_load_dwordx4 {ar(8*u+4,4)}, v{V3_WD}, {sr(S_W3,4)}, s{S_KO} offen
            s_add_u32 s{S_KO}, s{S_KO}, {16*3584}
            s_cmp_lt_u32 s{S_KO}, {512*3584}
            s_cselect_b32 s{S_KO}, s{S_KO}, 0""", f"W13_{u}")]


S_SG = 62
NSLOT = 11


def slot_addr(k):
    if k < 3:
        return S_SG, k * 2048, 0
    if k < 9:
        return S_SG + 1, (k - 3) * 2048, 1
    return S_SG + 2, (k - 9) * 2048, 2


def w13_dma_items(u):
    sb, off, _ = slot_addr(u % NSLOT)
    return [("vm", f"""s_add_u32 m0, s{sb}, {off}
            s_nop 0
            buffer_load_dwordx4 v{V3_WD}, {sr(S_W1,4)}, s{S_KO} offen lds""", f"W13_{u}"),
            ("vm", f"""s_add_u32 m0, s{sb}, {off+1024}
            s_nop 0
            buffer_load_dwordx4 v{V3_WD}, {sr(S_W3,4)}, s{S_KO} offen lds
            s_add_u32 s{S_KO}, s{S_KO}, {16*3584}
            s_cmp_lt_u32 s{S_KO}, {512*3584}
            s_cselect_b32 s{S_KO}, s{S_KO}, 0""", f"W13_{u}")]


V_SGA = 24


def w13_stage_setup(g):
    g(f"""
    s_lshl_b32 s{S_T}, s{S_WAVE}, 10
    s_add_u32 s{S_T}, s{S_T}, {L_MISC}
    v_subrev_u32 v{V_SGA+2}, s{S_T}, v{V3_TR}
    v_add_u32 v{V_SGA}, s{S_SG}, v{V_SGA+2}
    v_add_u32 v{V_SGA+1}, s{S_SG+1}, v{V_SGA+2}
    v_add_u32 v{V_SGA+2}, s{S_SG+2}, v{V_SGA+2}
    """)


def w13_pick_items(g, u):
    _, off, r = slot_addr(u % NSLOT)
    out = [("fn", lambda: g.vwait(f"W13_{u}"), None)]
    for m in range(2):
        for half in range(2):
            out.append(("ds", f"ds_read_b64_tr_b16 {ar(8*u+4*m+2*half,2)}, v{V_SGA+r} offset:{off + m*1024 + half*256}", f"A3_{u}"))
    return out


def w13_xpose_items(g, u):
    out = [("fn", lambda: g.vwait(f"W13_{u}"), None)]
    for m in range(2):
        out.append(("ds", f"ds_write_b128 v{V3_SW}, {ar(8*u+4*m,4)}", f"A3_{u}"))
        for half in range(2):
            out.append(("ds", f"ds_read_b64_tr_b16 {ar(8*u+4*m+2*half,2)}, v{V3_TR} offset:{half*256}", f"A3_{u}"))
    return out


V2_B = 32
V2_A = 96
V2_ACC = 240
V2_AD = 28
L_HKX = 159744 - 8192


def unpack_bf16(g, dst, src, n=8):
    for d in range(n):
        g(f"v_lshlrev_b32 v{dst+2*d}, 16, v{src+d}")
        g(f"v_and_b32 v{dst+2*d+1}, 0xffff0000, v{src+d}")


def p2_areg(ks, a, n=4, off=0):
    if ks < 8:
        return ar(128 + (ks * 4 + a) * 4 + off, n)
    return vr(V2_A + ((ks - 8) * 4 + a) * 4 + off, n)


def p2_a_items(ks, ad=None):
    ad = V2_AD if ad is None else ad
    out = []
    for a in range(4):
        for half in range(2):
            out.append(("ds", f"ds_read_b64_tr_b16 {p2_areg(ks, a, 2, 2*half)}, v{ad+a} offset:{ks*4096 + half*512}", f"A2_{ks}"))
    return out


def p2_pre(g):
    A = S_A
    g(f"""
    s_cmp_lt_u32 s{S_M}, 8
    s_cselect_b32 s6, -1, 0
    s_cselect_b32 s7, 0, -1
    s_lshl_b32 s{S_T}, s{S_TB}, 16
    s_lshr_b32 s{S_T+1}, s{S_WAVE}, 1
    s_lshl_b32 s{S_T+1}, s{S_T+1}, 15
    s_add_u32 s{S_T}, s{S_T}, s{S_T+1}
    s_add_u32 s{A}, s{S_T}, {WS_O}
    s_lshl_b32 s{S_T+1}, s{S_C8}, 12
    s_add_u32 s{S_A2}, s{A}, s{S_T+1}
    s_lshl_b32 s{S_A2+1}, s{S_TB}, 13
    s_lshl_b32 s{S_T+1}, s{S_WAVE}, 11
    s_add_u32 s{S_A2+1}, s{S_A2+1}, s{S_T+1}
    s_add_u32 s{S_A2+1}, s{S_A2+1}, {WS_ST}
    s_lshl_b32 s{S_T+1}, s{S_C8}, 8
    s_add_u32 s{S_A2+2}, s{S_A2+1}, s{S_T+1}
    """)
    g.vwait("XR")
    for d in range(7, -1, -1):
        g(f"v_and_b32 v{V2_ACC+2*d+1}, 0xffff0000, v{V_XRES+d}")
        g(f"v_lshlrev_b32 v{V2_ACC+2*d}, 16, v{V_XRES+d}")


def p2_main(g):
    t = g.T
    A = S_A
    def oload(ks):
        if ks % 2 == 0 and ks:
            g(f"s_add_u32 s{A}, s{A}, 4096")
        g.vm(f"buffer_load_dwordx4 {vr(V2_B+4*ks,4)}, v{V_GA}, {sr(S_WS,4)}, s{A} offen offset:{(ks%2)*2048} sc1", f"B2_{ks}")
    PFO = g.opts.get("pfo", 8)
    late = g.opts.get("_late", [])
    for ks in range(PFO):
        oload(ks)
        emit_items(g, late[:4])
        late = late[4:]
    for ks in range(16):
        g.vwait(f"B2_{ks}")
        g.lwait(f"A2_{ks}")
        if ks + PFO < 16:
            oload(ks + PFO)
        for a in range(4):
            acc = V2_ACC + 4 * a
            g(f"v_mfma_f32_16x16x32_bf16 {vr(acc,4)}, {p2_areg(ks, a)}, {vr(V2_B+4*ks,4)}, {vr(acc,4)}")
            emit_items(g, late[:2])
            late = late[2:]
            assert not any(x[2] == f"A2_{ks+1}" for x in late) or a < 3
        if ks >= 16 - PFO:
            g.tick(1 if ks < 14 else 2)
    g.stamp("p2mfma")
    e = 32
    g(f"""
    v_mov_b32 v{e+2}, s{S_NONCE}
    v_mov_b32 v{e+3}, 0
    s_nop 5
    """)
    H = 40
    for d in range(8):
        g(f"v_cvt_pk_bf16_f32 v{H+d}, v{V2_ACC+2*d}, v{V2_ACC+2*d+1}")
    g(f"v_dot2_f32_bf16 v{e}, v{H}, s{S_ONES}, 0")
    g(f"v_dot2_f32_bf16 v{e+1}, v{H}, v{H}, 0")
    g(f"v_dot2_f32_bf16 v{e+4}, v{H+1}, s{S_ONES}, 0")
    g(f"v_dot2_f32_bf16 v{e+5}, v{H+1}, v{H+1}, 0")
    for d in range(2, 8):
        oo = 4 * (d & 1)
        g(f"v_dot2c_f32_bf16 v{e+oo}, s{S_ONES}, v{H+d}")
        g(f"v_dot2c_f32_bf16 v{e+oo+1}, v{H+d}, v{H+d}")

    def xred(x, y):
        for op in ("v_permlane16_swap_b32", "v_permlane32_swap_b32"):
            g(f"""
            v_mov_b32 v{y}, v{x}
            v_mov_b32 v{y+1}, v{x+1}
            s_nop 0
            {op} v{x}, v{y}
            {op} v{x+1}, v{y+1}
            v_pk_add_f32 {vr(x,2)}, {vr(x,2)}, {vr(y,2)}
            """)
    g(f"""
    v_permlane16_swap_b32 v{H}, v{H+2}
    v_permlane16_swap_b32 v{H+1}, v{H+3}
    v_permlane16_swap_b32 v{H+4}, v{H+6}
    v_pk_add_f32 {vr(e,2)}, {vr(e,2)}, {vr(e+4,2)}
    v_permlane16_swap_b32 v{H+5}, v{H+7}
    """)
    xred(e, e + 4)
    g("s_mov_b64 exec, 0xffff")
    g.store([f"buffer_store_dwordx4 {vr(e,4)}, v{V_L16}, {sr(S_WS,4)}, s{S_A2+2} offen"], "SST")
    g("s_mov_b64 exec, -1")
    g.stamp("p2stat")
    U = 48
    unpack_bf16(g, U, H)
    hk_exchange_write(g)
    p34_pre(g, 0)
    lp = g.lab("sg")
    q = 64
    g(f"""
    s_mov_b32 s{S_T+6}, 0
    {lp}:
    buffer_load_dwordx4 {vr(q,4)}, v{V_L16}, {sr(S_WS,4)}, s{S_A2+1} offen sc1
    buffer_load_dwordx4 {vr(q+4,4)}, v{V_L16}, {sr(S_WS,4)}, s{S_A2+1} offen offset:1024 sc1
    s_add_u32 s{S_T+6}, s{S_T+6}, 1
    s_cmp_gt_u32 s{S_T+6}, {SPIN_MAX}
    s_waitcnt vmcnt(0)
    s_cbranch_scc1 {lp}_x
    v_cmp_ne_u32 vcc, s{S_NONCE}, v{q+2}
    v_cmp_ne_u32 s[{S_T+3}:{S_T+4}], s{S_NONCE}, v{q+6}
    s_or_b64 vcc, vcc, s[{S_T+3}:{S_T+4}]
    s_cbranch_vccnz {lp}
    {lp}_x:
    v_pk_add_f32 {vr(q,2)}, {vr(q,2)}, {vr(q+4,2)}
    """)
    g.vq = []
    g.stamp("p2gath")
    emit_items(g, g.opts.get("_picks", []))
    xred(q, q + 2)
    g(f"""
    v_mul_f32 v{q+4}, {f2h(-1.0/512)}, v{q}
    v_mul_f32 v{q+5}, {f2h(1.0/512)}, v{q+1}
    v_fma_f32 v{q+5}, -v{q+4}, v{q+4}, v{q+5}
    v_max_f32 v{q+5}, 0, v{q+5}
    v_add_f32 v{q+5}, {f2h(1e-5)}, v{q+5}
    v_rsq_f32 v{q+5}, v{q+5}
    s_nop 0
    v_mul_f32 v{q+5}, {f2h(LOG2E)}, v{q+5}
    v_mul_f32 v{q+4}, v{q+4}, v{q+5}
    """)
    for d in range(8):
        a = U + 2 * d
        g(f"v_pk_fma_f32 {vr(a,2)}, {vr(a,2)}, {vr(q+4,2)}, {vr(q+4,2)} op_sel:[0,1,0] op_sel_hi:[1,1,0]")
    for d in range(8):
        g(f"v_cvt_pk_bf16_f32 v{q+8+d}, v{U+2*d}, v{U+2*d+1}")
    g.store([f"buffer_store_dwordx4 {vr(q+8,4)}, v{V_RED+3}, {sr(S_WS,4)}, s{S_A2} offen",
             f"buffer_store_dwordx4 {vr(q+12,4)}, v{V_RED+3}, {sr(S_WS,4)}, s{S_A2} offen offset:2048"], "HST")


def hk_exchange_write(g):
    t = g.T
    g(f"""
    s_cmp_lt_u32 s{S_WAVE}, 2
    s_mov_b32 s{S_T}, {L_MISC}
    s_cselect_b32 s{S_T}, 16384, s{S_T}
    v_add_u32 v{t+4}, s{S_T}, v{V_RED+3}
    """)
    g.ds(f"ds_write_b128 v{t+4}, {vr(40,4)}", "HKW")
    g.ds(f"ds_write_b128 v{t+4}, {vr(44,4)} offset:2048", "HKW")


def hk_exchange_read(g):
    t = g.T
    g(f"""
    s_lshl_b32 s{S_T}, s{S_WAVE}, 10
    v_add_u32 v{t+4}, s{S_T}, v{V_L16}
    """)
    g.ds(f"ds_read_b128 {vr(V_HK,4)}, v{t+4} offset:16384", "HKR")
    g.ds(f"ds_read_b128 {vr(V_HK+4,4)}, v{V3_SW}", "HKR")


V3_ACC = 32
V3_B = 160
V3_E = 192
K1 = 16
TORD = [0, 2, 1, 3]
HPH = [2, 3, 6, 8]
L_SP = 131072


S_A3 = 58


def p3_pre(g):
    A = S_A3
    g(f"""
    s_cmp_lt_u32 s{S_M}, 7
    s_cselect_b32 s{S_T+2}, 2, 0
    s_lshl_b32 s{A}, s{S_G}, 17
    s_lshl_b32 s{A+1}, s{S_WAVE}, 15
    s_xor_b32 s{S_T}, s{S_WAVE}, s{S_T+2}
    s_lshl_b32 s{S_T}, s{S_T}, 15
    s_add_u32 s{A}, s{A}, s{S_T}
    s_add_u32 s{A}, s{A}, {WS_H}
    s_lshl_b32 s{S_K2}, s{S_XCD}, 12
    s_mov_b32 s{S_C}, {f2h(LOG2E*LOG2E)}
    s_mul_i32 s{A+2}, s{S_G}, {4*114688}
    s_lshl_b32 s{S_T+1}, s{S_M}, 13
    s_add_u32 s{A+2}, s{A+2}, s{S_T+1}
    s_lshl_b32 s{S_T+1}, s{S_WAVE}, 11
    s_add_u32 s{A+2}, s{A+2}, s{S_T+1}
    s_add_u32 s{A+2}, s{A+2}, {WS_HH}
    s_mul_i32 s{S_T}, s{S_T+2}, 114688
    s_sub_u32 s0, s{A+2}, s{S_T}
    s_add_u32 s{A+2}, s{A+2}, s{S_T}
    """)


def p3_h_items(b):
    A = S_A3
    out = []
    for i in range(4):
        pre = f"s_add_u32 m0, s{A+1}, {b*4096}\n"
        post = ""
        pre += f"s_add_u32 s{A+3}, s{A}, s{S_K2}\n" if i == 0 else "s_nop 0\n"
        if i == 3:
            post = f"\ns_add_u32 s{S_K2}, s{S_K2}, 4096\ns_and_b32 s{S_K2}, s{S_K2}, 32767"
        out.append(("vm", pre + f"buffer_load_dwordx4 v{V_L16}, {sr(S_WS,4)}, s{A+3} offen offset:{i*1024} sc1 lds" + post, f"H{b}"))
    return out


def p3_epi_sched(j):
    A = V3_ACC + 32 * j
    e = V3_E
    o = V3_E + 16
    st = [
        lambda r: f"v_exp_f32 v{e+r}, -v{A+r}",
        lambda r: f"v_mul_f32 v{A+r}, v{A+r}, v{A+16+r}",
        lambda r: f"v_fma_f32 v{e+r}, v{e+r}, s{S_C}, s{S_C}",
        lambda r: f"v_rcp_f32 v{e+r}, v{e+r}",
        lambda r: f"v_mul_f32 v{A+r}, v{A+r}, v{e+r}",
        lambda r: (f"v_cvt_pk_bf16_f32 v{o+r//2}, v{A+r-1}, v{A+r}" if r % 2 else None),
    ]
    skew = [0, 0, 1, 2, 3, 4]
    out = []
    for step in range(16 + 5):
        for si, f in enumerate(st):
            r = step - skew[si]
            if 0 <= r < 16:
                x = f(r)
                if x:
                    out.append(("v", x, None))
    return out


def p3_hh_store(g, j):
    o = V3_E + 16
    g(f"s_add_u32 s{S_T}, s{S_A3+2 if j < 2 else 0}, {j*114688}")
    g.vm(f"buffer_store_dwordx4 {vr(o,4)}, v{V_L16}, {sr(S_WS,4)}, s{S_T} offen sc1", f"HHST{j}")
    g.vm(f"buffer_store_dwordx4 {vr(o+4,4)}, v{V_L16}, {sr(S_WS,4)}, s{S_T} offen offset:1024 sc1", f"HHST{j}")


def hh_touch(g, j):
    g.vwait(f"HHST{j}")
    emit_items(g, [touch(S_WS, 16, f"s_add_u32 s{S_T+3}, s{S_A+2}, {j*114688}")])


V4_AD = 4
V4_B = 32
NB4 = 16
V4_ACC = 96
V4_R = 240
S_X4 = 8
S_M4 = 16


def p34_pre(g, part):
    d = V4_AD
    l = V_L
    if part == 1:
        g(f"""
        s_mov_b64 s[{S_A2+2}:{S_A2+3}], 0x7f
        s_lshl_b64 s[{S_A2+2}:{S_A2+3}], s[{S_A2+2}:{S_A2+3}], s1
        s_mov_b32 s{S_A2}, -1
        s_mov_b32 s{S_A2+1}, 0x00ffffff
        v_add_u32 v{V_RED+3}, s{S_LB}, v{V_L16}
        """)
        return
    g(f"""
    s_lshr_b32 s{S_T+2}, s{S_M}, 3              ; kh
    s_lshl_b32 s{S_T+3}, s{S_T+2}, 2
    s_add_u32 s{S_T+3}, s{S_T+3}, s{S_WAVE}     ; K eighth
    s_mul_i32 s{S_W2O}, s{S_T+3}, {224*1024}
    s_lshl_b32 s{S_LB}, s{S_WAVE}, 15
    s_lshl_b32 s{S_LB+1}, s{S_WAVE}, 13
    s_add_u32 s{S_LB+1}, s{S_LB+1}, {L_SP}
    s_mul_i32 s{S_T+1}, s{S_T+3}, {14*1024}
    s_add_u32 s{S_T+1}, s{S_T+1}, {WS_HH}
    s_mul_i32 s{S_T}, s{S_TB}, {2*114688}
    s_add_u32 s{S_X4+1}, s{S_T}, s{S_T+1}
    s_add_u32 s{S_X4+3}, s{S_X4+1}, 114688
    s_xor_b32 s{S_T+4}, s{S_TB}, 1
    s_mul_i32 s{S_T}, s{S_T+4}, {2*114688}
    s_add_u32 s{S_X4}, s{S_T}, s{S_T+1}
    s_add_u32 s{S_X4+2}, s{S_X4}, 114688
    s_mul_i32 s1, s{S_T+3}, 7
    s_xor_b32 s{S_T}, s{S_M}, 8
    s_lshl_b32 s{S_T}, s{S_T}, 2
    s_add_u32 s{S_T}, s{S_T}, s{S_WAVE}
    s_mov_b64 s[{S_M4}:{S_M4+1}], 1
    s_lshl_b64 s[{S_M4}:{S_M4+1}], s[{S_M4}:{S_M4+1}], s{S_T}
    s_lshl_b32 s{S_T}, s{S_C8}, 12
    s_lshl_b32 s{S_T+1}, s{S_WAVE}, 10
    s_add_u32 s{S_T}, s{S_T}, s{S_T+1}
    s_add_u32 s{S_T}, s{S_T}, {WS_O}
    s_lshl_b32 s{S_T+1}, s{S_T+4}, 16
    s_add_u32 s{S_M4+2}, s{S_T}, s{S_T+1}
    s_lshl_b32 s{S_T+1}, s{S_TB}, 16
    s_add_u32 s{S_M4+3}, s{S_T}, s{S_T+1}
    s_and_b32 s{S_T}, s{S_WAVE}, 1
    s_lshl_b32 s{S_T}, s{S_T}, 5
    v_xor_b32 v{d}, s{S_T}, v{V_TR}
    v_xor_b32 v{d+1}, 64, v{d}
    v_add_u32 v{d+2}, s{S_LB}, v{d}
    v_add_u32 v{d+3}, s{S_LB}, v{d+1}
    v_add_u32 v{d+4}, s{S_LB+1}, v{d}
    v_add_u32 v{d+5}, s{S_LB+1}, v{d+1}
    s_sub_u32 s{S_T}, s{S_LB+1}, s{S_SG}
    v_add_u32 v{d+6}, s{S_T}, v{V_SGA}          ; ring (w13 image)
    s_lshl_b32 s{S_T}, s{S_TB}, 16
    s_lshl_b32 s{S_T+1}, s{S_C8}, 7
    s_add_u32 s{S_T}, s{S_T}, s{S_T+1}
    s_lshl_b32 s{S_T+1}, s{S_WAVE}, 5
    s_add_u32 s{S_T}, s{S_T}, s{S_T+1}
    v_and_b32 v{d+7}, 31, v{l}
    v_lshlrev_b32 v{d+7}, 10, v{d+7}
    v_lshrrev_b32 v{d+8}, 5, v{l}
    v_lshl_add_u32 v{d+7}, v{d+8}, 4, v{d+7}
    v_add_u32 v{d+7}, s{S_T}, v{d+7}
    v_add_u32 v{d+8}, 7168, v{V_D128}           ; second half of a w2 kstep: +8192 global, offset:1024 adds the rest
    v_add_u32 v{d+9}, 32768, v{V_L16}
    s_sub_u32 s{S_T}, s{S_LB}, s{S_SG}
    v_add_u32 v{d+10}, s{S_T}, v{V_SGA}         ; own tile region (w13 image)
    """)
    for i in range(1, 4):
        g(f"""
        s_xor_b32 s{S_T}, s{S_WAVE}, {i%4}
        s_lshl_b32 s{S_T}, s{S_T}, 15
        s_add_u32 s{S_T}, s{S_T}, {((i-1) if i < 4 else 0)*2048}
        v_add_u32 v{V_RED+i-1}, s{S_T}, v{V_L16}
        """)


def w2_dma_items(ks, sb, off):
    return [("vm", f"""s_add_u32 m0, s{sb}, {off}
            s_add_u32 s{S_T+5}, s{S_W2O}, {ks*16*1024}
            buffer_load_dwordx4 v{V_D128}, {sr(S_W2,4)}, s{S_T+5} offen lds""", f"W2_{ks}"),
            ("vm", f"buffer_load_dwordx4 v{V4_AD+8}, {sr(S_W2,4)}, s{S_T+5} offen offset:1024 lds", f"W2_{ks}")]


def w2_pick_items(g, ks, base, off):
    out = [("fn", lambda: g.vwait(f"W2_{ks}"), None)]
    for ia in range(2):
        for half in range(2):
            out.append(("ds", f"ds_read_b64_tr_b16 {ar(8*ks+4*ia+2*half,2)}, v{base+ia} offset:{off + half*512}", f"A4_{ks}"))
    return out


def w13_ring_dma(u, off, sb=S_LB + 1):
    return [("vm", f"""s_add_u32 m0, s{sb}, {off}
            s_nop 0
            buffer_load_dwordx4 v{V3_WD}, {sr(S_W1,4)}, s{S_KO} offen lds
            s_add_u32 m0, s{sb}, {off+1024}""", f"W13_{u}"),
            ("vm", f"""buffer_load_dwordx4 v{V3_WD}, {sr(S_W3,4)}, s{S_KO} offen lds
            s_add_u32 s{S_KO}, s{S_KO}, {16*3584}
            s_cmp_lt_u32 s{S_KO}, {512*3584}
            s_cselect_b32 s{S_KO}, s{S_KO}, 0""", f"W13_{u}")]


def w13_ring_pick(g, u, off, va=V4_AD + 6):
    out = [("fn", lambda: g.vwait(f"W13_{u}"), None)]
    for m in range(2):
        for half in range(2):
            out.append(("ds", f"ds_read_b64_tr_b16 {ar(8*u+4*m+2*half,2)}, v{va} offset:{off + m*1024 + half*256}", f"A3_{u}"))
    return out


W2_PARK = {}


def p3_main(g, npre):
    o = g.opts
    K1 = o.get("k1", 16)
    N1 = 4 * K1
    L2 = 32 - K1
    seq = [(j, u) for u in range(K1) for j in range(4)] + [(j, u) for j in TORD for u in range(K1, 32)]
    PF = 4

    def bread(n):
        j, u = seq[n]
        a = V_L16 if j < 2 else V3_HB
        return ("ds", f"ds_read_b128 {vr(V3_B+4*(n%8),4)}, v{a} offset:{(j%2)*32768 + u*1024}", f"B3_{n}")

    extra = {}

    def put(step, items, half=1):
        extra.setdefault(2 * step + half, []).extend(items)

    LAG13 = o.get("lag13", 18)
    LAG2 = o.get("lag2", 18)
    per = o.get("per3", 2)
    busy = set()

    def need13(u):
        return (4 * u if u < K1 else N1 + (u - K1)) - 2
    nb1 = K1 // 4
    hst = {}
    nxt = 1000
    for b in range(7, 1, -1):
        dl = (16 * b if b < nb1 else N1) - PF
        st = max(0, min(dl - o.get("hlead", 14), nxt - o.get("hgap", 8)))
        hst[b] = st
        nxt = st
    prev = -4
    for b in range(2, 8):
        hst[b] = max(hst[b], prev + 4)
        prev = hst[b]
        for i in range(2 * per):
            busy.add(hst[b] + i)
    slots = [[0, 1000, False, k * 2048, None] for k in range(4)]
    for b in range(2, 8):
        for k in range(2):
            slots.append([0, hst[b], True, b * 4096 + k * 2048, None])
    for b in range(0, nb1 - 1):
        fr = (16 * (b + 2) if b + 2 < nb1 else N1) - PF + 1
        for k in range(2):
            slots.append([fr, 1000, True, b * 4096 + k * 2048, None])
    q13 = list(range(npre, 32))
    q2 = list(range(14))
    st = 0
    last2 = -100
    per13 = o.get("per13", 2)
    last13 = -100
    while q13 or q2:
        assert st < 126, ("ring overflow", q13, q2)
        if any((st + i) in busy for i in range(per)):
            st += 1
            continue
        ok13 = q13 and st >= last13 + per13
        ok2 = q2 and st >= o.get("w2s", 60) and st + LAG2 >= 4 * q2[0] + 5 and st >= last2 + o.get("w2d", 3)
        if ok13:
            kind, x = "w13", q13[0]
            pk = min(st + LAG13, need13(x))
        elif ok2:
            kind, x = "w2", q2[0]
            pk = min(st + LAG2, 127)
        else:
            st += 1
            continue
        fr = [sl for sl in slots if sl[0] <= st and pk + 2 <= sl[1]]
        if not fr:
            st += 1
            continue
        sl = min(fr, key=lambda z: (z[1], z[0]))
        off = sl[3]
        pre = []
        if sl[4]:
            pre = [("fn", lambda tg=sl[4]: g.lwait(tg), None)]
        for i in range(per):
            busy.add(st + i)
        if kind == "w13":
            q13.pop(0)
            last13 = st
            it = w13_ring_dma(x, off, S_LB if sl[2] else S_LB + 1)
            if pk - st < LAG13:
                print("  short lag for unit", x, pk - st)
            assert pk > st, (x, st)
            put(pk, w13_ring_pick(g, x, off, V4_AD + 10 if sl[2] else V4_AD + 6))
            sl[4] = f"A3_{x}"
        else:
            q2.pop(0)
            last2 = st
            it = w2_dma_items(x, S_LB if sl[2] else S_LB + 1, off)
            put(pk, w2_pick_items(g, x, V4_AD + 2 if sl[2] else V4_AD + 4, off))
            sl[4] = f"A4_{x}"
        put(st, pre + it[:1], 0); put(st, it[1:], 1)
        sl[0] = pk + 2
        st += 1
    for b in range(2, 8):
        tags = [sl[4] for sl in slots if sl[2] and sl[1] == hst[b] and sl[3] // 4096 == b and sl[4]]
        pre = [("fn", lambda tags=tags: g.lwait(*tags), None)] if tags else []
        it = p3_h_items(b)
        st = hst[b]
        put(st, pre + it[0:1], 0); put(st, it[1:2], 1); put(st + 1, it[2:3], 0); put(st + 1, it[3:4], 1)
    print("p3 stream ends at step", max(busy))
    for i in range(1, 4):
        ep = p3_epi_sched(TORD[i - 1])
        base = N1 + L2 * i
        span = 2 * L2 - 7
        for k, it in enumerate(ep):
            extra.setdefault(2 * base + 5 + k * span // len(ep), []).append(it)
        put(base + L2 - 1, [("fn", lambda j=TORD[i - 1]: p3_hh_store(g, j), None)], 0)
    sd = min(o.get("sigd", 8), L2 - 2)
    put(N1 + L2 * 2 + sd, [("fn", lambda: signal(g, HPH[0], ["HHST0"]), None)])
    put(N1 + L2 * 3 + sd, [("fn", lambda: signal(g, HPH[1], ["HHST2"]), None)])
    nf = 0
    if o.get("pol0c", 119) < 127:
        put(o.get("pol0i", 113), [("fn", lambda: poll_issue(g, HPH[0], "POLLH0"), None)])
        put(o.get("pol0c", 119), [("fn", lambda: poll_check(g, HPH[0], "POLLH0", S_A2 + 2), None)])
        for i in range(8):
            put(min(127, o.get("pol0c", 119) + 1 + i), [("fn", lambda i=i: p4_load(g, i), None)], 1)
        nf = 8

    g.vwait("H0")
    g.lwait_all()
    g("s_barrier")
    g.stamp("p3start")
    for n in range(PF):
        emit_items(g, [bread(n)])
    for n, (j, u) in enumerate(seq):
        if n + PF < len(seq):
            jj, uu = seq[n + PF]
            if n + PF < N1 and uu % 4 == 0 and jj == 0 and uu > 0:
                g.vwait(f"H{uu//4}")
                g("s_barrier")
            if n + PF == N1:
                g.vwait("H7")
                g("s_barrier")
        g.lwait(f"B3_{n}", f"A3_{u}")
        A = V3_ACC + 32 * j
        for m in range(2):
            a = A + 16 * m
            c = "0" if u == 0 else vr(a, 16)
            g(f"v_mfma_f32_32x32x16_bf16 {vr(a,16)}, {ar(8*u+4*m,4)}, {vr(V3_B+4*(n%8),4)}, {c}")
            if m == 0 and n + PF < len(seq):
                emit_items(g, [bread(n + PF)])
            emit_items(g, extra.get(2 * n + m, []))
        if n == 63:
            g.stamp("p3pass1")
        if n in (7, 15, 23, 31, 39, 47, 55, 71, 79, 87, 95, 103, 111, 119):
            g.stamp(f"p3s{n}")
    g.stamp("p3mfma")
    return nf


def p4_load(g, n):
    sl, ks = n // 14, n % 14
    if ks % 4 == 0:
        g(f"s_add_u32 s{S_T+4}, s{S_X4+sl}, {(ks//4)*4096}")
    g.vm(f"buffer_load_dwordx4 {vr(V4_B+4*(n%NB4),4)}, v{V_L16}, {sr(S_WS,4)}, s{S_T+4} offen offset:{(ks%4)*1024} sc1", f"B4_{n}")


def p4_ship_items(sl):
    out = []
    for i, r0 in enumerate([8, 16, 24]):
        a = V4_ACC + 32 * sl + r0
        for q in range(2):
            out.append(("ds", f"ds_write_b128 v{V_RED+i}, {vr(a+4*q,4)} offset:{sl*6144 + q*1024}", f"RW{sl}"))
    return out


def p4_get_items(g, sl):
    out = [("fn", lambda: (g.lwait(f"RW{sl}"), g("s_barrier")), None)]
    for i in range(6):
        out.append(("ds", f"ds_read_b128 {vr(V4_ACC+32*sl+8+4*i,4)}, v{V_RED+3} offset:{sl*6144 + i*1024}", f"RR{sl}"))
    return out


def padd(d, x, y, pk):
    if pk:
        return [("v", f"v_pk_add_f32 {vr(d,2)}, {vr(x,2)}, {vr(y,2)}", None)]
    return [("v", f"v_add_f32 v{d}, v{x}, v{y}", None), ("v", f"v_add_f32 v{d+1}, v{x+1}, v{y+1}", None)]


def p4_add_items(g, sl, pk=False):
    a = V4_ACC + 32 * sl
    out = [("fn", lambda: g.lwait(f"RR{sl}"), None)]
    for d in range(4):
        out += padd(a + 2 * d, a + 2 * d, a + 8 + 2 * d, pk)
        out += padd(a + 16 + 2 * d, a + 16 + 2 * d, a + 24 + 2 * d, pk)
    for d in range(4):
        out += padd(a + 2 * d, a + 2 * d, a + 16 + 2 * d, pk)
    return out


def p4_send(g, sl):
    a = V4_ACC + 32 * sl
    for d in range(4):
        g(f"v_cvt_pk_bf16_f32 v{a+8+d}, v{a+2*d}, v{a+2*d+1}")
    va = V_L16 if sl == 0 else V4_AD + 9
    g.store([f"buffer_store_dwordx4 {vr(a+8,4)}, v{va}, {sr(S_WS,4)}, s{S_M4+2} offen"], f"XST{sl}")


def p4_recv(g, ti):
    va = V_L16 if ti == 0 else V4_AD + 9
    g.vm(f"buffer_load_dwordx4 {vr(V4_R+4*ti,4)}, v{va}, {sr(S_WS,4)}, s{S_M4+3} offen sc1", f"XLD{ti}")


def p4_extra_items(g, src, dst, pk=False):
    out = []
    for d in range(4):
        out.append(("v", f"v_lshlrev_b32 v{dst+8+2*d}, 16, v{src+d}", None))
        out.append(("v", f"v_and_b32 v{dst+9+2*d}, 0xffff0000, v{src+d}", None))
    for d in range(4):
        out += padd(dst + 2 * d, dst + 2 * d, dst + 8 + 2 * d, pk)
    return out


def p4_out(g, sl):
    a = V4_ACC + 32 * sl
    for d in range(4):
        g(f"v_cvt_pk_bf16_f32 v{a+8+d}, v{a+2*d}, v{a+2*d+1}")
    fl = " " + g.opts.get("outfl", "nt")
    if sl == 1:
        g.vm(f"buffer_store_dwordx4 {vr(a+8,4)}, v{V4_AD+7}, {sr(S_OUT,4)}, 0 offen{fl}", "OUT")
    else:
        g(f"s_mov_b32 s{S_T}, 32768")
        g.vm(f"buffer_store_dwordx4 {vr(a+8,4)}, v{V4_AD+7}, {sr(S_OUT,4)}, s{S_T} offen{fl}", "OUT")


def p4_main(g, nloaded):
    o = g.opts
    PFN = o.get("pf4", 10)
    g.lwait_all()
    g.stamp("p4pre")
    ex = {}

    def put(hs, items, step=1):
        for i, it in enumerate(items):
            ex.setdefault(hs + int(i * step), []).append(it)
    F = lambda f: [("fn", f, None)]
    put(1, F(lambda: signal(g, HPH[2], ["HHST1"])))
    put(2 * o.get("sig3b", 6), F(lambda: signal(g, HPH[3], ["HHST3"])))
    put(2 * 8, F(lambda: g("s_barrier")))
    pol = {1: (-1, 4), 2: (o.get("p2i", 9), o.get("p2c", 18)), 3: (o.get("p3i", 22), o.get("p3c", 32))}
    put(2 * 16, p4_ship_items(0), 1.5)
    put(2 * 22, p4_get_items(g, 0), 0.5)
    put(2 * 25, p4_add_items(g, 0), 0.25)
    put(2 * 28 + 1, F(lambda: p4_send(g, 0)))
    put(2 * 40, F(lambda: signal(g, 4, ["XST0"])))
    put(2 * 30, p4_ship_items(1), 1.5)
    put(2 * 35, p4_get_items(g, 1), 0.5)
    put(2 * 37 + 1, p4_add_items(g, 1), 0.25)
    put(2 * 41, p4_extra_items(g, V_HK, V4_ACC + 32), 0.25)
    put(2 * 46, F(lambda: poll_issue(g, 4, "POLL4")))
    put(2 * 52 + 1, F(lambda: (poll_check(g, 4, "POLL4", S_M4), p4_recv(g, 0))))
    put(2 * 43 + 1, p4_ship_items(2), 1)
    put(2 * 47, p4_get_items(g, 2), 0.25)
    put(2 * 49, p4_add_items(g, 2), 0.2)
    put(2 * 52, F(lambda: p4_send(g, 2)))
    put(2 * 55, F(lambda: signal(g, 5, ["XST2"])))
    nl = nloaded
    for n in range(56):
        sl, ks = n // 14, n % 14
        if n in (7, 14, 21, 28, 35, 42, 49):
            g.stamp(f"p4n{n}")
        for sx, (pi, pc) in pol.items():
            if n == pi:
                poll_issue(g, HPH[sx], f"POLLH{sx}", sx & 1)
            if n == pc:
                poll_check(g, HPH[sx], f"POLLH{sx}", S_A2 if sx == 1 else S_A2 + 2, sx & 1)
        g.vwait(f"B4_{n}")
        for ia in range(2):
            a = V4_ACC + 32 * sl + 16 * ia
            c = "0" if ks == 0 else vr(a, 16)
            g(f"v_mfma_f32_32x32x16_bf16 {vr(a,16)}, {ar(8*ks+4*ia,4)}, {vr(V4_B+4*(n%NB4),4)}, {c}")
            if nl < 56 and nl <= n + PFN and (nl < 14 or n >= pol[nl // 14][1]):
                p4_load(g, nl)
                nl += 1
            emit_items(g, ex.get(2 * n + ia, []))
    g.stamp("p4mfma")
    poll_issue(g, 5, "POLL5")
    R = V4_B
    unpack_bf16(g, R, V_HK + 4, 4)
    g("s_nop 1")
    emit_items(g, p4_ship_items(3))
    poll_check(g, 5, "POLL5", S_M4)
    p4_recv(g, 1)
    emit_items(g, p4_get_items(g, 3))
    emit_items(g, p4_extra_items(g, V4_R, V4_ACC + 32, True))
    p4_out(g, 1)
    emit_items(g, p4_add_items(g, 3, True))
    g.vwait("XLD1")
    emit_items(g, p4_extra_items(g, V4_R + 4, R, True))
    a = V4_ACC + 96
    for d in range(4):
        g(f"v_pk_add_f32 {vr(a+2*d,2)}, {vr(a+2*d,2)}, {vr(R+2*d,2)}")
    p4_out(g, 3)


def write_stamps(g):
    if not g.stamps:
        return
    g(f"""
    s_waitcnt lgkmcnt(0) vmcnt(0)
    s_lshl_b32 s{S_T}, s2, 2
    s_add_u32 s{S_T}, s{S_T}, s{S_WAVE}
    s_lshl_b32 s{S_T}, s{S_T}, 6
    s_add_u32 s{S_T}, s{S_T}, {WS_STAMP}
    v_mov_b32 v2, 0
    """)
    for i in range(g.nst):
        g(f"v_mov_b32 v3, s{S_STAMP+2*i}")
        g(f"buffer_store_dword v3, v2, {sr(S_WS,4)}, s{S_T} offen offset:{i*4}")
    g(f"v_mov_b32 v3, s{S_FAST}")
    g(f"buffer_store_dword v3, v2, {sr(S_WS,4)}, s{S_T} offen offset:60")


def build(stamps=False, opts=None):
    g = G(stamps, opts)
    o = g.opts
    n_a = o.get("n_a", 2)
    n_b = o.get("n_b", 3)
    n_c = o.get("n_c", 5)
    n_d = o.get("n_d", 3)
    prologue(g)
    code_prefetch(g, o.get("codesz", 28672))
    p1_setup(g)
    g("s_waitcnt lgkmcnt(0)")
    g.srd(S_WQKV, 54, 55, 1572864)
    g(f"s_mov_b32 s{S_DBG}, s60\ns_mov_b32 s{S_DBG+1}, s61")
    g.srd(S_WS, 62, 63, WS_SIZE)
    g.srd(S_WO, 66, 67, 524288)
    g.srd(S_X, 52, 53, 2097152)
    p1_setup_offsets(g)
    g.stamp("args")
    x0 = p1_dma_x(0)
    emit_items(g, [touch_res3(g, S_WQKV, 12)] + p1_dma_w(0) + x0[:3])
    g.stamp("i2")
    nonce_publish(g)
    dfr = setup_deferred(g)
    setup_rest(g)
    emit_items(g, dfr)
    p1_stats_addr(g)
    g.stamp("setup")
    emit_items(g, x0[3:])
    if o.get("ord", 1) == 0:
        emit_items(g, p1_dma_w(1) + p1_srow_items())
    else:
        emit_items(g, p1_srow_items() + p1_dma_w(1))
    g.stamp("issued")
    assert n_a <= NSLOT
    g.bg += wo_dma_items()
    for u in range(min(3, n_a)):
        g.bg += w13_dma_items(u)
    p1_gemm(g)
    g("s_barrier")
    for u in range(3, n_a):
        g.bg += w13_dma_items(u)
    g.skip = o.get("askip", 0)
    p1_attention(g)
    g.skip = 0
    g.tick(100)
    g.T = 16
    g.stamp("attn")
    u0 = n_a
    assert n_a + n_b <= NSLOT
    for u in range(u0, u0 + n_b):
        emit_items(g, w13_dma_items(u))
    ea = o.get("earlyA", 0)
    rest = []
    for ks in range(8 if ea else 0, 16):
        rest += p2_a_items(ks)
    if ea:
        emit_items(g, rest[8:24])
    w13_stage_setup(g)
    p2_pre(g)
    signal(g, 0, ["OST", "WO"])
    g.stamp("p1done")
    poll_issue(g, 0, "POLL1")
    if not ea:
        g("s_barrier")
        na0 = o.get("na0", 24)
        emit_items(g, rest[:na0])
        o["_late"] = rest[na0:]
    else:
        emit_items(g, rest[:8])
        o["_late"] = rest[24:]
    p3_pre(g)
    for u in range(n_a):
        emit_items(g, w13_pick_items(g, u))
    poll_check(g, 0, "POLL1", 6)
    g.stamp("f1")
    if n_a:
        g.lwait(f"A3_{n_a-1}")
    u0 += n_b
    assert n_b + n_c + n_d <= NSLOT
    for u in range(u0, u0 + n_c):
        g.bg += w13_dma_items(u)
    o["_picks"] = [it for u in range(n_a, u0 + n_c) for it in w13_pick_items(g, u)]
    p2_main(g)
    assert not g.bg
    u0 += n_c
    for u in range(u0, u0 + n_d):
        emit_items(g, w13_dma_items(u))
    npre = u0 + n_d
    signal(g, 1, ["HST"])
    g.stamp("p2done")
    poll_issue(g, 1, "POLL2")
    g("s_mov_b64 s[6:7], -1")
    p34_pre(g, 1)
    for u in range(u0, npre):
        emit_items(g, w13_pick_items(g, u))
    g.lwait_all()
    g("s_barrier")
    hk_exchange_read(g)
    g(f"s_cmp_ge_u32 s{S_M}, 14\ns_cbranch_scc1 L_idle3")
    poll_check(g, 1, "POLL2", 6)
    g.stamp("f2")
    emit_items(g, p3_h_items(0) + p3_h_items(1))
    got = p3_main(g, npre)
    nf = 8
    ep = p3_epi_sched(TORD[3])
    if not got:
        poll_issue(g, HPH[0], "POLLH0")
    g("s_nop 7\ns_nop 3")
    emit_items(g, ep[:40])
    if not got:
        poll_check(g, HPH[0], "POLLH0", S_A2 + 2)
        for i in range(nf):
            p4_load(g, i)
    poll_issue(g, HPH[1], "POLLH1", 1)
    emit_items(g, ep[40:])
    p3_hh_store(g, TORD[3])
    g.stamp("p3done")
    g("L_p4:")
    p4_main(g, nf)
    g.stamp("end")
    write_stamps(g)
    g("L_done:\ns_endpgm")
    g("L_idle3:")
    g.vq = []
    g.lq = []
    if o.get("idlepf", 1):
        g(f"""
        s_and_b32 s{S_T}, s{S_G}, 1
        s_lshl_b32 s{S_T}, s{S_T}, 1
        s_and_b32 s{S_T+1}, s{S_M}, 1
        s_add_u32 s{S_T}, s{S_T}, s{S_T+1}
        s_mul_i32 s{S_T}, s{S_T}, {448*1024}
        s_lshl_b32 s{S_T+1}, s{S_WAVE}, 13
        s_add_u32 s{S_T}, s{S_T}, s{S_T+1}
        s_min_u32 s{S_T+1}, s{S_XCD}, 6
        s_lshl_b32 s{S_T+1}, s{S_T+1}, 16
        s_add_u32 s{S_T+1}, s{S_T+1}, s{S_T}
        buffer_load_dword v3, v2, {sr(S_W2,4)}, s{S_T+1} offen
        s_add_u32 s{S_T+1}, s{S_T+1}, 32768
        buffer_load_dword v3, v2, {sr(S_W2,4)}, s{S_T+1} offen
        """)
        for j in [0, 7, 1, 8, 2, 9, 3, 10, 4, 11, 5, 12, 6, 13][:o.get('idn', 6)]:
            g(f"s_add_u32 s{S_T+1}, s{S_T}, {j*32768}")
            g(f"buffer_load_dword v3, v2, {sr(S_W2,4)}, s{S_T+1} offen")
    for ks in range(14):
        emit_items(g, w2_dma_items(ks, S_LB, ks * 2048))
    for ks in range(14):
        emit_items(g, w2_pick_items(g, ks, V4_AD + 2, ks * 2048))
    g.lwait_all()
    poll_issue(g, HPH[0], "POLLH0")
    poll_check(g, HPH[0], "POLLH0", S_A2 + 2, slp=True)
    for i in range(nf):
        p4_load(g, i)
    poll_issue(g, HPH[1], "POLLH1", 1)
    g.vwait_all()
    g("s_branch L_p4")
    for c in g.cold:
        g(c)
    return g


if __name__ == "__main__":
    out = sys.argv[1] if len(sys.argv) > 1 else "k.s"
    stamps = "--stamps" in sys.argv
    if "--cyc" in sys.argv:
        stamps = "cyc"
    opts = {}
    if "--slow" in sys.argv:
        opts["slow"] = True
    for a in sys.argv:
        if a.startswith("--st="):
            opts["stsel"] = a[5:].split(",")
        if a.startswith("--o:"):
            k, v = a[4:].split("=")
            opts[k] = int(v) if v.lstrip("-").isdigit() else v
    g = build(stamps, opts)
    emit_file(out, [g.k], single=True)
    print("stamps:", g.nst, g.stnames, "lines:", len(g.k.lines))
```

```python
import sys
import struct
from asmlib import *

KNAME = "sequential_preLN__sliding_local_dilated__glu_gated_swiglu__prompt_kernel"

WS_O = 0x000000
WS_H = 0x000000
WS_X = 0x200000
WS_HH = 0x400000
WS_ST = 0xB00000
WS_S1 = 0xB80000
WS_FL = 0xC00000
WS_STAMP = 0xD00000
WS_SIZE = 0xE00000
SPIN_MAX = 400000
LOG2E = 1.4426950408889634

S_NONCE = 3
S_IDXW = 4
S_FLO = 5
S_X, S_WQKV, S_WO, S_W1, S_W3, S_W2, S_OUT, S_WS = 8, 12, 16, 20, 24, 28, 32, 36
S_DBG = 40
S_WAVE = 42
S_XCD = 43
S_FAST = 44
S_G = 45
S_M = 46
S_TB = 47
S_C8 = 48
S_T = 49
S_ONES = 56
S_XOFF = 57
S_WOFF = 61
S_SW = 65
S_EXM = 66
S_LB = 68
S_C = 70
S_FLB = 71
S_STAMP = 72
S_KO = 66
S_A = 57
S_A2 = 12
S_K2 = 65
S_W2O = 67


NT = {}


def f2h(x):
    return "0x%08x" % struct.unpack("<I", struct.pack("<f", x))[0]


def vr(a, n):
    return f"v[{a}:{a+n-1}]"


def ar(a, n):
    return f"a[{a}:{a+n-1}]"


def sr(a, n):
    return f"s[{a}:{a+n-1}]"


class G:
    def __init__(self, stamps=False, opts=None):
        self.k = Kernel(KNAME, 256, 256, 160 * 1024, nvgpr=256, nagpr=256)
        self.vq = []
        self.lq = []
        self.stamps = stamps
        self.nst = 0
        self.stnames = []
        self.opts = opts or {}
        self.nlab = 0
        self.bg = []
        self.cold = []
        self.T = 212

    def __call__(self, s):
        self.k(s)

    def lab(self, base):
        self.nlab += 1
        return f"L_{base}_{self.nlab}"

    def tick(self, n=1):
        if getattr(self, "skip", 0) > 0:
            self.skip -= 1
            return
        for _ in range(n):
            if self.bg:
                emit_items(self, [self.bg.pop(0)])

    def vm(self, ins, tag):
        self.k(ins)
        self.vq.append(tag)

    def store(self, ins, tag):
        a = self.lab("slow")
        self.k(f"s_cmp_eq_u32 s{S_FAST}, 0\ns_cbranch_scc1 {a}")
        for x in ins:
            self.k(x)
        self.k(f"{a}_j:")
        self.cold.append(f"{a}:\n" + "\n".join(x + " sc1" for x in ins) + f"\ns_branch {a}_j")
        self.vq += [tag] * len(ins)

    def vwait(self, *tags):
        last = -1
        for i, t in enumerate(self.vq):
            if t in tags:
                last = i
        if last < 0:
            return
        n = len(self.vq) - 1 - last
        if n > 63:
            n = 63
            last = len(self.vq) - 1 - 63
        self.k(f"s_waitcnt vmcnt({n})")
        self.vq = self.vq[last + 1:]

    def vwait_all(self):
        self.k("s_waitcnt vmcnt(0)")
        self.vq = []

    def ds(self, ins, tag):
        self.k(ins)
        self.lq.append(tag)

    def lwait(self, *tags):
        last = -1
        for i, t in enumerate(self.lq):
            if t in tags:
                last = i
        if last < 0:
            return
        n = len(self.lq) - 1 - last
        if n > 15:
            n = 15
            last = len(self.lq) - 1 - 15
        self.k(f"s_waitcnt lgkmcnt({n})")
        self.lq = self.lq[last + 1:]

    def lwait_all(self):
        self.k("s_waitcnt lgkmcnt(0)")
        self.lq = []

    def stamp(self, name):
        if not self.stamps:
            return
        sel = self.opts.get("stsel")
        if sel is not None and name not in sel:
            return
        r = S_STAMP + 2 * self.nst
        assert r + 1 <= 101, "too many stamps"
        self.k(f"{'s_memtime' if self.stamps == 'cyc' and self.nst > 0 else 's_memrealtime'} s[{r}:{r+1}]")
        self.nst += 1
        self.stnames.append(name)

    def srd(self, s, lo, hi, size):
        self(f"s_mov_b32 s{s}, s{lo}\ns_and_b32 s{s+1}, s{hi}, 0xffff\ns_mov_b32 s{s+2}, {size}\ns_mov_b32 s{s+3}, 0x20000")


def emit_items(g, items):
    for kind, ins, tag in items:
        if kind == "ds":
            g.ds(ins, tag)
        elif kind == "vm":
            g.vm(ins, tag)
        elif kind == "fn":
            ins()
        else:
            g(ins)


def sched(g, mf, slots):
    for i, x in enumerate(mf):
        g(x)
        emit_items(g, slots.get(i, []))


def spread(slots, items, lo, hi):
    n = hi - lo
    for j, it in enumerate(items):
        slots.setdefault(lo + j * n // len(items), []).append(it)


V_L = 1
V_TR = 224
V_D128 = 226
V_L16 = 227
V_RED = 228
V_XO = 232
V3_WD = 233
V3_TR = 234
V3_SW = 235
V3_HB = 236
V_GA = 237
V_OS = 238
V_L4 = 239
V_XRES = 240
V_HK = 248
V_XD = 4
V_WD = 9
V_XR = 10
V_WR = 14
V_MK = 16
V_ACC = 36
V_AF = 96
V_BF = 120
V_NM2 = 160
V_SR = 160
V_NM = 200
V_NA = 210
V_S1A = 220
V_ONE2 = 222

L_X = 0
L_W = 61440
L_MISC = 159744
L_WO = 45056


def prologue(g):
    g.stamp("start")
    g(f"""
    s_cmp_ge_u32 s2, 256
    s_cbranch_scc1 L_done
    s_load_dwordx4 s[52:55], s[0:1], 0
    s_load_dwordx4 s[60:63], s[0:1], 64
    s_load_dwordx2 s[66:67], s[0:1], 16
    s_load_dwordx4 s[{S_STAMP+20}:{S_STAMP+23}], s[0:1], 32
    s_load_dwordx4 s[{S_STAMP+24}:{S_STAMP+27}], s[0:1], 48
    v_lshrrev_b32 v2, 6, v0
    v_and_b32 v1, 63, v0
    s_and_b32 s{S_XCD}, s2, 7
    v_readfirstlane_b32 s{S_WAVE}, v2
    s_lshr_b32 s{S_T+1}, s2, 3
    s_lshr_b32 s{S_T}, s{S_T+1}, 4
    s_lshl_b32 s{S_G}, s{S_XCD}, 1
    s_add_u32 s{S_G}, s{S_G}, s{S_T}
    s_and_b32 s{S_M}, s{S_T+1}, 15
    s_lshl_b32 s{S_IDXW}, s{S_T+1}, 2
    s_add_u32 s{S_IDXW}, s{S_IDXW}, s{S_WAVE}
    s_lshr_b32 s{S_T}, s{S_M}, 3
    s_lshl_b32 s{S_TB}, s{S_G}, 1
    s_add_u32 s{S_TB}, s{S_TB}, s{S_T}
    s_and_b32 s{S_C8}, s{S_M}, 7
    """)


def code_prefetch(g, nbytes):
    g(f"""
    s_getpc_b64 s[6:7]
    v_lshlrev_b32 v2, 7, v{V_L}
    s_lshl_b32 s{S_T}, s{S_IDXW}, 8
    v_add_u32 v4, s{S_T}, v2
    v_min_u32 v4, {nbytes}, v4
    s_mov_b64 exec, 3
    """)
    g.vm("global_load_dword v3, v4, s[6:7]", "PF")
    g("s_mov_b64 exec, -1")
    g("s_memrealtime s[6:7]")


def p1_setup(g):
    l = V_L
    t = g.T
    g(f"""
    v_lshrrev_b32 v{t+2}, 3, v{l}
    v_bfe_u32 v{t+3}, v{l}, 4, 1
    s_and_b32 s{S_T}, s{S_WAVE}, 1
    s_lshl_b32 s{S_T}, s{S_T}, 1
    v_or_b32 v{t+3}, s{S_T}, v{t+3}
    v_lshlrev_b32 v{t+3}, 1, v{t+3}
    v_and_b32 v{t+4}, 7, v{l}
    v_xor_b32 v{t+3}, v{t+3}, v{t+4}
    s_lshl_b32 s{S_T}, s{S_WAVE}, 3
    v_add_u32 v{t+2}, s{S_T}, v{t+2}
    v_mul_u32_u24 v{t+2}, 3072, v{t+2}
    v_lshl_add_u32 v{t+2}, v{t+3}, 4, v{t+2}
    s_lshl_b32 s{S_T}, s{S_C8}, 7
    v_add_u32 v{V_WD}, s{S_T}, v{t+2}
    s_lshl_b32 s{S_LB}, s{S_WAVE}, 10
    s_mul_i32 s{S_LB+1}, s{S_WAVE}, 3072
    v_lshrrev_b32 v{t}, 4, v0                 ; p = tid>>4
    v_and_b32 v{t+1}, 15, v{l}
    v_xor_b32 v{t+1}, v{t+1}, v{t}
    v_lshlrev_b32 v{t+1}, 4, v{t+1}
    s_lshl_b32 s{S_T+1}, s{S_TB}, 16          ; T0*1024
    v_add_u32 v{t+1}, s{S_T+1}, v{t+1}
    v_lshl_add_u32 v{V_XD+1}, v{t}, 11, v{t+1}
    s_lshr_b32 s{S_T}, s{S_WAVE}, 1           ; p>>3
    s_mul_i32 s{S_T}, s{S_T}, {17*1024}
    s_add_u32 s{S_T}, s{S_T}, {15*1024}
    v_subrev_u32 v{V_XD}, s{S_T}, v{V_XD+1}   ; 2p - 16(p>>3) - 15 - (p>>3)
    v_lshlrev_b32 v{V_L16}, 4, v{l}
    v_min_u32 v{V_SR+17}, 9, v{t}
    s_mul_i32 s{S_T}, s{S_C8}, 10
    v_add_u32 v{V_SR+17}, s{S_T}, v{V_SR+17}  ; e = delta + 16
    s_sub_u32 s{S_T}, s{S_T+1}, {16*1024}
    v_and_b32 v{t+2}, 0xf0, v{V_L16}
    v_lshl_add_u32 v{t+2}, v{V_SR+17}, 10, v{t+2}
    v_add_u32 v{V_SR+16}, s{S_T}, v{t+2}
    """)


def p1_setup_offsets(g):
    g(f"""
    s_cmp_eq_u32 s{S_WAVE}, 0
    s_cselect_b32 s{S_EXM}, 0xffff0000, -1
    s_mov_b32 s{S_EXM+1}, -1
    {["s_mov_b32 s%d, s%d" % (S_T, S_XCD), "s_add_u32 s%d, s%d, s%d" % (S_T, S_XCD, S_TB), "s_lshl_b32 s%d, s%d, 1" % (S_T, S_G) + chr(10) + "s_add_u32 s%d, s%d, s%d" % (S_T, S_T, S_XCD)][g.opts.get("rot", 0)]}
    s_and_b32 s{S_T}, s{S_T}, 3
    s_lshr_b32 s{S_T+2}, s{S_XCD}, 2
    s_mul_i32 s{S_SW}, s{S_T+2}, {64*3072}
    """)
    for q in range(4):
        g(f"""
        s_add_u32 s{S_T+1}, s{S_T}, {q}
        s_and_b32 s{S_T+1}, s{S_T+1}, 3
        s_lshl_b32 s{S_XOFF+q}, s{S_T+1}, 8
        s_mul_i32 s{S_WOFF+q}, s{S_T+1}, {128*3072}
        """)


def p1_srow_items():
    return [("vm", f"buffer_load_dwordx4 {vr(V_SR+4*i,4)}, v{V_SR+16}, {sr(S_X,4)}, 0 offen offset:{256*i}{NT.get('srow','')}", "SROW") for i in range(4)]


def nonce_publish(g):
    lab = g.lab("nolead")
    t = g.T
    g(f"""
    s_lshl_b32 s{S_T}, s{S_G}, 2
    v_mov_b32 v{V_NA}, s{S_T}
    s_or_b32 s{S_T+1}, s{S_M}, s{S_WAVE}
    s_cmp_lg_u32 s{S_T+1}, 0
    s_cbranch_scc1 {lab}
    s_or_b32 s{S_T+1}, s6, 1
    v_mov_b32 v{t+7}, s{S_T+1}
    s_mov_b64 exec, 1
    global_store_dword v{V_NA}, v{t+7}, s[{S_DBG}:{S_DBG+1}] sc1
    s_mov_b64 exec, -1
    {lab}:
    """)


def nonce_poll_issue(g):
    g.vm(f"global_load_dword v{V_NA+1}, v{V_NA}, s[{S_DBG}:{S_DBG+1}] sc1", "NONCE")


def nonce_check(g):
    lp = g.lab("nl")
    g.vwait("NONCE")
    g(f"""
    v_readfirstlane_b32 s{S_NONCE}, v{V_NA+1}
    s_mov_b32 s{S_T+6}, 0
    s_cmp_eq_u32 s{S_NONCE}, 0
    s_cbranch_scc1 {lp}
    {lp}_ok:
    """)
    g.cold.append(f"""{lp}:
    global_load_dword v{V_NA+1}, v{V_NA}, s[{S_DBG}:{S_DBG+1}] sc1
    s_add_u32 s{S_T+6}, s{S_T+6}, 1
    s_waitcnt vmcnt(0)
    v_readfirstlane_b32 s{S_NONCE}, v{V_NA+1}
    s_cmp_gt_u32 s{S_T+6}, {SPIN_MAX}
    s_cbranch_scc1 {lp}_ok
    s_cmp_eq_u32 s{S_NONCE}, 0
    s_cbranch_scc1 {lp}
    s_branch {lp}_ok""")


def p1_stats_addr(g):
    e = V_SR + 17
    b = V_SR + 18
    g(f"""
    v_lshrrev_b32 v{b}, 1, v{e}
    v_and_b32 v{b+1}, 1, v{e}
    v_lshl_add_u32 v{b+2}, v{b+1}, 5, v{b}
    v_add_u32 v{b+2}, 8, v{b+2}
    v_xor_b32 v{b+1}, 1, v{b+1}
    v_lshl_add_u32 v{b}, v{b+1}, 3, v{b}
    v_cmp_gt_u32 vcc, 16, v{e}
    s_nop 1
    v_cndmask_b32 v{e}, v{b+2}, v{b}, vcc
    v_lshlrev_b32 v{e}, 3, v{e}
    """)


def p1_stats_compute(g):
    R = V_SR
    a = R + 18
    g.vwait("SROW")
    for i in range(2):
        g(f"v_dot2_f32_bf16 v{a+2*i}, v{R+i}, s{S_ONES}, 0")
        g(f"v_dot2_f32_bf16 v{a+2*i+1}, v{R+i}, v{R+i}, 0")
    for d in range(2, 16):
        i = d & 1
        g(f"v_dot2c_f32_bf16 v{a+2*i}, s{S_ONES}, v{R+d}")
        g(f"v_dot2c_f32_bf16 v{a+2*i+1}, v{R+d}, v{R+d}")
    g(f"""
    s_lshl_b32 s{S_T+2}, s{S_TB}, 10
    s_add_u32 s{S_T+2}, s{S_T+2}, {WS_S1}
    s_nop 0
    v_pk_add_f32 {vr(a,2)}, {vr(a,2)}, {vr(a+2,2)}
    s_nop 1
    """)
    for sh in (8, 4, 2, 1):
        g(f"v_add_f32_dpp v{a}, v{a}, v{a} row_ror:{sh} row_mask:0xf bank_mask:0xf")
        g(f"v_add_f32_dpp v{a+1}, v{a+1}, v{a+1} row_ror:{sh} row_mask:0xf bank_mask:0xf")
        g("s_nop 0")
    g(f"""
    v_mul_f32 v{a+2}, {f2h(-1.0/512)}, v{a}
    v_mul_f32 v{a+3}, {f2h(1.0/512)}, v{a+1}
    v_fma_f32 v{a+3}, -v{a+2}, v{a+2}, v{a+3}
    v_max_f32 v{a+3}, 0, v{a+3}
    v_add_f32 v{a+3}, {f2h(1e-5)}, v{a+3}
    v_rsq_f32 v{a+3}, v{a+3}
    s_mov_b32 exec_lo, 0x00010001
    s_mov_b32 exec_hi, 0x00010001
    """)
    assert a % 2 == 0
    g.vm(f"buffer_store_dwordx2 {vr(a+2,2)}, v{R+17}, {sr(S_WS,4)}, s{S_T+2} offen sc1", "S1ST")
    g("s_mov_b64 exec, -1")


def p1_started(g):
    lab = g.lab("nostart")
    t = g.T
    g(f"""
    s_cmp_lg_u32 s{S_WAVE}, 0
    s_cbranch_scc1 {lab}
    s_getreg_b32 s{S_T+4}, hwreg(HW_REG_XCC_ID)
    s_and_b32 s{S_T+4}, s{S_T+4}, 15
    s_lshl_b32 s{S_T+5}, s{S_M}, 3
    s_add_u32 s{S_T+5}, s{S_T+5}, s{S_FLB}
    v_mov_b32 v{t+2}, {7*4096}
    v_mov_b32 v{t}, s{S_NONCE}
    v_mov_b32 v{t+1}, s{S_T+4}
    s_mov_b64 exec, 1
    buffer_store_dwordx2 {vr(t,2)}, v{t+2}, {sr(S_WS,4)}, s{S_T+5} offen sc1
    s_mov_b64 exec, -1
    {lab}:
    """)


def setup_rest(g):
    l = V_L
    t = g.T
    a = S_STAMP + 20
    g(f"""
    s_mov_b32 s{S_ONES}, 0x3f803f80
    s_lshl_b32 s{S_FLB}, s{S_G}, 8
    s_add_u32 s{S_FLB}, s{S_FLB}, {WS_FL}
    s_lshl_b32 s{S_T}, s{S_M}, 4
    s_lshl_b32 s{S_T+1}, s{S_WAVE}, 2
    s_add_u32 s{S_FLO}, s{S_T}, s{S_T+1}
    s_add_u32 s{S_FLO}, s{S_FLO}, s{S_FLB}
    v_lshlrev_b32 v{V_L4}, 2, v{l}
    v_lshrrev_b32 v{t}, 4, v{l}            ; g
    v_and_b32 v{t+1}, 15, v{l}             ; r
    v_xor_b32 v{t+2}, v{t}, v{t+1}
    s_lshr_b32 s{S_T+2}, s{S_XCD}, 2
    s_lshl_b32 s{S_T+2}, s{S_T+2}, 3
    v_xor_b32 v{t+2}, s{S_T+2}, v{t+2}
    v_lshlrev_b32 v{t+3}, 8, v{t+1}
    """)
    for ks in range(4):
        g(f"""
        v_xor_b32 v{t+4}, {4*ks}, v{t+2}
        v_lshl_add_u32 v{V_XR+ks}, v{t+4}, 4, v{t+3}
        """)
    g(f"""
    v_mul_u32_u24 v{t+2}, 3072, v{t}
    v_bfe_u32 v{t+3}, v{l}, 2, 2
    v_lshl_add_u32 v{t+2}, v{t+3}, 7, v{t+2}
    v_bfe_u32 v{t+3}, v{l}, 3, 2
    v_xor_b32 v{t+3}, s{S_WAVE}, v{t+3}
    v_lshl_add_u32 v{t+2}, v{t+3}, 5, v{t+2}
    v_and_b32 v{t+3}, 3, v{l}
    v_lshl_add_u32 v{t+2}, v{t+3}, 3, v{t+2}
    v_add_u32 v{V_WR}, {L_W}, v{t+2}
    v_add_u32 v{V_WR+1}, {L_W+49152}, v{t+2}
    """)
    lab = g.lab("noones")
    g(f"""
    v_mov_b32 v{t+4}, s{S_ONES}
    v_mov_b32 v{t+5}, s{S_ONES}
    v_mov_b32 v{t+6}, s{S_ONES}
    v_mov_b32 v{t+7}, s{S_ONES}
    v_mov_b32 v{V_ONE2}, s{S_ONES}
    v_mov_b32 v{V_ONE2+1}, s{S_ONES}
    v_min_u32 v{t+2}, 2, v{t}
    v_mul_u32_u24 v{t+2}, 20480, v{t+2}
    v_lshl_add_u32 v{t+2}, v{t+1}, 4, v{t+2}
    s_cmp_lg_u32 s{S_WAVE}, 0
    s_cbranch_scc1 {lab}
    ds_write_b128 v{t+2}, {vr(t+4,4)} offset:{L_X}
    {lab}:
    v_lshlrev_b32 v{V_S1A}, 3, v{t+1}          ; r*8
    v_lshlrev_b32 v{V_S1A+1}, 5, v{t}          ; g*32
    """)


class Rec:
    def __init__(self, g):
        self.g = g
        self.items = []
        self.T = g.T

    def __call__(self, s):
        self.items.append(("v", s, None))

    def lab(self, b):
        return self.g.lab(b)

    def srd(self, s, lo, hi, size):
        self(f"s_mov_b32 s{s}, s{lo}\ns_and_b32 s{s+1}, s{hi}, 0xffff\ns_mov_b32 s{s+2}, {size}\ns_mov_b32 s{s+3}, 0x20000")


def setup_deferred(g0):
    g = Rec(g0)
    l = V_L
    t = 184
    a = S_STAMP + 20
    g.srd(S_W1, a, a + 1, 1835008)
    g.srd(S_W3, a + 2, a + 3, 1835008)
    g.srd(S_W2, a + 4, a + 5, 1835008)
    g.srd(S_OUT, a + 6, a + 7, 2097152)
    g(f"""
    v_lshrrev_b32 v{t}, 4, v{l}
    v_and_b32 v{t+1}, 15, v{l}
    """)
    M = V_MK
    big = f2h(-1e30)
    g(f"""
    v_lshlrev_b32 v{t+2}, 2, v{t}
    v_sub_u32 v{t+3}, v{t+2}, v{t+1}           ; d0 = 4g - q (signed)
    s_cmp_eq_u32 s{S_TB}, 0
    s_cselect_b32 s0, {big}, 0
    s_mov_b32 s1, {big}
    v_mov_b32 v{t+5}, s1
    v_mov_b32 v{t+6}, s0
    v_mov_b32 v{M+16}, 0
    v_mov_b32 v{M+17}, 0
    """)
    for r in range(4):
        g(f"""
        v_add_u32 v{t+4}, {r+7}, v{t+3}
        v_cmp_gt_u32 vcc, 8, v{t+4}
        v_mov_b32 v{t+7}, {hex(0xffff << (16*(r&1)))}
        s_nop 0
        v_cndmask_b32 v{M+r}, v{t+5}, 0, vcc
        v_cndmask_b32 v{t+7}, 0, v{t+7}, vcc
        v_or_b32 v{M+16+r//2}, v{M+16+r//2}, v{t+7}
        v_add_u32 v{t+4}, {r}, v{t+3}
        v_cmp_lt_i32 vcc, 8, v{t+4}                ; d >= 9
        s_nop 1
        v_cndmask_b32 v{M+4+r}, v{t+5}, 0, vcc
        v_cndmask_b32 v{M+8+r}, v{t+5}, v{t+6}, vcc
        v_cmp_lt_i32 vcc, 0, v{t+4}                ; d >= 1
        v_cmp_gt_u32 s[6:7], 2, v{t}   ; c <= 7  <=> g < 2
        s_and_b64 vcc, vcc, s[6:7]
        s_nop 1
        v_cndmask_b32 v{M+12+r}, v{t+5}, v{t+6}, vcc
        """)
    g(f"""
    v_not_b32 v{M+18}, v{M+16}
    v_not_b32 v{M+19}, v{M+17}
    """)
    g(f"""
    s_lshl_b32 s0, s{S_TB}, 16
    s_lshl_b32 s1, s{S_C8}, 12
    s_add_u32 s0, s0, s1
    s_lshl_b32 s1, s{S_WAVE}, 10
    s_add_u32 s0, s0, s1
    s_add_u32 s0, s0, {WS_O}
    v_lshrrev_b32 v{t+2}, 5, v{l}
    v_lshlrev_b32 v{t+2}, 9, v{t+2}
    v_lshl_add_u32 v{t+2}, v{t+1}, 5, v{t+2}
    v_and_b32 v{t+3}, 1, v{t}
    v_lshl_add_u32 v{t+2}, v{t+3}, 4, v{t+2}
    v_add_u32 v{V_OS}, s0, v{t+2}
    """)
    g(f"""
    v_lshrrev_b32 v{t+2}, 3, v{l}
    v_lshlrev_b32 v{t+2}, 10, v{t+2}
    v_bfe_u32 v{t+3}, v{l}, 4, 1
    v_lshlrev_b32 v{t+3}, 2, v{t+3}
    v_and_b32 v{t+4}, 7, v{l}
    v_xor_b32 v{t+3}, v{t+3}, v{t+4}
    v_lshl_add_u32 v{t+2}, v{t+3}, 4, v{t+2}
    s_lshl_b32 s0, s{S_C8}, 7
    v_add_u32 v{V_D128}, s0, v{t+2}
    """)
    lab = g.lab("w13ok")
    g(f"""
    v_lshrrev_b32 v{t+2}, 2, v{l}
    v_mul_u32_u24 v{t+2}, 3584, v{t+2}
    v_and_b32 v{t+3}, 3, v{l}
    v_lshl_add_u32 v{t+2}, v{t+3}, 4, v{t+2}
    s_lshl_b32 s0, s{S_M}, 8
    s_lshl_b32 s1, s{S_WAVE}, 6
    s_add_u32 s0, s0, s1
    s_cmp_lt_u32 s{S_M}, 14
    s_cselect_b32 s0, s0, 0x40000000
    v_add_u32 v{V3_WD}, s0, v{t+2}
    """)
    g(f"""
    v_bfe_u32 v{t+3}, v{l}, 4, 1
    v_lshlrev_b32 v{t+2}, 5, v{t+3}
    v_and_b32 v{t+3}, 1, v{l}
    v_lshl_add_u32 v{t+2}, v{t+3}, 4, v{t+2}
    v_bfe_u32 v{t+3}, v{l}, 1, 1
    v_lshl_add_u32 v{t+2}, v{t+3}, 3, v{t+2}  ; (G&1)*32 + (c&1)*16 + (c>>1)*8
    v_lshrrev_b32 v{t+4}, 5, v{l}
    v_lshlrev_b32 v{t+4}, 3, v{t+4}
    v_bfe_u32 v{t+3}, v{l}, 2, 2
    v_add_u32 v{t+4}, v{t+4}, v{t+3}          ; 8h + r
    v_lshl_add_u32 v{t+5}, v{t+4}, 7, v{t+2}
    v_lshl_add_u32 v{t+6}, v{t+4}, 6, v{t+2}
    v_bfe_u32 v{t+3}, v{l}, 3, 1
    s_lshr_b32 s0, s{S_WAVE}, 1
    v_xor_b32 v{t+3}, s0, v{t+3}
    v_lshl_add_u32 v{V_TR}, v{t+3}, 6, v{t+5}
    v_xor_b32 v{V_TR+1}, 64, v{V_TR}
    s_lshl_b32 s0, s{S_WAVE}, 10
    s_add_u32 s0, s0, {L_MISC}
    v_add_u32 v{V3_TR}, s0, v{t+6}
    v_add_u32 v{V3_SW}, s0, v{V_L16}
    v_add_u32 v{V3_HB}, 65536, v{V_L16}
    """)
    g(f"""
    v_lshrrev_b32 v{t+2}, 3, v{l}
    v_lshlrev_b32 v{t+2}, 10, v{t+2}
    v_bfe_u32 v{t+3}, v{l}, 4, 1
    v_lshlrev_b32 v{t+3}, 1, v{t+3}
    v_and_b32 v{t+4}, 7, v{l}
    v_xor_b32 v{t+3}, v{t+3}, v{t+4}
    v_lshl_add_u32 v{t+2}, v{t+3}, 4, v{t+2}
    s_lshl_b32 s0, s{S_C8}, 7
    v_add_u32 v{V_RED}, s0, v{t+2}
    v_xor_b32 v{V_RED+1}, 64, v{V_RED}
    v_lshlrev_b32 v{t+2}, 10, v{t}
    v_bfe_u32 v{t+3}, v{l}, 2, 2
    v_lshl_add_u32 v{t+2}, v{t+3}, 7, v{t+2}
    v_bfe_u32 v{t+3}, v{l}, 3, 2
    v_lshl_add_u32 v{t+2}, v{t+3}, 5, v{t+2}
    v_and_b32 v{t+3}, 3, v{l}
    v_lshl_add_u32 v{t+2}, v{t+3}, 3, v{t+2}
    v_add_u32 v{V_RED+2}, {L_WO}, v{t+2}
    s_and_b32 s0, s{S_WAVE}, 1
    s_lshl_b32 s0, s0, 8
    v_lshlrev_b32 v{t+2}, 4, v{t+1}
    v_add_u32 v{t+2}, s0, v{t+2}
    v_lshl_add_u32 v{V_GA}, v{t}, 9, v{t+2}
    v_and_b32 v{t+3}, 1, v{t}
    v_lshl_add_u32 v{t+2}, v{t+3}, 10, v{t+2}
    v_lshrrev_b32 v{t+3}, 1, v{t}
    v_lshl_add_u32 v{V_RED+3}, v{t+3}, 9, v{t+2}
    s_lshl_b32 s0, s{S_TB}, 16
    s_lshl_b32 s1, s{S_WAVE}, 14
    s_add_u32 s0, s0, s1
    s_lshl_b32 s1, s{S_C8}, 7
    s_add_u32 s0, s0, s1
    v_lshlrev_b32 v{t+2}, 10, v{t+1}
    v_lshl_add_u32 v{t+2}, v{t}, 3, v{t+2}
    v_add_u32 v{V_XO}, s0, v{t+2}
    """)
    out = []
    for _, txt, _ in g.items:
        lines = [x.strip() for x in txt.split("\n") if x.strip() and not x.strip().startswith(";")]
        i = 0
        while i < len(lines):
            if lines[i].startswith("s_cmp"):
                out.append(("v", lines[i] + "\n" + lines[i + 1], None))
                i += 2
            else:
                out.append(("v", lines[i], None))
                i += 1
    return out


def touch(srd, nlines, pre, va="v2", off=0):
    o = f" offset:{off}" if off else ""
    return ("vm", f"""{pre}
    s_mov_b64 exec, {hex((1 << nlines) - 1)}
    buffer_load_dword v3, {va}, {sr(srd,4)}, s{S_T+3} offen{o}
    s_mov_b64 exec, -1""", "PF")


def touch_w13(i):
    pre = f"""s_add_u32 s{S_T+3}, s{S_XCD}, {i//2}
    s_and_b32 s{S_T+3}, s{S_T+3}, 7
    s_mul_i32 s{S_T+3}, s{S_T+3}, {64*3584}
    s_mul_i32 s{S_T+2}, s{S_IDXW}, 1792
    s_add_u32 s{S_T+3}, s{S_T+3}, s{S_T+2}"""
    return touch(S_W1 if i % 2 == 0 else S_W3, 14, pre)


def touch_wo(j):
    pre = f"""s_add_u32 s{S_T+3}, s{S_XCD}, {j}
    s_and_b32 s{S_T+3}, s{S_T+3}, 1
    s_lshl_b32 s{S_T+3}, s{S_T+3}, 18
    s_lshl_b32 s{S_T+2}, s{S_IDXW}, 11
    s_add_u32 s{S_T+3}, s{S_T+3}, s{S_T+2}"""
    return touch(S_WO, 16, pre)


def touch_res3(g, srd, nlines):
    t = g.T + 7
    return touch(srd, nlines, f"v_lshlrev_b32 v{t}, 10, v{V_L}\ns_mul_i32 s{S_T+3}, s{S_IDXW}, {nlines*1024}", f"v{t}", 384)


def p1_dma_x(q):
    slot = q % 3
    out = []
    rowoff = [0, 0, 32 * 1024, 1024, 33 * 1024]
    for i in range(5):
        pre = f"s_add_u32 m0, s{S_LB}, {L_X + slot*20480 + i*4096}\n"
        if i == 0:
            pre += f"s_mov_b64 exec, s[{S_EXM}:{S_EXM+1}]\n"
            ins = pre + f"buffer_load_dwordx4 v{V_XD}, {sr(S_X,4)}, s{S_XOFF+q} offen{NT.get('x','')} lds\ns_mov_b64 exec, -1"
        else:
            pre += f"s_add_u32 s{S_T+1}, s{S_XOFF+q}, {rowoff[i]}\n"
            ins = pre + f"buffer_load_dwordx4 v{V_XD+1}, {sr(S_X,4)}, s{S_T+1} offen{NT.get('x','')} lds"
        out.append(("vm", ins, f"X{q}"))
    return out


def p1_dma_w(s):
    slot = s % 4
    q = s // 2
    out = []
    for hi in range(2):
        if s & 1:
            pre = f"s_sub_u32 s{S_T}, {64*3072 + hi*32*3072}, s{S_SW}\n"
        else:
            pre = f"s_add_u32 s{S_T}, {hi*32*3072}, s{S_SW}\n"
        pre += f"s_add_u32 m0, s{S_LB+1}, {L_W + slot*24576 + hi*4*3072}\n"
        pre += f"s_add_u32 s{S_T}, s{S_T}, s{S_WOFF+q}\n"
        for p in range(3):
            out.append(("vm", (pre if p == 0 else "") + f"buffer_load_dwordx4 v{V_WD}, {sr(S_WQKV,4)}, s{S_T} offen offset:{p*1024}{NT.get('w','')} lds", f"W{s}"))
    return out


def p1_read_frags(n):
    s = n // 2
    kk = n % 2
    buf = n & 1
    q = n // 4
    ks = n % 4
    slot = s % 4
    wa = V_WR + (slot // 2)
    ins = []
    for p in range(3):
        for half in range(2):
            d = V_AF + buf * 12 + p * 4 + half * 2
            off = (slot % 2) * 24576 + kk * 12288 + p * 1024 + half * 512
            ins.append(f"ds_read_b64_tr_b16 {vr(d,2)}, v{wa} offset:{off}")
    for t in range(5):
        d = V_BF + buf * 20 + t * 4
        ins.append(f"ds_read_b128 {vr(d,4)}, v{V_XR+ks} offset:{L_X + (q%3)*20480 + t*4096}")
    return ins


def acc1(p, t):
    return V_ACC + (p * 5 + t) * 4


def p1_mfmas(n):
    buf = n & 1
    ins = []
    for t in range(5):
        for p in range(3):
            a = acc1(p, t)
            c = "0" if n == 0 else vr(a, 4)
            w = vr(V_AF + buf * 12 + p * 4, 4)
            x = vr(V_BF + buf * 20 + t * 4, 4)
            if p == 2:
                w, x = x, w
            ins.append(f"v_mfma_f32_16x16x32_bf16 {vr(a,4)}, {w}, {x}, {c}")
    return ins


def poll_started_issue(g):
    t = g.T
    g(f"s_add_u32 s{S_T+4}, s{S_FLB}, {7*4096}")
    g.vm(f"buffer_load_dwordx2 {vr(t,2)}, v{V_S1A}, {sr(S_WS,4)}, s{S_T+4} offen sc1", "POLL0")


def poll_started_check(g):
    t = g.T
    lp = g.lab("pst")
    g.vwait("POLL0")
    g(f"""
    v_cmp_ne_u32 vcc, s{S_NONCE}, v{t}
    s_mov_b32 s{S_T+6}, 0
    s_cbranch_vccnz {lp}
    {lp}_ok:
    v_readfirstlane_b32 s{S_T+4}, v{t+1}
    s_lshl_b32 s{S_T+5}, s{S_TB}, 10
    s_add_u32 s{S_T+5}, s{S_T+5}, {WS_S1}
    v_cmp_ne_u32 vcc, s{S_T+4}, v{t+1}
    s_nop 0
    s_cmp_eq_u64 vcc, 0
    s_cselect_b32 s{S_FAST}, {0 if g.opts.get('slow') else 1}, 0
    """)
    g.cold.append(f"""{lp}:
    buffer_load_dwordx2 {vr(t,2)}, v{V_S1A}, {sr(S_WS,4)}, s{S_T+4} offen sc1
    s_add_u32 s{S_T+6}, s{S_T+6}, 1
    s_cmp_gt_u32 s{S_T+6}, {SPIN_MAX}
    s_waitcnt vmcnt(0)
    s_cbranch_scc1 {lp}_ok
    v_cmp_ne_u32 vcc, s{S_NONCE}, v{t}
    s_cbranch_vccnz {lp}
    s_branch {lp}_ok""")


def nm_dma_items():
    return [("vm", f"""s_lshl_b32 s{S_T+4}, s{S_WAVE}, 10
    s_add_u32 m0, s{S_T+4}, {L_MISC}
    s_add_u32 s{S_T+4}, s{S_T+4}, {L_MISC}
    buffer_load_dwordx4 v{V_L16}, {sr(S_WS,4)}, s{S_T+5} offen sc1 lds
    v_add_u32 v{V_S1A}, s{S_T+4}, v{V_S1A}
    v_add_u32 v{V_S1A+1}, s{S_T+4}, v{V_S1A+1}""", "NM")]


def nm_read_items(g):
    out = [("fn", lambda: g.vwait("NM"), None)]
    for tt in range(5):
        out.append(("ds", f"ds_read_b64 {vr(V_NM+2*tt,2)}, v{V_S1A} offset:{tt*128}", "NMR"))
    for tt in range(5):
        for h in range(2):
            out.append(("ds", f"ds_read_b128 {vr(V_NM2+8*tt+4*h,4)}, v{V_S1A+1} offset:{tt*128+16*h}", "NMR"))
    return out


def wo_dma_items():
    out = []
    for i in range(16):
        pre = ""
        if i == 0:
            pre = f"""s_lshl_b32 s{S_LB}, s{S_WAVE}, 14
            s_add_u32 s{S_LB}, s{S_LB}, {L_WO}
            s_lshl_b32 s{S_LB+1}, s{S_WAVE}, 17
            """
        out.append(("vm", pre + f"""s_add_u32 m0, s{S_LB}, {i*1024}
        s_add_u32 s{S_T+1}, s{S_LB+1}, {i*8192}
        buffer_load_dwordx4 v{V_RED+(i&1)}, {sr(S_WO,4)}, s{S_T+1} offen lds""", "WO"))
    return out


def preread_items():
    return [("vm", f"""s_lshl_b32 s{S_T+3}, s{S_TB}, 16
            s_lshl_b32 s{S_T+2}, s{S_C8}, 12
            s_add_u32 s{S_T+3}, s{S_T+3}, s{S_T+2}
            s_lshl_b32 s{S_T+2}, s{S_WAVE}, 10
            s_add_u32 s{S_T+3}, s{S_T+3}, s{S_T+2}
            s_mov_b64 exec, 0xff
            buffer_load_dword v3, v2, {sr(S_WS,4)}, s{S_T+3} offen sc1{NT.get('pre','')}
            s_add_u32 s{S_T+3}, s{S_T+3}, 32768
            s_mov_b64 exec, -1""", "PF"),
            ("vm", f"""s_mov_b64 exec, 0xff
            buffer_load_dword v3, v2, {sr(S_WS,4)}, s{S_T+3} offen sc1{NT.get('pre','')}
            s_mov_b64 exec, -1""", "PF"),
            ("vm", f"""s_lshl_b32 s{S_T+3}, s{S_TB}, 13
            s_lshl_b32 s{S_T+2}, s{S_C8}, 8
            s_add_u32 s{S_T+3}, s{S_T+3}, s{S_T+2}
            s_lshl_b32 s{S_T+2}, s{S_WAVE}, 11
            s_add_u32 s{S_T+3}, s{S_T+3}, s{S_T+2}
            s_add_u32 s{S_T+3}, s{S_T+3}, {WS_ST}
            s_mov_b64 exec, 0x3
            buffer_load_dword v3, v2, {sr(S_WS,4)}, s{S_T+3} offen sc1{NT.get('pre','')}
            s_mov_b64 exec, -1""", "PF"),
            ("vm", f"""s_lshl_b32 s{S_T+2}, s{S_WAVE}, 12
            s_add_u32 s{S_T+3}, s{S_FLB}, s{S_T+2}
            s_mov_b64 exec, 3
            buffer_load_dword v3, v2, {sr(S_WS,4)}, s{S_T+3} offen sc1{NT.get('pre','')}
            s_add_u32 s{S_T+3}, s{S_T+3}, 16384
            s_mov_b64 exec, -1""", "PF"),
            ("vm", f"""s_cmp_eq_u32 s{S_WAVE}, 3
            s_cselect_b32 s{S_T+2}, 4096, 0
            s_add_u32 s{S_T+3}, s{S_T+3}, s{S_T+2}
            s_mov_b64 exec, 3
            buffer_load_dword v3, v2, {sr(S_WS,4)}, s{S_T+3} offen sc1{NT.get('pre','')}
            s_mov_b64 exec, -1""", "PF")]


def xres_items():
    return [("vm", f"buffer_load_dwordx2 {vr(V_XRES+2*a,2)}, v{V_XO}, {sr(S_X,4)}, 0 offen offset:{32*a}", "XR") for a in range(4)]


def p1_gemm(g):
    NSTART = g.opts.get('nstart', 3)
    stream = p1_dma_w(2) + p1_dma_x(1) + p1_dma_w(3) + p1_dma_x(2) + p1_dma_w(4) + p1_dma_w(5) + p1_dma_x(3) + p1_dma_w(6) + p1_dma_w(7)
    earliest = {"W4": 1, "W5": 3, "X3": 3, "W6": 5, "W7": 7}
    span = g.opts.get("p1span", 120)
    dpos = {}
    for i, it in enumerate(stream):
        fast = g.opts.get("p1fast", 11)
        pos = i if i < fast else fast + (i - fast) * (span - fast) // (len(stream) - fast)
        pos = max(pos, 15 * earliest.get(it[2], 0))
        dpos.setdefault(pos // 15, []).append((pos % 15, it))
    nlast = max(dpos)
    g.vwait("X0", "W0")
    g.lwait_all()
    g("s_barrier")
    g.stamp("B0")
    for x in p1_read_frags(0):
        g.ds(x, "F0")
    for n in range(16):
        s = n // 2
        mf = p1_mfmas(n)
        if n == g.opts.get("nstat", 1):
            p1_stats_compute(g)
            nonce_poll_issue(g)
        g.lwait(f"F{n}")
        if n % 2 == 1 and n < 15:
            need = [f"W{s+1}"]
            if (s + 1) % 2 == 0:
                need.append(f"X{(s+1)//2}")
            if n == NSTART:
                nonce_check(g)
                need.append("S1ST")
            g.vwait(*need)
            g("s_barrier")
            g.stamp(f"B{s+1}")
            if n == NSTART:
                p1_started(g)
        slots = {}
        if n < 15:
            spread(slots, [("ds", x, f"F{n+1}") for x in p1_read_frags(n + 1)], 0, 11)
        for pos, it in dpos.get(n, []):
            slots.setdefault(pos, []).append(it)
        if n == 6 and not g.opts.get("two", 2):
            slots.setdefault(14, []).append(touch_res3(g, S_WO, 4))
        t0, tn = g.opts.get("t13s", 2), g.opts.get("t13n", 0)
        if t0 <= n < t0 + tn:
            slots.setdefault(12, []).append(touch_w13(n - t0))
        kb = g.opts.get("kbatch", 9)
        assert kb > nlast
        if n == kb - 2:
            slots.setdefault(1, []).append(("fn", lambda: poll_started_issue(g), None))
        if n == kb:
            slots.setdefault(0, []).append(("fn", lambda: poll_started_check(g), None))
            slots.setdefault(0, []).extend(nm_dma_items())
            spread(slots, xres_items(), 1, 8)
        if n == g.opts.get("kpre", kb):
            slots.setdefault(14, []).extend(preread_items()[(2 if g.opts.get("osc1", 1) else 0):])
        if n == g.opts.get("twok", 8) and g.opts.get("two", 2):
            spread(slots, [touch_wo(i) for i in range(2)], 3, 9)
        if n == g.opts.get("t13k", 14) and g.opts.get("t13e", 2):
            slots.setdefault(14, []).extend([touch_w13(i) for i in range(g.opts.get("t13e", 2))])
        if n == 15:
            spread(slots, nm_read_items(g), 0, 12)
        if n == 10:
            slots.setdefault(13, []).append(("v", f"""s_mul_i32 s{S_KO}, s{S_XCD}, {4*16*3584}
            s_mul_i32 s{S_SG}, s{S_WAVE}, 6144
            s_add_u32 s{S_SG}, s{S_SG}, 20480
            s_mul_i32 s{S_SG+1}, s{S_WAVE}, 12288
            s_add_u32 s{S_SG+1}, s{S_SG+1}, 110592
            s_lshl_b32 s{S_SG+2}, s{S_WAVE}, 12""", None))
        if g.opts.get("tailbeg", 11) <= n <= g.opts.get("tailend", 14):
            spread(slots, [("fn", lambda: g.tick(), None)] * g.opts.get("tailrate", 4), 1, 13)
        sched(g, mf, slots)
    g.stamp("p1gemm")


def p1_attention(g):
    M = V_MK
    CS = 4
    QP = 96
    KP = 104
    VP = 114
    S = 128
    g("s_nop 4")
    for p in range(2):
        for r in range(4):
            g(f"v_mov_b32_dpp v{CS+p*4+r}, v{acc1(p,0)+r} row_newbcast:0 row_mask:0xf bank_mask:0xf")
    g(f"""
    v_mov_b32 v{CS+8}, v{acc1(2,0)}
    v_mov_b32 v{CS+9}, v{acc1(2,0)}
    s_mov_b32 s{S_C}, {f2h(0.25 * 1.4426950408889634)}
    s_nop 0
    v_permlane16_swap_b32 v{CS+8}, v{CS+9}
    s_nop 0
    v_mov_b32 v{CS+9}, v{CS+8}
    s_nop 1
    v_permlane32_swap_b32 v{CS+8}, v{CS+9}
    """)
    g.lwait("NMR")
    g.stamp("nm")

    def qk_fix(p, tt, dst):
        a = acc1(p, tt)
        nm = V_NM + 2 * tt
        return [[f"v_pk_fma_f32 {vr(a+2*h,2)}, {vr(CS+p*4+2*h,2)}, {vr(nm,2)}, {vr(a+2*h,2)} op_sel:[0,0,0] op_sel_hi:[1,0,1]" for h in range(2)],
                [f"v_pk_mul_f32 {vr(a+2*h,2)}, {vr(a+2*h,2)}, {vr(nm,2)} op_sel:[0,1] op_sel_hi:[1,1]" for h in range(2)],
                [f"v_cvt_pk_bf16_f32 v{dst+h}, v{a+2*h}, v{a+2*h+1}" for h in range(2)]]

    def v_fix(tt, dst):
        a = acc1(2, tt)
        nm = V_NM2 + 8 * tt
        return [[f"v_fmac_f32 v{a+r}, v{nm+2*r}, v{CS+8}" for r in range(4)],
                [f"v_mul_f32 v{a+r}, v{nm+2*r+1}, v{a+r}" for r in range(4)],
                [f"v_cvt_pk_bf16_f32 v{dst+h}, v{a+2*h}, v{a+2*h+1}" for h in range(2)]]

    def pipe(jobs, after=None):
        N = len(jobs)
        for i in range(N + 2):
            for st in range(3):
                j = i - st
                if 0 <= j < N:
                    for x in jobs[j][st]:
                        g(x)
            if i % g.opts.get("attick", 1) == 1 % g.opts.get("attick", 1):
                g.tick()
            if after and i in after:
                after[i]()

    jobs = [qk_fix(1, 0, KP), qk_fix(1, 1, KP + 2), qk_fix(0, 1, QP), qk_fix(1, 2, KP + 4), qk_fix(0, 2, QP + 2),
            qk_fix(1, 3, KP + 6), qk_fix(0, 3, QP + 4), qk_fix(1, 4, KP + 8), qk_fix(0, 4, QP + 6)]
    pipe(jobs)
    g("s_nop 1")
    prev = {1: (0, M + 8), 2: (1, M + 4), 3: (0, M + 12), 4: (3, M + 4)}
    for t in range(1, 5):
        pt, pm = prev[t]
        d = S + 8 * (t - 1)
        g(f"v_mfma_f32_16x16x16_bf16 {vr(d,4)}, {vr(KP+2*pt,2)}, {vr(QP+2*(t-1),2)}, {vr(pm,4)}")
        g(f"v_mfma_f32_16x16x16_bf16 {vr(d+4,4)}, {vr(KP+2*t,2)}, {vr(QP+2*(t-1),2)}, {vr(M,4)}")
    vdst = {0: VP, 1: VP + 2, 2: VP + 4, 3: VP + 8, 4: VP + 10}
    pipe([v_fix(tt, vdst[tt]) for tt in range(5)])
    g(f"v_mov_b32 v{VP+6}, v{VP}\nv_mov_b32 v{VP+7}, v{VP+1}")
    g.stamp("qk")
    g(f"""
    v_mov_b32 v{V2_AD}, v{V_RED+2}
    v_xor_b32 v{V2_AD+1}, 32, v{V_RED+2}
    v_xor_b32 v{V2_AD+2}, 64, v{V_RED+2}
    v_xor_b32 v{V2_AD+3}, 96, v{V_RED+2}
    """)
    pre = []
    if g.opts.get("earlyA", 0):
        assert not any(x[2] == "WO" for x in g.bg)
        g.vwait("WO")
        g("s_barrier")
        for ks in range(8):
            pre += p2_a_items(ks)
    g0 = g

    class GI:
        def __call__(self, s):
            for ln in s.split("\n"):
                if ln.strip():
                    g0(ln)
                    if pre and ln.strip().startswith("v_") and not ln.strip().startswith("v_mfma"):
                        emit_items(g0, [pre.pop(0)])

        def __getattr__(self, k):
            return getattr(g0, k)
    g = GI()
    X = 36
    for t in range(4):
        d = S + 8 * t
        for r in range(4):
            g(f"v_max_f32 v{d+r}, v{d+r}, v{d+4+r}")
    for t in range(4):
        d = S + 8 * t
        g(f"v_max3_f32 v{X+t}, v{d}, v{d+1}, v{d+2}")
    for t in range(4):
        d = S + 8 * t
        g(f"v_max_f32 v{X+t}, v{X+t}, v{d+3}")
    for op in ("v_permlane16_swap_b32", "v_permlane32_swap_b32"):
        for t in range(4):
            g(f"v_mov_b32 v{X+4+t}, v{X+t}")
        g.tick()
        g("s_nop 0")
        for t in range(4):
            g(f"{op} v{X+t}, v{X+4+t}")
        for t in range(4):
            g(f"v_max_f32 v{X+t}, v{X+t}, v{X+4+t}")
    for t in range(4):
        g(f"v_mul_f32 v{X+t}, {f2h(-0.25 * 1.4426950408889634)}, v{X+t}")
    P = 44
    O = 76
    va = {0: VP, 1: VP + 2, 2: VP + 6, 3: VP + 8}
    for t in range(4):
        d = S + 8 * t
        for r in range(4):
            g(f"v_fma_f32 v{d+r}, v{d+r}, s{S_C}, v{X+t}")
    for t in range(5):
        if t < 4:
            d = S + 8 * t
            for r in range(4):
                g(f"v_exp_f32 v{d+r}, v{d+r}")
        if t >= 1:
            d = S + 8 * (t - 1)
            p = P + 8 * (t - 1)
            if t == 4:
                g("s_nop 0")
            g(f"""
            v_cvt_pk_bf16_f32 v{p}, v{d}, v{d+1}
            v_cvt_pk_bf16_f32 v{p+1}, v{d+2}, v{d+3}
            v_and_b32 v{p+2}, v{M+18}, v{p}
            v_and_b32 v{p+3}, v{M+19}, v{p+1}
            v_and_b32 v{p+4}, v{M+16}, v{p}
            v_and_b32 v{p+5}, v{M+17}, v{p+1}
            """)
        g.tick()
        if t >= 2:
            tt = t - 2
            g(f"v_mfma_f32_16x16x16_bf16 {vr(S+8*tt+4,4)}, {vr(V_ONE2,2)}, {vr(P+8*tt,2)}, 0")
            g(f"v_mfma_f32_16x16x32_bf16 {vr(O+4*tt,4)}, {vr(va[tt],4)}, {vr(P+8*tt+2,4)}, 0")
    g("s_nop 0")
    tt = 3
    g(f"v_mfma_f32_16x16x16_bf16 {vr(S+8*tt+4,4)}, {vr(V_ONE2,2)}, {vr(P+8*tt,2)}, 0")
    g(f"v_mfma_f32_16x16x32_bf16 {vr(O+4*tt,4)}, {vr(va[tt],4)}, {vr(P+8*tt+2,4)}, 0")
    g.stamp("sm")
    OP = 96
    pos = {0: OP, 2: OP + 2, 1: OP + 4, 3: OP + 6}
    for tt in (0, 1):
        g(f"v_rcp_f32 v{S+8*tt+4}, v{S+8*tt+4}")
    for tt in (0, 1):
        for h in range(2):
            g(f"v_pk_mul_f32 {vr(O+4*tt+2*h,2)}, {vr(O+4*tt+2*h,2)}, {vr(S+8*tt+4,2)} op_sel:[0,0] op_sel_hi:[1,0]")
    g(f"v_rcp_f32 v{S+8*2+4}, v{S+8*2+4}")
    for tt in (0, 1):
        for h in range(2):
            g(f"v_cvt_pk_bf16_f32 v{pos[tt]+h}, v{O+4*tt+2*h}, v{O+4*tt+2*h+1}")
    g(f"v_rcp_f32 v{S+8*3+4}, v{S+8*3+4}")
    for tt in (2, 3):
        for h in range(2):
            g(f"v_pk_mul_f32 {vr(O+4*tt+2*h,2)}, {vr(O+4*tt+2*h,2)}, {vr(S+8*tt+4,2)} op_sel:[0,0] op_sel_hi:[1,0]")
    for tt in (2, 3):
        for h in range(2):
            g(f"v_cvt_pk_bf16_f32 v{pos[tt]+h}, v{O+4*tt+2*h}, v{O+4*tt+2*h+1}")
    g(f"""
    s_mov_b32 s{S_T}, 32768
    v_permlane16_swap_b32 v{OP}, v{OP+2}
    v_permlane16_swap_b32 v{OP+1}, v{OP+3}
    v_permlane16_swap_b32 v{OP+4}, v{OP+6}
    v_permlane16_swap_b32 v{OP+5}, v{OP+7}
    """)
    if g.opts.get("osc1", 1):
        g.vm(f"buffer_store_dwordx4 {vr(OP,4)}, v{V_OS}, {sr(S_WS,4)}, 0 offen sc1", "OST")
        g.vm(f"buffer_store_dwordx4 {vr(OP+4,4)}, v{V_OS}, {sr(S_WS,4)}, s{S_T} offen sc1", "OST")
    else:
        g.store([f"buffer_store_dwordx4 {vr(OP,4)}, v{V_OS}, {sr(S_WS,4)}, 0 offen",
                 f"buffer_store_dwordx4 {vr(OP+4,4)}, v{V_OS}, {sr(S_WS,4)}, s{S_T} offen"], "OST")


def signal(g, phase, tags):
    t = g.T
    g(f"""
    v_mov_b32 v{t}, {phase*4096}
    v_mov_b32 v{t+1}, s{S_NONCE}
    """)
    g.vwait(*tags)
    g("s_mov_b64 exec, 1")
    g.store([f"buffer_store_dword v{t+1}, v{t}, {sr(S_WS,4)}, s{S_FLO} offen"], "FLAG")
    g("s_mov_b64 exec, -1")


def poll_issue(g, phase, tag, r=0):
    t = g.T + r
    g(f"s_add_u32 s{S_T+2}, s{S_FLB}, {phase*4096}")
    g.vm(f"buffer_load_dword v{t+2}, v{V_L4}, {sr(S_WS,4)}, s{S_T+2} offen sc1", tag)


def poll_check(g, phase, tag, mask, r=0, slp=False):
    t = g.T + r
    lp = g.lab("poll")
    g.vwait(tag)
    g(f"""
    v_cmp_ne_u32 vcc, s{S_NONCE}, v{t+2}
    s_mov_b32 s{S_T+6}, 0
    s_and_b64 vcc, vcc, s[{mask}:{mask+1}]
    s_cbranch_vccnz {lp}
    {lp}_ok:
    """)
    g.cold.append(f"""{lp}:
    {"s_sleep 4" if slp else ""}
    s_add_u32 s{S_T+2}, s{S_FLB}, {phase*4096}
    s_add_u32 s{S_T+6}, s{S_T+6}, 1
    buffer_load_dword v{t+2}, v{V_L4}, {sr(S_WS,4)}, s{S_T+2} offen sc1
    s_cmp_gt_u32 s{S_T+6}, {SPIN_MAX}
    s_waitcnt vmcnt(0)
    s_cbranch_scc1 {lp}_ok
    v_cmp_ne_u32 vcc, s{S_NONCE}, v{t+2}
    s_and_b64 vcc, vcc, s[{mask}:{mask+1}]
    s_cbranch_vccnz {lp}
    s_branch {lp}_ok""")


def w13_load_items(u):
    return [("vm", f"buffer_load_dwordx4 {ar(8*u,4)}, v{V3_WD}, {sr(S_W1,4)}, s{S_KO} offen", f"W13_{u}"),
            ("vm", f"""buffer_load_dwordx4 {ar(8*u+4,4)}, v{V3_WD}, {sr(S_W3,4)}, s{S_KO} offen
            s_add_u32 s{S_KO}, s{S_KO}, {16*3584}
            s_cmp_lt_u32 s{S_KO}, {512*3584}
            s_cselect_b32 s{S_KO}, s{S_KO}, 0""", f"W13_{u}")]


S_SG = 62
NSLOT = 11


def slot_addr(k):
    if k < 3:
        return S_SG, k * 2048, 0
    if k < 9:
        return S_SG + 1, (k - 3) * 2048, 1
    return S_SG + 2, (k - 9) * 2048, 2


def w13_dma_items(u):
    sb, off, _ = slot_addr(u % NSLOT)
    return [("vm", f"""s_add_u32 m0, s{sb}, {off}
            s_nop 0
            buffer_load_dwordx4 v{V3_WD}, {sr(S_W1,4)}, s{S_KO} offen lds""", f"W13_{u}"),
            ("vm", f"""s_add_u32 m0, s{sb}, {off+1024}
            s_nop 0
            buffer_load_dwordx4 v{V3_WD}, {sr(S_W3,4)}, s{S_KO} offen lds
            s_add_u32 s{S_KO}, s{S_KO}, {16*3584}
            s_cmp_lt_u32 s{S_KO}, {512*3584}
            s_cselect_b32 s{S_KO}, s{S_KO}, 0""", f"W13_{u}")]


V_SGA = 24


def w13_stage_setup(g):
    g(f"""
    s_lshl_b32 s{S_T}, s{S_WAVE}, 10
    s_add_u32 s{S_T}, s{S_T}, {L_MISC}
    v_subrev_u32 v{V_SGA+2}, s{S_T}, v{V3_TR}
    v_add_u32 v{V_SGA}, s{S_SG}, v{V_SGA+2}
    v_add_u32 v{V_SGA+1}, s{S_SG+1}, v{V_SGA+2}
    v_add_u32 v{V_SGA+2}, s{S_SG+2}, v{V_SGA+2}
    """)


def w13_pick_items(g, u):
    _, off, r = slot_addr(u % NSLOT)
    out = [("fn", lambda: g.vwait(f"W13_{u}"), None)]
    for m in range(2):
        for half in range(2):
            out.append(("ds", f"ds_read_b64_tr_b16 {ar(8*u+4*m+2*half,2)}, v{V_SGA+r} offset:{off + m*1024 + half*256}", f"A3_{u}"))
    return out


def w13_xpose_items(g, u):
    out = [("fn", lambda: g.vwait(f"W13_{u}"), None)]
    for m in range(2):
        out.append(("ds", f"ds_write_b128 v{V3_SW}, {ar(8*u+4*m,4)}", f"A3_{u}"))
        for half in range(2):
            out.append(("ds", f"ds_read_b64_tr_b16 {ar(8*u+4*m+2*half,2)}, v{V3_TR} offset:{half*256}", f"A3_{u}"))
    return out


V2_B = 32
V2_A = 96
V2_ACC = 240
V2_AD = 28
L_HKX = 159744 - 8192


def unpack_bf16(g, dst, src, n=8):
    for d in range(n):
        g(f"v_lshlrev_b32 v{dst+2*d}, 16, v{src+d}")
        g(f"v_and_b32 v{dst+2*d+1}, 0xffff0000, v{src+d}")


def p2_areg(ks, a, n=4, off=0):
    if ks < 8:
        return ar(128 + (ks * 4 + a) * 4 + off, n)
    return vr(V2_A + ((ks - 8) * 4 + a) * 4 + off, n)


def p2_a_items(ks, ad=None):
    ad = V2_AD if ad is None else ad
    out = []
    for a in range(4):
        for half in range(2):
            out.append(("ds", f"ds_read_b64_tr_b16 {p2_areg(ks, a, 2, 2*half)}, v{ad+a} offset:{ks*4096 + half*512}", f"A2_{ks}"))
    return out


def p2_pre(g):
    A = S_A
    g(f"""
    s_cmp_lt_u32 s{S_M}, 8
    s_cselect_b32 s6, -1, 0
    s_cselect_b32 s7, 0, -1
    s_lshl_b32 s{S_T}, s{S_TB}, 16
    s_lshr_b32 s{S_T+1}, s{S_WAVE}, 1
    s_lshl_b32 s{S_T+1}, s{S_T+1}, 15
    s_add_u32 s{S_T}, s{S_T}, s{S_T+1}
    s_add_u32 s{A}, s{S_T}, {WS_O}
    s_lshl_b32 s{S_T+1}, s{S_C8}, 12
    s_add_u32 s{S_A2}, s{A}, s{S_T+1}
    s_lshl_b32 s{S_A2+1}, s{S_TB}, 13
    s_lshl_b32 s{S_T+1}, s{S_WAVE}, 11
    s_add_u32 s{S_A2+1}, s{S_A2+1}, s{S_T+1}
    s_add_u32 s{S_A2+1}, s{S_A2+1}, {WS_ST}
    s_lshl_b32 s{S_T+1}, s{S_C8}, 8
    s_add_u32 s{S_A2+2}, s{S_A2+1}, s{S_T+1}
    """)
    g.vwait("XR")
    for d in range(7, -1, -1):
        g(f"v_and_b32 v{V2_ACC+2*d+1}, 0xffff0000, v{V_XRES+d}")
        g(f"v_lshlrev_b32 v{V2_ACC+2*d}, 16, v{V_XRES+d}")


def p2_main(g):
    t = g.T
    A = S_A
    def oload(ks):
        if ks % 2 == 0 and ks:
            g(f"s_add_u32 s{A}, s{A}, 4096")
        g.vm(f"buffer_load_dwordx4 {vr(V2_B+4*ks,4)}, v{V_GA}, {sr(S_WS,4)}, s{A} offen offset:{(ks%2)*2048} sc1", f"B2_{ks}")
    PFO = g.opts.get("pfo", 8)
    late = g.opts.get("_late", [])
    for ks in range(PFO):
        oload(ks)
        emit_items(g, late[:4])
        late = late[4:]
    for ks in range(16):
        g.vwait(f"B2_{ks}")
        g.lwait(f"A2_{ks}")
        if ks + PFO < 16:
            oload(ks + PFO)
        for a in range(4):
            acc = V2_ACC + 4 * a
            g(f"v_mfma_f32_16x16x32_bf16 {vr(acc,4)}, {p2_areg(ks, a)}, {vr(V2_B+4*ks,4)}, {vr(acc,4)}")
            emit_items(g, late[:2])
            late = late[2:]
            assert not any(x[2] == f"A2_{ks+1}" for x in late) or a < 3
        if ks >= 16 - PFO:
            g.tick(1 if ks < 14 else 2)
    g.stamp("p2mfma")
    e = 32
    g(f"""
    v_mov_b32 v{e+2}, s{S_NONCE}
    v_mov_b32 v{e+3}, 0
    s_nop 5
    """)
    H = 40
    for d in range(8):
        g(f"v_cvt_pk_bf16_f32 v{H+d}, v{V2_ACC+2*d}, v{V2_ACC+2*d+1}")
    g(f"v_dot2_f32_bf16 v{e}, v{H}, s{S_ONES}, 0")
    g(f"v_dot2_f32_bf16 v{e+1}, v{H}, v{H}, 0")
    g(f"v_dot2_f32_bf16 v{e+4}, v{H+1}, s{S_ONES}, 0")
    g(f"v_dot2_f32_bf16 v{e+5}, v{H+1}, v{H+1}, 0")
    for d in range(2, 8):
        oo = 4 * (d & 1)
        g(f"v_dot2c_f32_bf16 v{e+oo}, s{S_ONES}, v{H+d}")
        g(f"v_dot2c_f32_bf16 v{e+oo+1}, v{H+d}, v{H+d}")

    def xred(x, y):
        for op in ("v_permlane16_swap_b32", "v_permlane32_swap_b32"):
            g(f"""
            v_mov_b32 v{y}, v{x}
            v_mov_b32 v{y+1}, v{x+1}
            s_nop 0
            {op} v{x}, v{y}
            {op} v{x+1}, v{y+1}
            v_pk_add_f32 {vr(x,2)}, {vr(x,2)}, {vr(y,2)}
            """)
    g(f"""
    v_permlane16_swap_b32 v{H}, v{H+2}
    v_permlane16_swap_b32 v{H+1}, v{H+3}
    v_permlane16_swap_b32 v{H+4}, v{H+6}
    v_pk_add_f32 {vr(e,2)}, {vr(e,2)}, {vr(e+4,2)}
    v_permlane16_swap_b32 v{H+5}, v{H+7}
    """)
    xred(e, e + 4)
    g("s_mov_b64 exec, 0xffff")
    g.store([f"buffer_store_dwordx4 {vr(e,4)}, v{V_L16}, {sr(S_WS,4)}, s{S_A2+2} offen"], "SST")
    g("s_mov_b64 exec, -1")
    g.stamp("p2stat")
    U = 48
    unpack_bf16(g, U, H)
    hk_exchange_write(g)
    p34_pre(g, 0)
    lp = g.lab("sg")
    q = 64
    g(f"""
    s_mov_b32 s{S_T+6}, 0
    {lp}:
    buffer_load_dwordx4 {vr(q,4)}, v{V_L16}, {sr(S_WS,4)}, s{S_A2+1} offen sc1
    buffer_load_dwordx4 {vr(q+4,4)}, v{V_L16}, {sr(S_WS,4)}, s{S_A2+1} offen offset:1024 sc1
    s_add_u32 s{S_T+6}, s{S_T+6}, 1
    s_cmp_gt_u32 s{S_T+6}, {SPIN_MAX}
    s_waitcnt vmcnt(0)
    s_cbranch_scc1 {lp}_x
    v_cmp_ne_u32 vcc, s{S_NONCE}, v{q+2}
    v_cmp_ne_u32 s[{S_T+3}:{S_T+4}], s{S_NONCE}, v{q+6}
    s_or_b64 vcc, vcc, s[{S_T+3}:{S_T+4}]
    s_cbranch_vccnz {lp}
    {lp}_x:
    v_pk_add_f32 {vr(q,2)}, {vr(q,2)}, {vr(q+4,2)}
    """)
    g.vq = []
    g.stamp("p2gath")
    emit_items(g, g.opts.get("_picks", []))
    xred(q, q + 2)
    g(f"""
    v_mul_f32 v{q+4}, {f2h(-1.0/512)}, v{q}
    v_mul_f32 v{q+5}, {f2h(1.0/512)}, v{q+1}
    v_fma_f32 v{q+5}, -v{q+4}, v{q+4}, v{q+5}
    v_max_f32 v{q+5}, 0, v{q+5}
    v_add_f32 v{q+5}, {f2h(1e-5)}, v{q+5}
    v_rsq_f32 v{q+5}, v{q+5}
    s_nop 0
    v_mul_f32 v{q+5}, {f2h(LOG2E)}, v{q+5}
    v_mul_f32 v{q+4}, v{q+4}, v{q+5}
    """)
    for d in range(8):
        a = U + 2 * d
        g(f"v_pk_fma_f32 {vr(a,2)}, {vr(a,2)}, {vr(q+4,2)}, {vr(q+4,2)} op_sel:[0,1,0] op_sel_hi:[1,1,0]")
    for d in range(8):
        g(f"v_cvt_pk_bf16_f32 v{q+8+d}, v{U+2*d}, v{U+2*d+1}")
    g.store([f"buffer_store_dwordx4 {vr(q+8,4)}, v{V_RED+3}, {sr(S_WS,4)}, s{S_A2} offen",
             f"buffer_store_dwordx4 {vr(q+12,4)}, v{V_RED+3}, {sr(S_WS,4)}, s{S_A2} offen offset:2048"], "HST")


def hk_exchange_write(g):
    t = g.T
    g(f"""
    s_cmp_lt_u32 s{S_WAVE}, 2
    s_mov_b32 s{S_T}, {L_MISC}
    s_cselect_b32 s{S_T}, 16384, s{S_T}
    v_add_u32 v{t+4}, s{S_T}, v{V_RED+3}
    """)
    g.ds(f"ds_write_b128 v{t+4}, {vr(40,4)}", "HKW")
    g.ds(f"ds_write_b128 v{t+4}, {vr(44,4)} offset:2048", "HKW")


def hk_exchange_read(g):
    t = g.T
    g(f"""
    s_lshl_b32 s{S_T}, s{S_WAVE}, 10
    v_add_u32 v{t+4}, s{S_T}, v{V_L16}
    """)
    g.ds(f"ds_read_b128 {vr(V_HK,4)}, v{t+4} offset:16384", "HKR")
    g.ds(f"ds_read_b128 {vr(V_HK+4,4)}, v{V3_SW}", "HKR")


V3_ACC = 32
V3_B = 160
V3_E = 192
K1 = 16
TORD = [0, 1, 2, 3]
HPH = [2, 3, 6, 8]
L_SP = 131072


S_A3 = 58


def p3_pre(g):
    A = S_A3
    g(f"""
    s_cmp_lt_u32 s{S_M}, 7
    s_cselect_b32 s{S_T+2}, 2, 0
    s_lshl_b32 s{A}, s{S_G}, 17
    s_lshl_b32 s{A+1}, s{S_WAVE}, 15
    s_xor_b32 s{S_T}, s{S_WAVE}, s{S_T+2}
    s_lshl_b32 s{S_T}, s{S_T}, 15
    s_add_u32 s{A}, s{A}, s{S_T}
    s_add_u32 s{A}, s{A}, {WS_H}
    s_lshl_b32 s{S_K2}, s{S_XCD}, 12
    s_mov_b32 s{S_C}, {f2h(LOG2E*LOG2E)}
    s_mul_i32 s{A+2}, s{S_G}, {4*114688}
    s_lshl_b32 s{S_T+1}, s{S_M}, 13
    s_add_u32 s{A+2}, s{A+2}, s{S_T+1}
    s_lshl_b32 s{S_T+1}, s{S_WAVE}, 11
    s_add_u32 s{A+2}, s{A+2}, s{S_T+1}
    s_add_u32 s{A+2}, s{A+2}, {WS_HH}
    s_mul_i32 s{S_T}, s{S_T+2}, 114688
    s_sub_u32 s0, s{A+2}, s{S_T}
    s_add_u32 s{A+2}, s{A+2}, s{S_T}
    """)


def p3_h_items(b):
    A = S_A3
    out = []
    for i in range(4):
        pre = f"s_add_u32 m0, s{A+1}, {b*4096}\n"
        post = ""
        pre += f"s_add_u32 s{A+3}, s{A}, s{S_K2}\n" if i == 0 else "s_nop 0\n"
        if i == 3:
            post = f"\ns_add_u32 s{S_K2}, s{S_K2}, 4096\ns_and_b32 s{S_K2}, s{S_K2}, 32767"
        out.append(("vm", pre + f"buffer_load_dwordx4 v{V_L16}, {sr(S_WS,4)}, s{A+3} offen offset:{i*1024} sc1 lds" + post, f"H{b}"))
    return out


def p3_epi_sched(j):
    A = V3_ACC + 32 * j
    e = V3_E
    o = V3_E + 16
    st = [
        lambda r: f"v_exp_f32 v{e+r}, -v{A+r}",
        lambda r: f"v_mul_f32 v{A+r}, v{A+r}, v{A+16+r}",
        lambda r: f"v_fma_f32 v{e+r}, v{e+r}, s{S_C}, s{S_C}",
        lambda r: f"v_rcp_f32 v{e+r}, v{e+r}",
        lambda r: f"v_mul_f32 v{A+r}, v{A+r}, v{e+r}",
        lambda r: (f"v_cvt_pk_bf16_f32 v{o+r//2}, v{A+r-1}, v{A+r}" if r % 2 else None),
    ]
    skew = [0, 0, 1, 2, 3, 4]
    out = []
    for step in range(16 + 5):
        for si, f in enumerate(st):
            r = step - skew[si]
            if 0 <= r < 16:
                x = f(r)
                if x:
                    out.append(("v", x, None))
    return out


def p3_hh_store(g, j):
    o = V3_E + 16
    g(f"s_add_u32 s{S_T}, s{S_A3+2 if j < 2 else 0}, {j*114688}")
    g.vm(f"buffer_store_dwordx4 {vr(o,4)}, v{V_L16}, {sr(S_WS,4)}, s{S_T} offen sc1", f"HHST{j}")
    g.vm(f"buffer_store_dwordx4 {vr(o+4,4)}, v{V_L16}, {sr(S_WS,4)}, s{S_T} offen offset:1024 sc1", f"HHST{j}")


def hh_touch(g, j):
    g.vwait(f"HHST{j}")
    emit_items(g, [touch(S_WS, 16, f"s_add_u32 s{S_T+3}, s{S_A+2}, {j*114688}")])


V4_AD = 4
V4_B = 32
NB4 = 16
V4_ACC = 96
V4_R = 240
S_FR = 40
S_X4 = 8
S_M4 = 16


def p34_pre(g, part):
    d = V4_AD
    l = V_L
    if part == 1:
        g(f"""
        s_mov_b64 s[{S_A2+2}:{S_A2+3}], 0x7f
        s_lshl_b64 s[{S_A2+2}:{S_A2+3}], s[{S_A2+2}:{S_A2+3}], s1
        s_mov_b32 s{S_A2}, -1
        s_mov_b32 s{S_A2+1}, 0x00ffffff
        v_add_u32 v{V_RED+3}, s{S_LB}, v{V_L16}
        """)
        return
    g(f"""
    s_lshr_b32 s{S_T+2}, s{S_M}, 3              ; kh
    s_lshl_b32 s{S_T+3}, s{S_T+2}, 2
    s_add_u32 s{S_T+3}, s{S_T+3}, s{S_WAVE}     ; K eighth
    s_mul_i32 s{S_W2O}, s{S_T+3}, {224*1024}
    s_lshl_b32 s{S_LB}, s{S_WAVE}, 15
    s_lshl_b32 s{S_LB+1}, s{S_WAVE}, 13
    s_add_u32 s{S_LB+1}, s{S_LB+1}, {L_SP}
    s_mul_i32 s{S_T+1}, s{S_T+3}, {14*1024}
    s_add_u32 s{S_T+1}, s{S_T+1}, {WS_HH}
    s_mul_i32 s{S_T}, s{S_TB}, {2*114688}
    s_add_u32 s{S_X4+2}, s{S_T}, s{S_T+1}
    s_add_u32 s{S_X4+3}, s{S_X4+2}, 114688
    s_xor_b32 s{S_T+4}, s{S_TB}, 1
    s_mul_i32 s{S_T}, s{S_T+4}, {2*114688}
    s_add_u32 s{S_X4}, s{S_T}, s{S_T+1}
    s_add_u32 s{S_X4+1}, s{S_X4}, 114688
    s_mul_i32 s1, s{S_T+3}, 7
    s_xor_b32 s{S_T}, s{S_M}, 8
    s_lshl_b32 s{S_T}, s{S_T}, 2
    s_add_u32 s{S_T}, s{S_T}, s{S_WAVE}
    s_mov_b64 s[{S_M4}:{S_M4+1}], 1
    s_lshl_b64 s[{S_M4}:{S_M4+1}], s[{S_M4}:{S_M4+1}], s{S_T}
    s_lshl_b32 s{S_T}, s{S_C8}, 12
    s_lshl_b32 s{S_T+1}, s{S_WAVE}, 10
    s_add_u32 s{S_T}, s{S_T}, s{S_T+1}
    s_add_u32 s{S_T}, s{S_T}, {WS_X}
    s_lshl_b32 s{S_T+1}, s{S_T+4}, 16
    s_add_u32 s{S_M4+2}, s{S_T}, s{S_T+1}
    s_lshl_b32 s{S_T+1}, s{S_TB}, 16
    s_add_u32 s{S_M4+3}, s{S_T}, s{S_T+1}
    s_and_b32 s{S_T}, s{S_WAVE}, 1
    s_lshl_b32 s{S_T}, s{S_T}, 5
    v_xor_b32 v{d}, s{S_T}, v{V_TR}
    v_xor_b32 v{d+1}, 64, v{d}
    v_add_u32 v{d+2}, s{S_LB}, v{d}
    v_add_u32 v{d+3}, s{S_LB}, v{d+1}
    v_add_u32 v{d+4}, s{S_LB+1}, v{d}
    v_add_u32 v{d+5}, s{S_LB+1}, v{d+1}
    s_sub_u32 s{S_T}, s{S_LB+1}, s{S_SG}
    v_add_u32 v{d+6}, s{S_T}, v{V_SGA}          ; ring (w13 image)
    s_lshl_b32 s{S_T}, s{S_TB}, 16
    s_lshl_b32 s{S_T+1}, s{S_C8}, 7
    s_add_u32 s{S_T}, s{S_T}, s{S_T+1}
    s_lshl_b32 s{S_T+1}, s{S_WAVE}, 5
    s_add_u32 s{S_T}, s{S_T}, s{S_T+1}
    v_and_b32 v{d+7}, 31, v{l}
    v_lshlrev_b32 v{d+7}, 10, v{d+7}
    v_lshrrev_b32 v{d+8}, 5, v{l}
    v_lshl_add_u32 v{d+7}, v{d+8}, 4, v{d+7}
    v_add_u32 v{d+7}, s{S_T}, v{d+7}
    v_add_u32 v{d+8}, 7168, v{V_D128}           ; second half of a w2 kstep: +8192 global, offset:1024 adds the rest
    v_add_u32 v{d+9}, 32768, v{V_L16}
    s_sub_u32 s{S_T}, s{S_LB}, s{S_SG}
    v_add_u32 v{d+10}, s{S_T}, v{V_SGA}         ; own tile region (w13 image)
    s_cmp_eq_u32 s{S_WAVE}, 3
    s_cselect_b32 s{S_FR}, 2048, s{S_LB}
    s_sub_u32 s{S_T}, s{S_FR}, s{S_SG}
    v_add_u32 v{d+11}, s{S_T}, v{V_SGA}
    v_add_u32 v27, s{S_FR}, v{d}
    v_add_u32 v28, s{S_FR}, v{d+1}
    """)
    for i in range(1, 4):
        g(f"""
        s_xor_b32 s{S_T}, s{S_WAVE}, {i%4}
        s_lshl_b32 s{S_T}, s{S_T}, 15
        s_add_u32 s{S_T}, s{S_T}, {((i-1) if i < 4 else 0)*2048}
        v_add_u32 v{V_RED+i-1}, s{S_T}, v{V_L16}
        """)


def w2_dma_items(ks, sb, off):
    return [("vm", f"""s_add_u32 m0, s{sb}, {off}
            s_add_u32 s{S_T+5}, s{S_W2O}, {ks*16*1024}
            buffer_load_dwordx4 v{V_D128}, {sr(S_W2,4)}, s{S_T+5} offen lds""", f"W2_{ks}"),
            ("vm", f"buffer_load_dwordx4 v{V4_AD+8}, {sr(S_W2,4)}, s{S_T+5} offen offset:1024 lds", f"W2_{ks}")]


def w2_pick_items(g, ks, base, off):
    out = [("fn", lambda: g.vwait(f"W2_{ks}"), None)]
    for ia in range(2):
        for half in range(2):
            out.append(("ds", f"ds_read_b64_tr_b16 {ar(8*ks+4*ia+2*half,2)}, v{base+ia} offset:{off + half*512}", f"A4_{ks}"))
    return out


def w13_ring_dma(u, off, sb=S_LB + 1):
    return [("vm", f"""s_add_u32 m0, s{sb}, {off}
            s_nop 0
            buffer_load_dwordx4 v{V3_WD}, {sr(S_W1,4)}, s{S_KO} offen lds
            s_add_u32 m0, s{sb}, {off+1024}""", f"W13_{u}"),
            ("vm", f"""buffer_load_dwordx4 v{V3_WD}, {sr(S_W3,4)}, s{S_KO} offen lds
            s_add_u32 s{S_KO}, s{S_KO}, {16*3584}
            s_cmp_lt_u32 s{S_KO}, {512*3584}
            s_cselect_b32 s{S_KO}, s{S_KO}, 0""", f"W13_{u}")]


def w13_ring_pick(g, u, off, va=V4_AD + 6):
    out = [("fn", lambda: g.vwait(f"W13_{u}"), None)]
    for m in range(2):
        for half in range(2):
            out.append(("ds", f"ds_read_b64_tr_b16 {ar(8*u+4*m+2*half,2)}, v{va} offset:{off + m*1024 + half*256}", f"A3_{u}"))
    return out


W2_PARK = {}


def p3_main(g, npre):
    o = g.opts
    KA = o.get("ka", 18)
    K3 = o.get("k3", 18)
    seq = []
    for u in range(KA):
        seq += [(j, u) for j in ((0, 1, 2, 3) if u < K3 else (0, 1, 2))]
    for j in (0, 1, 2):
        seq += [(j, u) for u in range(KA, 32)]
    seq += [(3, u) for u in range(K3, 32)]
    assert len(seq) == 128
    first = {}
    lastu = {}
    done = {}
    for n, (j, u) in enumerate(seq):
        first.setdefault(u, n)
        lastu[u] = n
        done[j] = n
    PF = 4

    def bread(n):
        j, u = seq[n]
        a = V_L16 if j < 2 else V3_HB
        return ("ds", f"ds_read_b128 {vr(V3_B+4*(n%8),4)}, v{a} offset:{(j%2)*32768 + u*1024}", f"B3_{n}")

    extra = {}

    def put(step, items, half=1):
        extra.setdefault(2 * step + half, []).extend(items)

    LAG13 = o.get("lag13", 16)
    LAG2 = o.get("lag2", 18)
    busy = set()
    bar = {b: first[4 * b] - PF for b in range(1, 8)}
    for b in range(2, 8):
        if bar[b] - bar[b - 1] < 8:
            bar[b] = bar[b - 1]
    hst = {}
    nxt = 1000
    for b in range(7, 1, -1):
        hst[b] = max(2 * (b - 2), min(bar[b] - o.get("hlead", 16), nxt - o.get("hgap", 8)))
        nxt = hst[b]
        busy.update((hst[b], hst[b] + 1))
    slots = [[0, 1000, 0, k * 2048, None] for k in range(4)]
    for b in range(2, 8):
        for k in range(2):
            slots.append([0, hst[b], 1, b * 4096 + k * 2048, None])
    for b in range(0, 6):
        lead_done = max(n for n, (j, u) in enumerate(seq) if j < 3 and u // 4 == b)
        fb = [bar[x] for x in bar if bar[x] > lead_done + 1]
        if fb:
            slots.append([min(fb) + 1, 1000, 2, b * 4096, None])
    SB = [S_LB + 1, S_LB, S_FR]
    VA13 = [V4_AD + 6, V4_AD + 10, V4_AD + 11]
    VA2 = [V4_AD + 4, V4_AD + 2, 27]
    q13 = list(range(npre, 32))
    q2 = list(range(14))
    st = 0
    last2 = -100
    last13 = -100
    per13 = o.get("per13", 270) / 100.0
    t13 = 0.0
    while q13 or q2:
        assert st < 126, ("ring overflow", q13, q2)
        if st in busy:
            st += 1
            continue
        ok13 = q13 and st >= t13
        ok2 = q2 and st >= o.get("w2s", 64) and st >= last2 + o.get("w2d", 3)
        if ok13:
            kind, x = "w13", q13[0]
            pk = min(st + LAG13, first[x] - 2)
        elif ok2:
            kind, x = "w2", q2[0]
            pk = min(max(st + LAG2, lastu[x] + 2), 127)
        else:
            st += 1
            continue
        fr = [sl for sl in slots if sl[0] <= st and pk + 2 <= sl[1]]
        if not fr:
            st += 1
            continue
        sl = min(fr, key=lambda z: (z[1], z[0]))
        off = sl[3]
        pre = []
        if sl[4]:
            pre = [("fn", lambda tg=sl[4]: g.lwait(tg), None)]
        busy.add(st)
        if kind == "w13":
            q13.pop(0)
            t13 = max(t13 + per13, st + 1)
            it = w13_ring_dma(x, off, SB[sl[2]])
            if pk - st < LAG13:
                print("  short lag for unit", x, pk - st)
            assert pk > st, (x, st)
            put(pk, w13_ring_pick(g, x, off, VA13[sl[2]]))
            sl[4] = f"A3_{x}"
        else:
            q2.pop(0)
            last2 = st
            it = w2_dma_items(x, SB[sl[2]], off)
            put(pk, w2_pick_items(g, x, VA2[sl[2]], off))
            sl[4] = f"A4_{x}"
        put(st, pre + it[:1], 0); put(st, it[1:], 1)
        sl[0] = pk + 2
        st += 1
    for b in range(2, 8):
        tags = [sl[4] for sl in slots if sl[2] == 1 and sl[3] // 4096 == b and sl[4]]
        pre = [("fn", lambda tags=tags: g.lwait(*tags), None)] if tags else []
        it = p3_h_items(b)
        st = hst[b]
        put(st, pre + it[0:1], 0); put(st, it[1:2], 1); put(st + 1, it[2:3], 0); put(st + 1, it[3:4], 1)
    print("p3 stream ends at step", max(busy))
    h0 = 2 * (done[0] + 1) + 4
    hend = 256
    span = (hend - h0) // 3
    stst = []
    for i in range(3):
        ep = p3_epi_sched(i)
        base = max(h0 + i * span, 2 * (done[i] + 1) + 4)
        sp = h0 + (i + 1) * span - base - 1
        for k, it in enumerate(ep):
            extra.setdefault(base + k * sp // len(ep), []).append(it)
        extra.setdefault(base + sp, []).append(("fn", lambda j=i: p3_hh_store(g, j), None))
        stst.append(base + sp)
    sd = 2 * o.get("sigd", 10)
    late = []
    for i in range(2):
        if stst[i] + sd < 256:
            extra.setdefault(stst[i] + sd, []).append(("fn", lambda i=i: signal(g, HPH[i], [f"HHST{i}"]), None))
        else:
            late.append(i)
    assert not late
    nf = 0
    pc = o.get("pol0c", 124)
    if 2 * (pc - 6) >= stst[0] + sd + 2 * o.get("polgap", 3) and pc < 127:
        put(pc - 6, [("fn", lambda: poll_issue(g, HPH[0], "POLLH0"), None)])
        put(pc, [("fn", lambda: poll_check(g, HPH[0], "POLLH0", S_A2 + 2), None)])
        nf = o.get("nf4", 8)
        for i in range(nf):
            stp = min(127, pc + 1 + i)
            assert i < 8 or 2 * stp > stst[1]
            put(stp, [("fn", lambda i=i: p4_load(g, i), None)], 1)
    print("early p4 loads:", nf)

    g.vwait("H0")
    g.lwait_all()
    g("s_barrier")
    g.stamp("p3start")
    for n in range(PF):
        emit_items(g, [bread(n)])
    for n, (j, u) in enumerate(seq):
        bs = [b for b in bar if bar[b] == n]
        if bs:
            g.vwait(f"H{max(bs)}")
            g("s_barrier")
        g.lwait(f"B3_{n}", f"A3_{u}")
        A = V3_ACC + 32 * j
        for m in range(2):
            a = A + 16 * m
            c = "0" if u == 0 else vr(a, 16)
            g(f"v_mfma_f32_32x32x16_bf16 {vr(a,16)}, {ar(8*u+4*m,4)}, {vr(V3_B+4*(n%8),4)}, {c}")
            if m == 0 and n + PF < len(seq):
                emit_items(g, [bread(n + PF)])
            emit_items(g, extra.get(2 * n + m, []))
        if n == 63:
            g.stamp("p3pass1")
        if n in (7, 15, 23, 31, 39, 47, 55, 71, 79, 87, 95, 103, 111, 119):
            g.stamp(f"p3s{n}")
    g.stamp("p3mfma")
    return nf


def p4_load(g, n):
    sl, ks = n // 14, n % 14
    if ks % 4 == 0:
        g(f"s_add_u32 s{S_T+4}, s{S_X4+sl}, {(ks//4)*4096}")
    g.vm(f"buffer_load_dwordx4 {vr(V4_B+4*(n%NB4),4)}, v{V_L16}, {sr(S_WS,4)}, s{S_T+4} offen offset:{(ks%4)*1024} sc1", f"B4_{n}")


def p4_ship_items(sl):
    out = []
    for i, r0 in enumerate([8, 16, 24]):
        a = V4_ACC + 32 * sl + r0
        for q in range(2):
            out.append(("ds", f"ds_write_b128 v{V_RED+i}, {vr(a+4*q,4)} offset:{sl*6144 + q*1024}", f"RW{sl}"))
    return out


def p4_get_items(g, sl):
    out = [("fn", lambda: (g.lwait(f"RW{sl}"), g("s_barrier")), None)]
    for i in range(6):
        out.append(("ds", f"ds_read_b128 {vr(V4_ACC+32*sl+8+4*i,4)}, v{V_RED+3} offset:{sl*6144 + i*1024}", f"RR{sl}"))
    return out


def padd(d, x, y, pk):
    if pk:
        return [("v", f"v_pk_add_f32 {vr(d,2)}, {vr(x,2)}, {vr(y,2)}", None)]
    return [("v", f"v_add_f32 v{d}, v{x}, v{y}", None), ("v", f"v_add_f32 v{d+1}, v{x+1}, v{y+1}", None)]


def p4_add_items(g, sl, pk=False):
    a = V4_ACC + 32 * sl
    out = [("fn", lambda: g.lwait(f"RR{sl}"), None)]
    for d in range(4):
        out += padd(a + 2 * d, a + 2 * d, a + 8 + 2 * d, pk)
        out += padd(a + 16 + 2 * d, a + 16 + 2 * d, a + 24 + 2 * d, pk)
    for d in range(4):
        out += padd(a + 2 * d, a + 2 * d, a + 16 + 2 * d, pk)
    return out


def p4_send(g, sl):
    a = V4_ACC + 32 * sl
    for d in range(4):
        g(f"v_cvt_pk_bf16_f32 v{a+8+d}, v{a+2*d}, v{a+2*d+1}")
    va = V_L16 if sl == 0 else V4_AD + 9
    g.vm(f"buffer_store_dwordx4 {vr(a+8,4)}, v{va}, {sr(S_WS,4)}, s{S_M4+2} offen sc1", f"XST{sl}")


def p4_recv(g, ti):
    va = V_L16 if ti == 0 else V4_AD + 9
    g.vm(f"buffer_load_dwordx4 {vr(V4_R+4*ti,4)}, v{va}, {sr(S_WS,4)}, s{S_M4+3} offen sc1", f"XLD{ti}")


def p4_extra_items(g, src, dst, pk=False):
    out = []
    for d in range(4):
        out.append(("v", f"v_lshlrev_b32 v{dst+8+2*d}, 16, v{src+d}", None))
        out.append(("v", f"v_and_b32 v{dst+9+2*d}, 0xffff0000, v{src+d}", None))
    for d in range(4):
        out += padd(dst + 2 * d, dst + 2 * d, dst + 8 + 2 * d, pk)
    return out


def p4_out(g, sl):
    a = V4_ACC + 32 * sl
    for d in range(4):
        g(f"v_cvt_pk_bf16_f32 v{a+8+d}, v{a+2*d}, v{a+2*d+1}")
    fl = " " + g.opts.get("outfl", "sc0")
    if sl == 2:
        g.vm(f"buffer_store_dwordx4 {vr(a+8,4)}, v{V4_AD+7}, {sr(S_OUT,4)}, 0 offen{fl}", "OUT")
    else:
        g(f"s_mov_b32 s{S_T}, 32768")
        g.vm(f"buffer_store_dwordx4 {vr(a+8,4)}, v{V4_AD+7}, {sr(S_OUT,4)}, s{S_T} offen{fl}", "OUT")


def p4_main(g, nloaded):
    o = g.opts
    PFN = o.get("pf4", 10)
    g.lwait_all()
    g.stamp("p4pre")
    ex = {}

    def put(hs, items, step=1):
        for i, it in enumerate(items):
            ex.setdefault(hs + int(i * step), []).append(it)
    F = lambda f: [("fn", f, None)]
    put(1, F(lambda: signal(g, HPH[2], ["HHST2"])))
    put(2 * o.get("sig3b", 6), F(lambda: signal(g, HPH[3], ["HHST3"])))
    put(2 * 8, F(lambda: g("s_barrier")))
    pol = {1: (-1, o.get("p1c", 4)), 2: (o.get("p2i", 9), o.get("p2c", 18)), 3: (o.get("p3i", 22), o.get("p3c", 32))}
    put(2 * 16, p4_ship_items(0), 1.5)
    put(2 * 21, p4_get_items(g, 0), 0.5)
    put(2 * 23 + 1, p4_add_items(g, 0), 0.25)
    put(2 * 27, F(lambda: p4_send(g, 0)))
    put(2 * 29 + 1, p4_ship_items(1), 1)
    put(2 * 33, p4_get_items(g, 1), 0.34)
    put(2 * 35, p4_add_items(g, 1), 0.25)
    put(2 * 38 + 1, F(lambda: p4_send(g, 1)))
    put(2 * o.get("xs1", 47), F(lambda: signal(g, 4, ["XST0", "XST1"])))
    put(2 * 43 + 1, p4_ship_items(2), 1)
    put(2 * 48, p4_get_items(g, 2), 0.34)
    put(2 * 50, p4_add_items(g, 2), 0.25)
    put(2 * o.get("xp1", 50), F(lambda: poll_issue(g, 4, "POLL4")))
    put(2 * o.get("xc1", 53), F(lambda: (poll_check(g, 4, "POLL4", S_M4), p4_recv(g, 0), p4_recv(g, 1))))
    put(2 * 53 + 1, p4_extra_items(g, V_HK, V4_ACC + 64), 0.25)
    nl = nloaded
    for n in range(56):
        sl, ks = n // 14, n % 14
        if n in (7, 14, 21, 28, 35, 42, 49):
            g.stamp(f"p4n{n}")
        for sx, (pi, pc) in pol.items():
            if n == pi:
                poll_issue(g, HPH[sx], f"POLLH{sx}", sx & 1)
            if n == pc:
                poll_check(g, HPH[sx], f"POLLH{sx}", S_A2 + 2, sx & 1)
        g.vwait(f"B4_{n}")
        for ia in range(2):
            a = V4_ACC + 32 * sl + 16 * ia
            c = "0" if ks == 0 else vr(a, 16)
            g(f"v_mfma_f32_32x32x16_bf16 {vr(a,16)}, {ar(8*ks+4*ia,4)}, {vr(V4_B+4*(n%NB4),4)}, {c}")
            if nl < 56 and nl <= n + PFN and (nl < 14 or n >= pol[nl // 14][1]):
                p4_load(g, nl)
                nl += 1
            emit_items(g, ex.get(2 * n + ia, []))
    g.stamp("p4mfma")
    g("s_nop 1")
    R = V4_B
    unpack_bf16(g, R, V_HK + 4, 4)
    g("s_nop 1")
    emit_items(g, p4_ship_items(3))
    g.vwait("XLD1")
    emit_items(g, p4_extra_items(g, V4_R + 4, R, True))
    emit_items(g, p4_get_items(g, 3))
    emit_items(g, p4_extra_items(g, V4_R, V4_ACC + 64, True))
    p4_out(g, 2)
    emit_items(g, p4_add_items(g, 3, True))
    a = V4_ACC + 96
    for d in range(4):
        g(f"v_pk_add_f32 {vr(a+2*d,2)}, {vr(a+2*d,2)}, {vr(R+2*d,2)}")
    p4_out(g, 3)


def write_stamps(g):
    if not g.stamps:
        return
    g(f"""
    s_waitcnt lgkmcnt(0) vmcnt(0)
    s_lshl_b32 s{S_T}, s2, 2
    s_add_u32 s{S_T}, s{S_T}, s{S_WAVE}
    s_lshl_b32 s{S_T}, s{S_T}, 6
    s_add_u32 s{S_T}, s{S_T}, {WS_STAMP}
    v_mov_b32 v2, 0
    """)
    for i in range(g.nst):
        g(f"v_mov_b32 v3, s{S_STAMP+2*i}")
        g(f"buffer_store_dword v3, v2, {sr(S_WS,4)}, s{S_T} offen offset:{i*4}")
    g(f"v_mov_b32 v3, s{S_FAST}")
    g(f"buffer_store_dword v3, v2, {sr(S_WS,4)}, s{S_T} offen offset:60")


def build(stamps=False, opts=None):
    g = G(stamps, opts)
    o = g.opts
    for k_ in ("srow", "x", "pre", "w"):
        if o.get("nt" + k_, 1 if k_ in ("srow", "x") else 0):
            NT[k_] = " nt"
    n_a = o.get("n_a", 0)
    n_b = o.get("n_b", 4)
    n_c = o.get("n_c", 5)
    n_d = o.get("n_d", 2)
    prologue(g)
    code_prefetch(g, o.get("codesz", 28672))
    p1_setup(g)
    g("s_waitcnt lgkmcnt(0)")
    g.srd(S_WQKV, 54, 55, 1572864)
    g(f"s_mov_b32 s{S_DBG}, s60\ns_mov_b32 s{S_DBG+1}, s61")
    g.srd(S_WS, 62, 63, WS_SIZE)
    g.srd(S_WO, 66, 67, 524288)
    g.srd(S_X, 52, 53, 2097152)
    p1_setup_offsets(g)
    g.stamp("args")
    x0 = p1_dma_x(0)
    emit_items(g, [touch_res3(g, S_WQKV, 12)] + p1_dma_w(0) + x0[:3])
    g.stamp("i2")
    nonce_publish(g)
    dfr = setup_deferred(g)
    setup_rest(g)
    emit_items(g, dfr)
    p1_stats_addr(g)
    g.stamp("setup")
    emit_items(g, x0[3:])
    if o.get("ord", 1) == 0:
        emit_items(g, p1_dma_w(1) + p1_srow_items())
    else:
        emit_items(g, p1_srow_items() + p1_dma_w(1))
    g.stamp("issued")
    assert n_a <= NSLOT
    g.bg += wo_dma_items()
    for u in range(min(3, n_a)):
        g.bg += w13_dma_items(u)
    p1_gemm(g)
    g("s_barrier")
    for u in range(3, n_a):
        g.bg += w13_dma_items(u)
    g.skip = o.get("askip", 100)
    p1_attention(g)
    g.skip = 0
    g.tick(100)
    g.T = 16
    g.stamp("attn")
    u0 = n_a
    assert n_a + n_b <= NSLOT
    for u in range(u0, u0 + n_b):
        emit_items(g, w13_dma_items(u))
    ea = o.get("earlyA", 0)
    rest = []
    for ks in range(8 if ea else 0, 16):
        rest += p2_a_items(ks)
    if ea:
        emit_items(g, rest[8:24])
    w13_stage_setup(g)
    p2_pre(g)
    signal(g, 0, ["OST", "WO"])
    g.stamp("p1done")
    poll_issue(g, 0, "POLL1")
    if not ea:
        g("s_barrier")
        na0 = o.get("na0", 24)
        emit_items(g, rest[:na0])
        o["_late"] = rest[na0:]
    else:
        emit_items(g, rest[:8])
        o["_late"] = rest[24:]
    p3_pre(g)
    for u in range(n_a):
        emit_items(g, w13_pick_items(g, u))
    poll_check(g, 0, "POLL1", 6)
    g.stamp("f1")
    if n_a:
        g.lwait(f"A3_{n_a-1}")
    u0 += n_b
    assert n_b + n_c + n_d <= NSLOT
    for u in range(u0, u0 + n_c):
        g.bg += w13_dma_items(u)
    o["_picks"] = [it for u in range(n_a, u0 + n_c) for it in w13_pick_items(g, u)]
    p2_main(g)
    assert not g.bg
    u0 += n_c
    for u in range(u0, u0 + n_d):
        emit_items(g, w13_dma_items(u))
    npre = u0 + n_d
    signal(g, 1, ["HST"])
    g.stamp("p2done")
    poll_issue(g, 1, "POLL2")
    g("s_mov_b64 s[6:7], -1")
    p34_pre(g, 1)
    for u in range(u0, npre):
        emit_items(g, w13_pick_items(g, u))
    g.lwait_all()
    g("s_barrier")
    hk_exchange_read(g)
    g(f"s_cmp_ge_u32 s{S_M}, 14\ns_cbranch_scc1 L_idle3")
    poll_check(g, 1, "POLL2", 6)
    g.stamp("f2")
    emit_items(g, p3_h_items(0) + p3_h_items(1))
    got = p3_main(g, npre)
    nf = got if got else 8
    ep = p3_epi_sched(TORD[3])
    if not got:
        poll_issue(g, HPH[0], "POLLH0")
    g("s_nop 7\ns_nop 3")
    emit_items(g, ep[:40])
    if not got:
        poll_check(g, HPH[0], "POLLH0", S_A2 + 2)
        for i in range(nf):
            p4_load(g, i)
    poll_issue(g, HPH[1], "POLLH1", 1)
    emit_items(g, ep[40:])
    p3_hh_store(g, TORD[3])
    g.stamp("p3done")
    g("L_p4:")
    p4_main(g, nf)
    g.stamp("end")
    write_stamps(g)
    g("L_done:\ns_endpgm")
    g("L_idle3:")
    g.vq = []
    g.lq = []
    if o.get("idlepf", 1):
        g(f"""
        s_and_b32 s{S_T}, s{S_G}, 1
        s_lshl_b32 s{S_T}, s{S_T}, 1
        s_and_b32 s{S_T+1}, s{S_M}, 1
        s_add_u32 s{S_T}, s{S_T}, s{S_T+1}
        s_mul_i32 s{S_T}, s{S_T}, {448*1024}
        s_lshl_b32 s{S_T+1}, s{S_WAVE}, 13
        s_add_u32 s{S_T}, s{S_T}, s{S_T+1}
        s_min_u32 s{S_T+1}, s{S_XCD}, 6
        s_lshl_b32 s{S_T+1}, s{S_T+1}, 16
        s_add_u32 s{S_T+1}, s{S_T+1}, s{S_T}
        buffer_load_dword v3, v2, {sr(S_W2,4)}, s{S_T+1} offen
        s_add_u32 s{S_T+1}, s{S_T+1}, 32768
        buffer_load_dword v3, v2, {sr(S_W2,4)}, s{S_T+1} offen
        """)
        if o.get("idr3", 1):
            g(f"""
            v_lshlrev_b32 v{g.T+5}, 10, v{V_L}
            s_mul_i32 s{S_T+1}, s{S_WAVE}, {112*1024 - 8192}
            s_add_u32 s{S_T+1}, s{S_T+1}, s{S_T}
            s_waitcnt vmcnt(0)
            buffer_load_dword v3, v{g.T+5}, {sr(S_W2,4)}, s{S_T+1} offen offset:384
            s_add_u32 s{S_T+1}, s{S_T+1}, {56*1024}
            buffer_load_dword v3, v{g.T+5}, {sr(S_W2,4)}, s{S_T+1} offen offset:384
            """)
        for _ in range(o.get("idsl", 0)):
            g("s_sleep 16")
        for j in [0, 7, 1, 8, 2, 9, 3, 10, 4, 11, 5, 12, 6, 13][:o.get('idn', 0)]:
            g(f"s_add_u32 s{S_T+1}, s{S_T}, {j*32768}")
            g(f"buffer_load_dword v3, v2, {sr(S_W2,4)}, s{S_T+1} offen")
    for ks in range(14):
        emit_items(g, w2_dma_items(ks, S_LB, ks * 2048))
    for ks in range(14):
        emit_items(g, w2_pick_items(g, ks, V4_AD + 2, ks * 2048))
    g.lwait_all()
    if o.get("wbl2", 1):
        g(f"""
        s_cmp_lg_u32 s{S_IDXW}, {31*4}
        s_cbranch_scc1 L_nowb
        buffer_wbl2 sc1
        L_nowb:
        """)
    poll_issue(g, HPH[0], "POLLH0")
    poll_check(g, HPH[0], "POLLH0", S_A2 + 2, slp=True)
    for i in range(nf):
        p4_load(g, i)
    poll_issue(g, HPH[1], "POLLH1", 1)
    g.vwait_all()
    g("s_branch L_p4")
    for c in g.cold:
        g(c)
    return g


if __name__ == "__main__":
    out = sys.argv[1] if len(sys.argv) > 1 else "k.s"
    stamps = "--stamps" in sys.argv
    if "--cyc" in sys.argv:
        stamps = "cyc"
    opts = {}
    if "--slow" in sys.argv:
        opts["slow"] = True
    for a in sys.argv:
        if a.startswith("--st="):
            opts["stsel"] = a[5:].split(",")
        if a.startswith("--o:"):
            k, v = a[4:].split("=")
            opts[k] = int(v) if v.lstrip("-").isdigit() else v
    g = build(stamps, opts)
    emit_file(out, [g.k], single=True)
    print("stamps:", g.nst, g.stnames, "lines:", len(g.k.lines))
```

```python
import sys
import struct
from asmlib import *

KNAME = "sequential_preLN__sliding_local_dilated__glu_gated_swiglu__prompt_kernel"

WS_GRP = 0x100000
WS_O = 0x00000
WS_H = 0x00000
WS_X = 0x20000
WS_HH = 0x40000
WS_ST = 0xB0000
WS_S1 = 0xB8000
WS_FL = 0xC0000
WS_STAMP = 0xD0000
WS_SIZE = WS_GRP
SPIN_MAX = 400000
LOG2E = 1.4426950408889634

S_NONCE = 3
S_IDXW = 4
S_FLO = 5
S_X, S_WQKV, S_WO, S_W1, S_W3, S_W2, S_OUT, S_WS = 8, 12, 16, 20, 24, 28, 32, 36
S_DBG = 100
S_WAVE = 42
S_XCD = 43
S_FAST = 44
S_G = 45
S_M = 46
S_TB = 47
S_KH = 41
S_C8 = 48
S_T = 49
S_ONES = 56
S_XOFF = 57
S_WOFF = 61
S_SW = 65
S_EXM = 66
S_LB = 68
S_C = 70
S_FLB = 71
S_STAMP = 72
S_KO = 66
S_A = 57
S_A2 = 12
S_K2 = 65
S_W2O = 67


NT = {}


def f2h(x):
    return "0x%08x" % struct.unpack("<I", struct.pack("<f", x))[0]


def vr(a, n):
    return f"v[{a}:{a+n-1}]"


def ar(a, n):
    return f"a[{a}:{a+n-1}]"


def sr(a, n):
    return f"s[{a}:{a+n-1}]"


class G:
    def __init__(self, stamps=False, opts=None):
        self.k = Kernel(KNAME, 256, 256, 160 * 1024, nvgpr=256, nagpr=256)
        self.vq = []
        self.lq = []
        self.stamps = stamps
        self.nst = 0
        self.stnames = []
        self.opts = opts or {}
        self.nlab = 0
        self.bg = []
        self.cold = []
        self.T = 212

    def __call__(self, s):
        self.k(s)

    def lab(self, base):
        self.nlab += 1
        return f"L_{base}_{self.nlab}"

    def tick(self, n=1):
        if getattr(self, "skip", 0) > 0:
            self.skip -= 1
            return
        for _ in range(n):
            if self.bg:
                emit_items(self, [self.bg.pop(0)])

    def vm(self, ins, tag):
        self.k(ins)
        self.vq.append(tag)

    def store(self, ins, tag):
        a = self.lab("slow")
        self.k(f"s_cmp_eq_u32 s{S_FAST}, 0\ns_cbranch_scc1 {a}")
        for x in ins:
            self.k(x)
        self.k(f"{a}_j:")
        self.cold.append(f"{a}:\n" + "\n".join(x + " sc1" for x in ins) + f"\ns_branch {a}_j")
        self.vq += [tag] * len(ins)

    def vwait(self, *tags):
        last = -1
        for i, t in enumerate(self.vq):
            if t in tags:
                last = i
        if last < 0:
            return
        n = len(self.vq) - 1 - last
        if n > 63:
            n = 63
            last = len(self.vq) - 1 - 63
        self.k(f"s_waitcnt vmcnt({n})")
        self.vq = self.vq[last + 1:]

    def vwait_all(self):
        self.k("s_waitcnt vmcnt(0)")
        self.vq = []

    def ds(self, ins, tag):
        self.k(ins)
        self.lq.append(tag)

    def lwait(self, *tags):
        last = -1
        for i, t in enumerate(self.lq):
            if t in tags:
                last = i
        if last < 0:
            return
        n = len(self.lq) - 1 - last
        if n > 15:
            n = 15
            last = len(self.lq) - 1 - 15
        self.k(f"s_waitcnt lgkmcnt({n})")
        self.lq = self.lq[last + 1:]

    def lwait_all(self):
        self.k("s_waitcnt lgkmcnt(0)")
        self.lq = []

    def stamp(self, name):
        if not self.stamps:
            return
        sel = self.opts.get("stsel")
        if sel is not None and name not in sel:
            return
        r = S_STAMP + 2 * self.nst
        assert r + 1 <= 99, "too many stamps"
        self.k(f"{'s_memtime' if self.stamps == 'cyc' and self.nst > 0 else 's_memrealtime'} s[{r}:{r+1}]")
        self.nst += 1
        self.stnames.append(name)

    def srd(self, s, lo, hi, size):
        self(f"s_mov_b32 s{s}, s{lo}\ns_and_b32 s{s+1}, s{hi}, 0xffff\ns_mov_b32 s{s+2}, {size}\ns_mov_b32 s{s+3}, 0x20000")


def emit_items(g, items):
    for kind, ins, tag in items:
        if kind == "ds":
            g.ds(ins, tag)
        elif kind == "vm":
            g.vm(ins, tag)
        elif kind == "fn":
            ins()
        else:
            g(ins)


def sched(g, mf, slots):
    for i, x in enumerate(mf):
        g(x)
        emit_items(g, slots.get(i, []))


def spread(slots, items, lo, hi):
    n = hi - lo
    for j, it in enumerate(items):
        slots.setdefault(lo + j * n // len(items), []).append(it)


V_L = 1
V_TR = 224
V_D128 = 226
V_L16 = 227
V_RED = 228
V_XO = 232
V3_WD = 233
V3_TR = 234
V3_SW = 235
V3_HB = 236
V_GA = 237
V_OS = 238
V_L4 = 239
V_XRES = 240
V_HK = 248
V_XD = 4
V_WD = 9
V_XR = 10
V_WR = 14
V_MK = 16
V_ACC = 36
V_AF = 96
V_BF = 120
V_NM2 = 160
V_SR = 160
V_NM = 200
V_NA = 210
V_S1A = 220
V_ONE2 = 222

L_X = 0
L_W = 61440
L_MISC = 159744
L_WO = 45056


def prologue(g):
    g.stamp("start")
    g(f"""
    s_cmp_ge_u32 s2, 256
    s_cbranch_scc1 L_done
    s_load_dwordx2 s[{S_WQKV}:{S_WQKV+1}], s[0:1], 8
    s_load_dwordx2 s[{S_X}:{S_X+1}], s[0:1], 0
    s_load_dwordx2 s[{S_DBG}:{S_DBG+1}], s[0:1], 64
    s_load_dwordx2 s[{S_WS}:{S_WS+1}], s[0:1], 72
    s_load_dwordx2 s[{S_WO}:{S_WO+1}], s[0:1], 16
    s_load_dwordx8 s[{S_STAMP+20}:{S_STAMP+27}], s[0:1], 32
    v_lshrrev_b32 v2, 6, v0
    v_and_b32 v1, 63, v0
    s_and_b32 s{S_XCD}, s2, 7
    v_readfirstlane_b32 s{S_WAVE}, v2
    s_lshr_b32 s{S_T+1}, s2, 3
    s_lshr_b32 s{S_T}, s{S_T+1}, 4
    s_lshl_b32 s{S_G}, s{S_XCD}, 1
    s_add_u32 s{S_G}, s{S_G}, s{S_T}
    s_and_b32 s{S_M}, s{S_T+1}, 15
    s_lshl_b32 s{S_IDXW}, s{S_T+1}, 2
    s_add_u32 s{S_IDXW}, s{S_IDXW}, s{S_WAVE}
    s_lshr_b32 s{S_KH}, s{S_M}, 3
    s_lshl_b32 s{S_TB}, s{S_G}, 1
    s_add_u32 s{S_TB}, s{S_TB}, s{S_KH}
    s_and_b32 s{S_C8}, s{S_M}, 7
    """)


def code_prefetch(g, nbytes):
    g(f"""
    s_getpc_b64 s[6:7]
    v_lshlrev_b32 v2, 7, v{V_L}
    s_lshl_b32 s{S_T}, s{S_IDXW}, 8
    v_add_u32 v4, s{S_T}, v2
    v_min_u32 v4, {nbytes}, v4
    s_mov_b64 exec, 3
    """)
    g.vm("global_load_dword v3, v4, s[6:7]", "PF")
    g("s_mov_b64 exec, -1")
    g("s_memrealtime s[6:7]")


def p1_setup(g):
    l = V_L
    t = g.T
    g(f"""
    v_lshrrev_b32 v{t+2}, 3, v{l}
    v_bfe_u32 v{t+3}, v{l}, 4, 1
    s_and_b32 s{S_T}, s{S_WAVE}, 1
    s_lshl_b32 s{S_T}, s{S_T}, 1
    v_or_b32 v{t+3}, s{S_T}, v{t+3}
    v_lshlrev_b32 v{t+3}, 1, v{t+3}
    v_and_b32 v{t+4}, 7, v{l}
    v_xor_b32 v{t+3}, v{t+3}, v{t+4}
    s_lshl_b32 s{S_T}, s{S_WAVE}, 3
    v_add_u32 v{t+2}, s{S_T}, v{t+2}
    v_mul_u32_u24 v{t+2}, 3072, v{t+2}
    v_lshl_add_u32 v{t+2}, v{t+3}, 4, v{t+2}
    s_lshl_b32 s{S_T}, s{S_C8}, 7
    v_add_u32 v{V_WD}, s{S_T}, v{t+2}
    s_lshl_b32 s{S_LB}, s{S_WAVE}, 10
    s_mul_i32 s{S_LB+1}, s{S_WAVE}, 3072
    v_lshrrev_b32 v{t}, 4, v0                 ; p = tid>>4
    v_and_b32 v{t+1}, 15, v{l}
    v_xor_b32 v{t+1}, v{t+1}, v{t}
    v_lshlrev_b32 v{t+1}, 4, v{t+1}
    s_lshl_b32 s{S_T+1}, s{S_TB}, 16          ; T0*1024
    v_add_u32 v{t+1}, s{S_T+1}, v{t+1}
    v_lshl_add_u32 v{V_XD+1}, v{t}, 11, v{t+1}
    s_lshr_b32 s{S_T}, s{S_WAVE}, 1           ; p>>3
    s_mul_i32 s{S_T}, s{S_T}, {17*1024}
    s_add_u32 s{S_T}, s{S_T}, {15*1024}
    v_subrev_u32 v{V_XD}, s{S_T}, v{V_XD+1}   ; 2p - 16(p>>3) - 15 - (p>>3)
    v_lshlrev_b32 v{V_L16}, 4, v{l}
    v_min_u32 v{V_SR+17}, 9, v{t}
    s_mul_i32 s{S_T}, s{S_C8}, 10
    v_add_u32 v{V_SR+17}, s{S_T}, v{V_SR+17}  ; e = delta + 16
    s_sub_u32 s{S_T}, s{S_T+1}, {16*1024}
    v_and_b32 v{t+2}, 0xf0, v{V_L16}
    v_lshl_add_u32 v{t+2}, v{V_SR+17}, 10, v{t+2}
    v_add_u32 v{V_SR+16}, s{S_T}, v{t+2}
    """)


def p1_setup_offsets(g):
    g(f"""
    s_cmp_eq_u32 s{S_WAVE}, 0
    s_cselect_b32 s{S_EXM}, 0xffff0000, -1
    s_mov_b32 s{S_EXM+1}, -1
    {["s_mov_b32 s%d, s%d" % (S_T, S_XCD), "s_add_u32 s%d, s%d, s%d" % (S_T, S_XCD, S_TB), "s_lshl_b32 s%d, s%d, 1" % (S_T, S_G) + chr(10) + "s_add_u32 s%d, s%d, s%d" % (S_T, S_T, S_XCD)][g.opts.get("rot", 0)]}
    s_and_b32 s{S_T}, s{S_T}, 3
    s_lshr_b32 s{S_T+2}, s{S_XCD}, 2
    s_mul_i32 s{S_SW}, s{S_T+2}, {64*3072}
    """)
    for q in range(4):
        g(f"""
        s_add_u32 s{S_T+1}, s{S_T}, {q}
        s_and_b32 s{S_T+1}, s{S_T+1}, 3
        s_lshl_b32 s{S_XOFF+q}, s{S_T+1}, 8
        s_mul_i32 s{S_WOFF+q}, s{S_T+1}, {128*3072}
        """)


def p1_srow_items():
    return [("vm", f"buffer_load_dwordx4 {vr(V_SR+4*i,4)}, v{V_SR+16}, {sr(S_X,4)}, 0 offen offset:{256*i}{NT.get('srow','')}", "SROW") for i in range(4)]


def nonce_publish(g):
    lab = g.lab("nolead")
    t = g.T
    g(f"""
    s_lshl_b32 s{S_T}, s{S_G}, 2
    v_mov_b32 v{V_NA}, s{S_T}
    s_or_b32 s{S_T+1}, s{S_M}, s{S_WAVE}
    s_cmp_lg_u32 s{S_T+1}, 0
    s_cbranch_scc1 {lab}
    s_or_b32 s{S_T+1}, s6, 1
    v_mov_b32 v{t+6}, s{S_T+1}
    s_mov_b64 exec, 1
    global_store_dword v{V_NA}, v{t+6}, s[{S_DBG}:{S_DBG+1}] sc1
    s_mov_b64 exec, -1
    {lab}:
    """)


def nonce_poll_issue(g):
    g.vm(f"global_load_dword v{V_NA+1}, v{V_NA}, s[{S_DBG}:{S_DBG+1}] sc1", "NONCE")


def nonce_check(g):
    lp = g.lab("nl")
    g.vwait("NONCE")
    g(f"""
    v_readfirstlane_b32 s{S_NONCE}, v{V_NA+1}
    s_mov_b32 s{S_T+6}, 0
    s_cmp_eq_u32 s{S_NONCE}, 0
    s_cbranch_scc1 {lp}
    {lp}_ok:
    """)
    g.cold.append(f"""{lp}:
    global_load_dword v{V_NA+1}, v{V_NA}, s[{S_DBG}:{S_DBG+1}] sc1
    s_add_u32 s{S_T+6}, s{S_T+6}, 1
    s_waitcnt vmcnt(0)
    v_readfirstlane_b32 s{S_NONCE}, v{V_NA+1}
    s_cmp_gt_u32 s{S_T+6}, {SPIN_MAX}
    s_cbranch_scc1 {lp}_ok
    s_cmp_eq_u32 s{S_NONCE}, 0
    s_cbranch_scc1 {lp}
    s_branch {lp}_ok""")


def p1_stats_addr(g):
    e = V_SR + 17
    b = V_SR + 18
    g(f"""
    v_lshrrev_b32 v{b}, 1, v{e}
    v_and_b32 v{b+1}, 1, v{e}
    v_lshl_add_u32 v{b+2}, v{b+1}, 5, v{b}
    v_add_u32 v{b+2}, 8, v{b+2}
    v_xor_b32 v{b+1}, 1, v{b+1}
    v_lshl_add_u32 v{b}, v{b+1}, 3, v{b}
    v_cmp_gt_u32 vcc, 16, v{e}
    s_nop 1
    v_cndmask_b32 v{e}, v{b+2}, v{b}, vcc
    v_lshlrev_b32 v{e}, 3, v{e}
    """)


def p1_stats_compute(g):
    R = V_SR
    a = R + 18
    g.vwait("SROW")
    for i in range(2):
        g(f"v_dot2_f32_bf16 v{a+2*i}, v{R+i}, s{S_ONES}, 0")
        g(f"v_dot2_f32_bf16 v{a+2*i+1}, v{R+i}, v{R+i}, 0")
    for d in range(2, 16):
        i = d & 1
        g(f"v_dot2c_f32_bf16 v{a+2*i}, s{S_ONES}, v{R+d}")
        g(f"v_dot2c_f32_bf16 v{a+2*i+1}, v{R+d}, v{R+d}")
    g(f"""
    s_lshl_b32 s{S_T+2}, s{S_KH}, 10
    s_add_u32 s{S_T+2}, s{S_T+2}, {WS_S1}
    s_nop 0
    v_pk_add_f32 {vr(a,2)}, {vr(a,2)}, {vr(a+2,2)}
    s_nop 1
    """)
    for sh in (8, 4, 2, 1):
        g(f"v_add_f32_dpp v{a}, v{a}, v{a} row_ror:{sh} row_mask:0xf bank_mask:0xf")
        g(f"v_add_f32_dpp v{a+1}, v{a+1}, v{a+1} row_ror:{sh} row_mask:0xf bank_mask:0xf")
        g("s_nop 0")
    g(f"""
    v_mul_f32 v{a+2}, {f2h(-1.0/512)}, v{a}
    v_mul_f32 v{a+3}, {f2h(1.0/512)}, v{a+1}
    v_fma_f32 v{a+3}, -v{a+2}, v{a+2}, v{a+3}
    v_max_f32 v{a+3}, 0, v{a+3}
    v_add_f32 v{a+3}, {f2h(1e-5)}, v{a+3}
    v_rsq_f32 v{a+3}, v{a+3}
    s_mov_b32 exec_lo, 0x00010001
    s_mov_b32 exec_hi, 0x00010001
    """)
    assert a % 2 == 0
    g.vm(f"buffer_store_dwordx2 {vr(a+2,2)}, v{R+17}, {sr(S_WS,4)}, s{S_T+2} offen sc1", "S1ST")
    g("s_mov_b64 exec, -1")


def p1_started(g):
    lab = g.lab("nostart")
    t = g.T
    g(f"""
    s_cmp_lg_u32 s{S_WAVE}, 0
    s_cbranch_scc1 {lab}
    s_getreg_b32 s{S_T+4}, hwreg(HW_REG_XCC_ID)
    s_and_b32 s{S_T+4}, s{S_T+4}, 15
    s_lshl_b32 s{S_T+5}, s{S_M}, 3
    s_add_u32 s{S_T+5}, s{S_T+5}, s{S_FLB}
    v_mov_b32 v{t+2}, {7*4096}
    v_mov_b32 v{t}, s{S_NONCE}
    v_mov_b32 v{t+1}, s{S_T+4}
    s_mov_b64 exec, 1
    buffer_store_dwordx2 {vr(t,2)}, v{t+2}, {sr(S_WS,4)}, s{S_T+5} offen sc1
    s_mov_b64 exec, -1
    {lab}:
    """)


def setup_rest(g):
    l = V_L
    t = g.T
    a = S_STAMP + 20
    g(f"""
    s_mov_b32 s{S_ONES}, 0x3f803f80
    s_mov_b32 s{S_FLB}, 0
    s_add_u32 s{S_FLB}, s{S_FLB}, {WS_FL}
    s_lshl_b32 s{S_T}, s{S_M}, 4
    s_lshl_b32 s{S_T+1}, s{S_WAVE}, 2
    s_add_u32 s{S_FLO}, s{S_T}, s{S_T+1}
    s_add_u32 s{S_FLO}, s{S_FLO}, s{S_FLB}
    v_lshlrev_b32 v{V_L4}, 2, v{l}
    v_lshrrev_b32 v{t}, 4, v{l}            ; g
    v_and_b32 v{t+1}, 15, v{l}             ; r
    v_xor_b32 v{t+2}, v{t}, v{t+1}
    s_lshr_b32 s{S_T+2}, s{S_XCD}, 2
    s_lshl_b32 s{S_T+2}, s{S_T+2}, 3
    v_xor_b32 v{t+2}, s{S_T+2}, v{t+2}
    v_lshlrev_b32 v{t+3}, 8, v{t+1}
    """)
    for ks in range(4):
        g(f"""
        v_xor_b32 v{t+4}, {4*ks}, v{t+2}
        v_lshl_add_u32 v{V_XR+ks}, v{t+4}, 4, v{t+3}
        """)
    g(f"""
    v_mul_u32_u24 v{t+2}, 3072, v{t}
    v_bfe_u32 v{t+3}, v{l}, 2, 2
    v_lshl_add_u32 v{t+2}, v{t+3}, 7, v{t+2}
    v_bfe_u32 v{t+3}, v{l}, 3, 2
    v_xor_b32 v{t+3}, s{S_WAVE}, v{t+3}
    v_lshl_add_u32 v{t+2}, v{t+3}, 5, v{t+2}
    v_and_b32 v{t+3}, 3, v{l}
    v_lshl_add_u32 v{t+2}, v{t+3}, 3, v{t+2}
    v_add_u32 v{V_WR}, {L_W}, v{t+2}
    v_add_u32 v{V_WR+1}, {L_W+49152}, v{t+2}
    """)
    lab = g.lab("noones")
    g(f"""
    v_mov_b32 v{t+4}, s{S_ONES}
    v_mov_b32 v{t+5}, s{S_ONES}
    v_mov_b32 v{t+6}, s{S_ONES}
    v_mov_b32 v{t+7}, s{S_ONES}
    v_mov_b32 v{V_ONE2}, s{S_ONES}
    v_mov_b32 v{V_ONE2+1}, s{S_ONES}
    v_min_u32 v{t+2}, 2, v{t}
    v_mul_u32_u24 v{t+2}, 20480, v{t+2}
    v_lshl_add_u32 v{t+2}, v{t+1}, 4, v{t+2}
    s_cmp_lg_u32 s{S_WAVE}, 0
    s_cbranch_scc1 {lab}
    ds_write_b128 v{t+2}, {vr(t+4,4)} offset:{L_X}
    {lab}:
    v_lshlrev_b32 v{V_S1A}, 3, v{t+1}          ; r*8
    v_lshlrev_b32 v{V_S1A+1}, 5, v{t}          ; g*32
    """)


class Rec:
    def __init__(self, g):
        self.g = g
        self.items = []
        self.T = g.T

    def __call__(self, s):
        self.items.append(("v", s, None))

    def lab(self, b):
        return self.g.lab(b)

    def srd(self, s, lo, hi, size):
        self(f"s_mov_b32 s{s}, s{lo}\ns_and_b32 s{s+1}, s{hi}, 0xffff\ns_mov_b32 s{s+2}, {size}\ns_mov_b32 s{s+3}, 0x20000")


def setup_deferred(g0):
    g = Rec(g0)
    l = V_L
    t = 184
    a = S_STAMP + 20
    g.srd(S_W1, a, a + 1, 1835008)
    g.srd(S_W3, a + 2, a + 3, 1835008)
    g.srd(S_W2, a + 4, a + 5, 1835008)
    g.srd(S_OUT, a + 6, a + 7, 2097152)
    g(f"""
    v_lshrrev_b32 v{t}, 4, v{l}
    v_and_b32 v{t+1}, 15, v{l}
    """)
    M = V_MK
    big = f2h(-1e30)
    g(f"""
    v_lshlrev_b32 v{t+2}, 2, v{t}
    v_sub_u32 v{t+3}, v{t+2}, v{t+1}           ; d0 = 4g - q (signed)
    s_cmp_eq_u32 s{S_TB}, 0
    s_cselect_b32 s0, {big}, 0
    s_mov_b32 s1, {big}
    v_mov_b32 v{t+5}, s1
    v_mov_b32 v{t+6}, s0
    v_mov_b32 v{M+16}, 0
    v_mov_b32 v{M+17}, 0
    """)
    for r in range(4):
        g(f"""
        v_add_u32 v{t+4}, {r+7}, v{t+3}
        v_cmp_gt_u32 vcc, 8, v{t+4}
        v_mov_b32 v{t+7}, {hex(0xffff << (16*(r&1)))}
        s_nop 0
        v_cndmask_b32 v{M+r}, v{t+5}, 0, vcc
        v_cndmask_b32 v{t+7}, 0, v{t+7}, vcc
        v_or_b32 v{M+16+r//2}, v{M+16+r//2}, v{t+7}
        v_add_u32 v{t+4}, {r}, v{t+3}
        v_cmp_lt_i32 vcc, 8, v{t+4}                ; d >= 9
        s_nop 1
        v_cndmask_b32 v{M+4+r}, v{t+5}, 0, vcc
        v_cndmask_b32 v{M+8+r}, v{t+5}, v{t+6}, vcc
        v_cmp_lt_i32 vcc, 0, v{t+4}                ; d >= 1
        v_cmp_gt_u32 s[6:7], 2, v{t}   ; c <= 7  <=> g < 2
        s_and_b64 vcc, vcc, s[6:7]
        s_nop 1
        v_cndmask_b32 v{M+12+r}, v{t+5}, v{t+6}, vcc
        """)
    g(f"""
    v_not_b32 v{M+18}, v{M+16}
    v_not_b32 v{M+19}, v{M+17}
    """)
    g(f"""
    s_lshl_b32 s0, s{S_KH}, 16
    s_lshl_b32 s1, s{S_C8}, 12
    s_add_u32 s0, s0, s1
    s_lshl_b32 s1, s{S_WAVE}, 10
    s_add_u32 s0, s0, s1
    s_add_u32 s0, s0, {WS_O}
    v_lshrrev_b32 v{t+2}, 5, v{l}
    v_lshlrev_b32 v{t+2}, 9, v{t+2}
    v_lshl_add_u32 v{t+2}, v{t+1}, 5, v{t+2}
    v_and_b32 v{t+3}, 1, v{t}
    v_lshl_add_u32 v{t+2}, v{t+3}, 4, v{t+2}
    v_add_u32 v{V_OS}, s0, v{t+2}
    """)
    g(f"""
    v_lshrrev_b32 v{t+2}, 3, v{l}
    v_lshlrev_b32 v{t+2}, 10, v{t+2}
    v_bfe_u32 v{t+3}, v{l}, 4, 1
    v_lshlrev_b32 v{t+3}, 2, v{t+3}
    v_and_b32 v{t+4}, 7, v{l}
    v_xor_b32 v{t+3}, v{t+3}, v{t+4}
    v_lshl_add_u32 v{t+2}, v{t+3}, 4, v{t+2}
    s_lshl_b32 s0, s{S_C8}, 7
    v_add_u32 v{V_D128}, s0, v{t+2}
    """)
    lab = g.lab("w13ok")
    g(f"""
    v_lshrrev_b32 v{t+2}, 2, v{l}
    v_mul_u32_u24 v{t+2}, 3584, v{t+2}
    v_and_b32 v{t+3}, 3, v{l}
    v_lshl_add_u32 v{t+2}, v{t+3}, 4, v{t+2}
    s_lshl_b32 s0, s{S_M}, 8
    s_lshl_b32 s1, s{S_WAVE}, 6
    s_add_u32 s0, s0, s1
    s_cmp_lt_u32 s{S_M}, 14
    s_cselect_b32 s0, s0, 0x40000000
    v_add_u32 v{V3_WD}, s0, v{t+2}
    """)
    g(f"""
    v_bfe_u32 v{t+3}, v{l}, 4, 1
    v_lshlrev_b32 v{t+2}, 5, v{t+3}
    v_and_b32 v{t+3}, 1, v{l}
    v_lshl_add_u32 v{t+2}, v{t+3}, 4, v{t+2}
    v_bfe_u32 v{t+3}, v{l}, 1, 1
    v_lshl_add_u32 v{t+2}, v{t+3}, 3, v{t+2}  ; (G&1)*32 + (c&1)*16 + (c>>1)*8
    v_lshrrev_b32 v{t+4}, 5, v{l}
    v_lshlrev_b32 v{t+4}, 3, v{t+4}
    v_bfe_u32 v{t+3}, v{l}, 2, 2
    v_add_u32 v{t+4}, v{t+4}, v{t+3}          ; 8h + r
    v_lshl_add_u32 v{t+5}, v{t+4}, 7, v{t+2}
    v_lshl_add_u32 v{t+6}, v{t+4}, 6, v{t+2}
    v_bfe_u32 v{t+3}, v{l}, 3, 1
    s_lshr_b32 s0, s{S_WAVE}, 1
    v_xor_b32 v{t+3}, s0, v{t+3}
    v_lshl_add_u32 v{V_TR}, v{t+3}, 6, v{t+5}
    v_xor_b32 v{V_TR+1}, 64, v{V_TR}
    s_lshl_b32 s0, s{S_WAVE}, 10
    s_add_u32 s0, s0, {L_MISC}
    v_add_u32 v{V3_TR}, s0, v{t+6}
    v_add_u32 v{V3_SW}, s0, v{V_L16}
    v_add_u32 v{V3_HB}, 65536, v{V_L16}
    """)
    g(f"""
    v_lshrrev_b32 v{t+2}, 3, v{l}
    v_lshlrev_b32 v{t+2}, 10, v{t+2}
    v_bfe_u32 v{t+3}, v{l}, 4, 1
    v_lshlrev_b32 v{t+3}, 1, v{t+3}
    v_and_b32 v{t+4}, 7, v{l}
    v_xor_b32 v{t+3}, v{t+3}, v{t+4}
    v_lshl_add_u32 v{t+2}, v{t+3}, 4, v{t+2}
    s_lshl_b32 s0, s{S_C8}, 7
    v_add_u32 v{V_RED}, s0, v{t+2}
    v_xor_b32 v{V_RED+1}, 64, v{V_RED}
    v_lshlrev_b32 v{t+2}, 10, v{t}
    v_bfe_u32 v{t+3}, v{l}, 2, 2
    v_lshl_add_u32 v{t+2}, v{t+3}, 7, v{t+2}
    v_bfe_u32 v{t+3}, v{l}, 3, 2
    v_lshl_add_u32 v{t+2}, v{t+3}, 5, v{t+2}
    v_and_b32 v{t+3}, 3, v{l}
    v_lshl_add_u32 v{t+2}, v{t+3}, 3, v{t+2}
    v_add_u32 v{V_RED+2}, {L_WO}, v{t+2}
    s_and_b32 s0, s{S_WAVE}, 1
    s_lshl_b32 s0, s0, 8
    v_lshlrev_b32 v{t+2}, 4, v{t+1}
    v_add_u32 v{t+2}, s0, v{t+2}
    v_lshl_add_u32 v{V_GA}, v{t}, 9, v{t+2}
    v_and_b32 v{t+3}, 1, v{t}
    v_lshl_add_u32 v{t+2}, v{t+3}, 10, v{t+2}
    v_lshrrev_b32 v{t+3}, 1, v{t}
    v_lshl_add_u32 v{V_RED+3}, v{t+3}, 9, v{t+2}
    s_lshl_b32 s0, s{S_TB}, 16
    s_lshl_b32 s1, s{S_WAVE}, 14
    s_add_u32 s0, s0, s1
    s_lshl_b32 s1, s{S_C8}, 7
    s_add_u32 s0, s0, s1
    v_lshlrev_b32 v{t+2}, 10, v{t+1}
    v_lshl_add_u32 v{t+2}, v{t}, 3, v{t+2}
    v_add_u32 v{V_XO}, s0, v{t+2}
    """)
    out = []
    for _, txt, _ in g.items:
        lines = [x.strip() for x in txt.split("\n") if x.strip() and not x.strip().startswith(";")]
        i = 0
        while i < len(lines):
            if lines[i].startswith("s_cmp"):
                out.append(("v", lines[i] + "\n" + lines[i + 1], None))
                i += 2
            else:
                out.append(("v", lines[i], None))
                i += 1
    return out


def touch(srd, nlines, pre, va="v2", off=0):
    o = f" offset:{off}" if off else ""
    return ("vm", f"""{pre}
    s_mov_b64 exec, {hex((1 << nlines) - 1)}
    buffer_load_dword v3, {va}, {sr(srd,4)}, s{S_T+3} offen{o}
    s_mov_b64 exec, -1""", "PF")


def touch_w13(i):
    pre = f"""s_and_b32 s{S_T+3}, s{S_XCD}, 3
    s_lshl_b32 s{S_T+3}, s{S_T+3}, 1
    s_lshr_b32 s{S_T+2}, s{S_XCD}, 2
    s_add_u32 s{S_T+3}, s{S_T+3}, s{S_T+2}
    s_lshl_b32 s{S_T+3}, s{S_T+3}, 7
    s_add_u32 s{S_T+3}, s{S_T+3}, s{S_IDXW}
    s_mul_i32 s{S_T+3}, s{S_T+3}, 896"""
    return touch(S_W1 if i % 2 == 0 else S_W3, 7, pre)


def touch_wo(j):
    pre = f"""s_add_u32 s{S_T+3}, s{S_XCD}, {j}
    s_and_b32 s{S_T+3}, s{S_T+3}, 1
    s_lshl_b32 s{S_T+3}, s{S_T+3}, 18
    s_lshl_b32 s{S_T+2}, s{S_IDXW}, 11
    s_add_u32 s{S_T+3}, s{S_T+3}, s{S_T+2}"""
    return touch(S_WO, 16, pre)


def touch_res3(g, srd, nlines):
    t = g.T + 7
    return touch(srd, nlines, f"v_lshlrev_b32 v{t}, 10, v{V_L}\ns_mul_i32 s{S_T+3}, s{S_IDXW}, {nlines*1024}", f"v{t}", 384)


def p1_dma_x(q):
    slot = q % 3
    out = []
    rowoff = [0, 0, 32 * 1024, 1024, 33 * 1024]
    for i in range(5):
        pre = f"s_add_u32 m0, s{S_LB}, {L_X + slot*20480 + i*4096}\n"
        if i == 0:
            pre += f"s_mov_b64 exec, s[{S_EXM}:{S_EXM+1}]\n"
            ins = pre + f"buffer_load_dwordx4 v{V_XD}, {sr(S_X,4)}, s{S_XOFF+q} offen{NT.get('x','')} lds\ns_mov_b64 exec, -1"
        else:
            pre += f"s_add_u32 s{S_T+1}, s{S_XOFF+q}, {rowoff[i]}\n"
            ins = pre + f"buffer_load_dwordx4 v{V_XD+1}, {sr(S_X,4)}, s{S_T+1} offen{NT.get('x','')} lds"
        out.append(("vm", ins, f"X{q}"))
    return out


def p1_dma_w(s):
    slot = s % 4
    q = s // 2
    out = []
    for hi in range(2):
        if s & 1:
            pre = f"s_sub_u32 s{S_T}, {64*3072 + hi*32*3072}, s{S_SW}\n"
        else:
            pre = f"s_add_u32 s{S_T}, {hi*32*3072}, s{S_SW}\n"
        pre += f"s_add_u32 m0, s{S_LB+1}, {L_W + slot*24576 + hi*4*3072}\n"
        pre += f"s_add_u32 s{S_T}, s{S_T}, s{S_WOFF+q}\n"
        for p in range(3):
            out.append(("vm", (pre if p == 0 else "") + f"buffer_load_dwordx4 v{V_WD}, {sr(S_WQKV,4)}, s{S_T} offen offset:{p*1024}{NT.get('w','')} lds", f"W{s}"))
    return out


def p1_read_frags(n):
    s = n // 2
    kk = n % 2
    buf = n & 1
    q = n // 4
    ks = n % 4
    slot = s % 4
    wa = V_WR + (slot // 2)
    ins = []
    for p in range(3):
        for half in range(2):
            d = V_AF + buf * 12 + p * 4 + half * 2
            off = (slot % 2) * 24576 + kk * 12288 + p * 1024 + half * 512
            ins.append(f"ds_read_b64_tr_b16 {vr(d,2)}, v{wa} offset:{off}")
    for t in range(5):
        d = V_BF + buf * 20 + t * 4
        ins.append(f"ds_read_b128 {vr(d,4)}, v{V_XR+ks} offset:{L_X + (q%3)*20480 + t*4096}")
    return ins


def acc1(p, t):
    return V_ACC + (p * 5 + t) * 4


def p1_mfmas(n):
    buf = n & 1
    ins = []
    for t in range(5):
        for p in range(3):
            a = acc1(p, t)
            c = "0" if n == 0 else vr(a, 4)
            w = vr(V_AF + buf * 12 + p * 4, 4)
            x = vr(V_BF + buf * 20 + t * 4, 4)
            if p == 2:
                w, x = x, w
            ins.append(f"v_mfma_f32_16x16x32_bf16 {vr(a,4)}, {w}, {x}, {c}")
    return ins


def poll_started_issue(g):
    t = g.T
    g(f"s_add_u32 s{S_T+4}, s{S_FLB}, {7*4096}")
    g.vm(f"buffer_load_dwordx2 {vr(t,2)}, v{V_S1A}, {sr(S_WS,4)}, s{S_T+4} offen sc1", "POLL0")


def poll_started_check(g):
    t = g.T
    lp = g.lab("pst")
    g.vwait("POLL0")
    g(f"""
    v_cmp_ne_u32 vcc, s{S_NONCE}, v{t}
    s_mov_b32 s{S_T+6}, 0
    s_cbranch_vccnz {lp}
    {lp}_ok:
    v_readfirstlane_b32 s{S_T+4}, v{t+1}
    s_lshl_b32 s{S_T+5}, s{S_KH}, 10
    s_add_u32 s{S_T+5}, s{S_T+5}, {WS_S1}
    v_cmp_ne_u32 vcc, s{S_T+4}, v{t+1}
    s_nop 0
    s_cmp_eq_u64 vcc, 0
    s_cselect_b32 s{S_FAST}, {0 if g.opts.get('slow') else 1}, 0
    """)
    g.cold.append(f"""{lp}:
    buffer_load_dwordx2 {vr(t,2)}, v{V_S1A}, {sr(S_WS,4)}, s{S_T+4} offen sc1
    s_add_u32 s{S_T+6}, s{S_T+6}, 1
    s_cmp_gt_u32 s{S_T+6}, {SPIN_MAX}
    s_waitcnt vmcnt(0)
    s_cbranch_scc1 {lp}_ok
    v_cmp_ne_u32 vcc, s{S_NONCE}, v{t}
    s_cbranch_vccnz {lp}
    s_branch {lp}_ok""")


def nm_dma_items():
    return [("vm", f"""s_lshl_b32 s{S_T+4}, s{S_WAVE}, 10
    s_add_u32 m0, s{S_T+4}, {L_MISC}
    s_add_u32 s{S_T+4}, s{S_T+4}, {L_MISC}
    buffer_load_dwordx4 v{V_L16}, {sr(S_WS,4)}, s{S_T+5} offen sc1 lds
    v_add_u32 v{V_S1A}, s{S_T+4}, v{V_S1A}
    v_add_u32 v{V_S1A+1}, s{S_T+4}, v{V_S1A+1}""", "NM")]


def nm_read_items(g):
    out = [("fn", lambda: g.vwait("NM"), None)]
    for tt in range(5):
        out.append(("ds", f"ds_read_b64 {vr(V_NM+2*tt,2)}, v{V_S1A} offset:{tt*128}", "NMR"))
    for tt in range(5):
        for h in range(2):
            out.append(("ds", f"ds_read_b128 {vr(V_NM2+8*tt+4*h,4)}, v{V_S1A+1} offset:{tt*128+16*h}", "NMR"))
    return out


def wo_dma_items():
    out = []
    for i in range(16):
        pre = ""
        if i == 0:
            pre = f"""s_lshl_b32 s{S_LB}, s{S_WAVE}, 14
            s_add_u32 s{S_LB}, s{S_LB}, {L_WO}
            s_lshl_b32 s{S_LB+1}, s{S_WAVE}, 17
            """
        out.append(("vm", pre + f"""s_add_u32 m0, s{S_LB}, {i*1024}
        s_add_u32 s{S_T+1}, s{S_LB+1}, {i*8192}
        buffer_load_dwordx4 v{V_RED+(i&1)}, {sr(S_WO,4)}, s{S_T+1} offen lds""", "WO"))
    return out


def wo_raw_items():
    out = []
    for i in range(16):
        out.append(("vm", f"""s_lshl_b32 s{S_T+1}, s{S_WAVE}, 17
        s_add_u32 s{S_T+1}, s{S_T+1}, {i*8192}
        buffer_load_dwordx4 {ar(192+4*i,4)}, v{V_RED+(i&1)}, {sr(S_WO,4)}, s{S_T+1} offen""", f"WOR{i}"))
    return out


def wo_write_items(g):
    t = g.T + 5
    out = [("v", f"""s_lshl_b32 s{S_T+1}, s{S_WAVE}, 14
    s_add_u32 s{S_T+1}, s{S_T+1}, {L_WO}
    v_add_u32 v{t}, s{S_T+1}, v{V_L16}""", None)]
    for i in range(16):
        out.append(("fn", lambda i=i: (g.vwait(f"WOR{i}"), g.ds(f"ds_write_b128 v{t}, {ar(192+4*i,4)} offset:{i*1024}", "WOW")), None))
    return out


def preread_items():
    return [("vm", f"""s_lshl_b32 s{S_T+3}, s{S_KH}, 16
            s_lshl_b32 s{S_T+2}, s{S_C8}, 12
            s_add_u32 s{S_T+3}, s{S_T+3}, s{S_T+2}
            s_lshl_b32 s{S_T+2}, s{S_WAVE}, 10
            s_add_u32 s{S_T+3}, s{S_T+3}, s{S_T+2}
            s_mov_b64 exec, 0xff
            buffer_load_dword v3, v2, {sr(S_WS,4)}, s{S_T+3} offen sc1{NT.get('pre','')}
            s_add_u32 s{S_T+3}, s{S_T+3}, 32768
            s_mov_b64 exec, -1""", "PF"),
            ("vm", f"""s_mov_b64 exec, 0xff
            buffer_load_dword v3, v2, {sr(S_WS,4)}, s{S_T+3} offen sc1{NT.get('pre','')}
            s_mov_b64 exec, -1""", "PF"),
            ("vm", f"""s_lshl_b32 s{S_T+3}, s{S_KH}, 13
            s_lshl_b32 s{S_T+2}, s{S_C8}, 8
            s_add_u32 s{S_T+3}, s{S_T+3}, s{S_T+2}
            s_lshl_b32 s{S_T+2}, s{S_WAVE}, 11
            s_add_u32 s{S_T+3}, s{S_T+3}, s{S_T+2}
            s_add_u32 s{S_T+3}, s{S_T+3}, {WS_ST}
            s_mov_b64 exec, 0x3
            buffer_load_dword v3, v2, {sr(S_WS,4)}, s{S_T+3} offen sc1{NT.get('pre','')}
            s_mov_b64 exec, -1""", "PF"),
            ("vm", f"""s_lshl_b32 s{S_T+2}, s{S_WAVE}, 12
            s_add_u32 s{S_T+3}, s{S_FLB}, s{S_T+2}
            s_mov_b64 exec, 3
            buffer_load_dword v3, v2, {sr(S_WS,4)}, s{S_T+3} offen sc1{NT.get('pre','')}
            s_add_u32 s{S_T+3}, s{S_T+3}, 16384
            s_mov_b64 exec, -1""", "PF"),
            ("vm", f"""s_cmp_eq_u32 s{S_WAVE}, 3
            s_cselect_b32 s{S_T+2}, 4096, 0
            s_add_u32 s{S_T+3}, s{S_T+3}, s{S_T+2}
            s_mov_b64 exec, 3
            buffer_load_dword v3, v2, {sr(S_WS,4)}, s{S_T+3} offen sc1{NT.get('pre','')}
            s_mov_b64 exec, -1""", "PF")]


def xres_items():
    return [("vm", f"buffer_load_dwordx2 {vr(V_XRES+2*a,2)}, v{V_XO}, {sr(S_X,4)}, 0 offen offset:{32*a}", "XR") for a in range(4)]


def p1_gemm(g):
    NSTART = g.opts.get('nstart', 3)
    stream = p1_dma_w(2) + p1_dma_x(1) + p1_dma_w(3) + p1_dma_x(2) + p1_dma_w(4) + p1_dma_w(5) + p1_dma_x(3) + p1_dma_w(6) + p1_dma_w(7)
    if g.opts.get("woraw", 0):
        stream = stream + wo_raw_items()
    earliest = {"W4": 1, "W5": 3, "X3": 3, "W6": 5, "W7": 7}
    span = g.opts.get("p1span", 128)
    dpos = {}
    for i, it in enumerate(stream):
        fast = g.opts.get("p1fast", 11)
        pos = i if i < fast else fast + (i - fast) * (span - fast) // (len(stream) - fast)
        pos = max(pos, 15 * earliest.get(it[2], 0))
        dpos.setdefault(pos // 15, []).append((pos % 15, it))
    nlast = max(dpos)
    g.vwait("X0", "W0")
    g.lwait_all()
    g("s_barrier")
    g.stamp("B0")
    for x in p1_read_frags(0):
        g.ds(x, "F0")
    for n in range(16):
        s = n // 2
        mf = p1_mfmas(n)
        if n == g.opts.get("nstat", 1):
            p1_stats_compute(g)
            nonce_poll_issue(g)
        g.lwait(f"F{n}")
        if n % 2 == 1 and n < 15:
            need = [f"W{s+1}"]
            if (s + 1) % 2 == 0:
                need.append(f"X{(s+1)//2}")
            if n == NSTART:
                nonce_check(g)
                need.append("S1ST")
            g.vwait(*need)
            g("s_barrier")
            g.stamp(f"B{s+1}")
            if n == NSTART:
                p1_started(g)
        slots = {}
        if n < 15:
            spread(slots, [("ds", x, f"F{n+1}") for x in p1_read_frags(n + 1)], 0, 11)
        for pos, it in dpos.get(n, []):
            slots.setdefault(pos, []).append(it)
        if n == 6 and not g.opts.get("two", 2):
            slots.setdefault(14, []).append(touch_res3(g, S_WO, 4))
        t0, tn = g.opts.get("t13s", 2), g.opts.get("t13n", 0)
        if t0 <= n < t0 + tn:
            slots.setdefault(12, []).append(touch_w13(n - t0))
        kb = g.opts.get("kbatch", 9)
        assert kb > nlast or g.opts.get("woraw", 0)
        if g.opts.get("woraw", 0) and 12 <= n <= 15:
            ww = wo_write_items(g)
            k0 = [0, 4, 8, 12, 17]
            spread(slots, ww[k0[n-12]:k0[n-11]], 2, 15)
        if n == kb - 2:
            slots.setdefault(1, []).append(("fn", lambda: poll_started_issue(g), None))
        if n == kb:
            slots.setdefault(0, []).append(("fn", lambda: poll_started_check(g), None))
            slots.setdefault(0, []).extend(nm_dma_items())
            spread(slots, xres_items(), 1, 8)
        if n == g.opts.get("kpre", kb):
            slots.setdefault(14, []).extend(preread_items()[(2 if g.opts.get("osc1", 0) else 0):])
        if n == g.opts.get("twok", 10) and g.opts.get("two", 2):
            spread(slots, [touch_wo(i) for i in range(2)], 3, 9)
        if n == g.opts.get("t13k", 10) and g.opts.get("t13e", 2):
            slots.setdefault(14, []).extend([touch_w13(i) for i in range(g.opts.get("t13e", 2))])
        if n == 15:
            spread(slots, nm_read_items(g), 0, 12)
        if n == 10:
            slots.setdefault(13, []).append(("v", f"""s_and_b32 s{S_KO}, s{S_XCD}, 3
            s_mul_i32 s{S_KO}, s{S_KO}, {4*16*3584}
            s_mul_i32 s{S_SG}, s{S_WAVE}, 6144
            s_add_u32 s{S_SG}, s{S_SG}, 20480
            s_mul_i32 s{S_SG+1}, s{S_WAVE}, 12288
            s_add_u32 s{S_SG+1}, s{S_SG+1}, 110592
            s_lshl_b32 s{S_SG+2}, s{S_WAVE}, 12""", None))
        if g.opts.get("tailbeg", 15) <= n <= g.opts.get("tailend", 15):
            spread(slots, [("fn", lambda: g.tick(), None)] * g.opts.get("tailrate", 2), 1, 13)
        sched(g, mf, slots)
    g.stamp("p1gemm")


def p1_attention(g):
    M = V_MK
    CS = 4
    QP = 96
    KP = 104
    VP = 114
    S = 128
    g("s_nop 4")
    for p in range(2):
        for r in range(4):
            g(f"v_mov_b32_dpp v{CS+p*4+r}, v{acc1(p,0)+r} row_newbcast:0 row_mask:0xf bank_mask:0xf")
    g(f"""
    v_mov_b32 v{CS+8}, v{acc1(2,0)}
    v_mov_b32 v{CS+9}, v{acc1(2,0)}
    s_mov_b32 s{S_C}, {f2h(0.25 * 1.4426950408889634)}
    s_nop 0
    v_permlane16_swap_b32 v{CS+8}, v{CS+9}
    s_nop 0
    v_mov_b32 v{CS+9}, v{CS+8}
    s_nop 1
    v_permlane32_swap_b32 v{CS+8}, v{CS+9}
    """)
    g.lwait("NMR")
    g.stamp("nm")

    def qk_fix(p, tt, dst):
        a = acc1(p, tt)
        nm = V_NM + 2 * tt
        return [[f"v_pk_fma_f32 {vr(a+2*h,2)}, {vr(CS+p*4+2*h,2)}, {vr(nm,2)}, {vr(a+2*h,2)} op_sel:[0,0,0] op_sel_hi:[1,0,1]" for h in range(2)],
                [f"v_pk_mul_f32 {vr(a+2*h,2)}, {vr(a+2*h,2)}, {vr(nm,2)} op_sel:[0,1] op_sel_hi:[1,1]" for h in range(2)],
                [f"v_cvt_pk_bf16_f32 v{dst+h}, v{a+2*h}, v{a+2*h+1}" for h in range(2)]]

    def v_fix(tt, dst):
        a = acc1(2, tt)
        nm = V_NM2 + 8 * tt
        return [[f"v_fmac_f32 v{a+r}, v{nm+2*r}, v{CS+8}" for r in range(4)],
                [f"v_mul_f32 v{a+r}, v{nm+2*r+1}, v{a+r}" for r in range(4)],
                [f"v_cvt_pk_bf16_f32 v{dst+h}, v{a+2*h}, v{a+2*h+1}" for h in range(2)]]

    def pipe(jobs, after=None):
        N = len(jobs)
        for i in range(N + 2):
            for st in range(3):
                j = i - st
                if 0 <= j < N:
                    for x in jobs[j][st]:
                        g(x)
            if i % g.opts.get("attick", 1) == 1 % g.opts.get("attick", 1):
                g.tick()
            if after and i in after:
                after[i]()

    jobs = [qk_fix(1, 0, KP), qk_fix(1, 1, KP + 2), qk_fix(0, 1, QP), qk_fix(1, 2, KP + 4), qk_fix(0, 2, QP + 2),
            qk_fix(1, 3, KP + 6), qk_fix(0, 3, QP + 4), qk_fix(1, 4, KP + 8), qk_fix(0, 4, QP + 6)]
    pipe(jobs)
    g("s_nop 1")
    prev = {1: (0, M + 8), 2: (1, M + 4), 3: (0, M + 12), 4: (3, M + 4)}
    for t in range(1, 5):
        pt, pm = prev[t]
        d = S + 8 * (t - 1)
        g(f"v_mfma_f32_16x16x16_bf16 {vr(d,4)}, {vr(KP+2*pt,2)}, {vr(QP+2*(t-1),2)}, {vr(pm,4)}")
        g(f"v_mfma_f32_16x16x16_bf16 {vr(d+4,4)}, {vr(KP+2*t,2)}, {vr(QP+2*(t-1),2)}, {vr(M,4)}")
    vdst = {0: VP, 1: VP + 2, 2: VP + 4, 3: VP + 8, 4: VP + 10}
    pipe([v_fix(tt, vdst[tt]) for tt in range(5)])
    g(f"v_mov_b32 v{VP+6}, v{VP}\nv_mov_b32 v{VP+7}, v{VP+1}")
    g.stamp("qk")
    g(f"""
    v_mov_b32 v{V2_AD}, v{V_RED+2}
    v_xor_b32 v{V2_AD+1}, 32, v{V_RED+2}
    v_xor_b32 v{V2_AD+2}, 64, v{V_RED+2}
    v_xor_b32 v{V2_AD+3}, 96, v{V_RED+2}
    """)
    pre = []
    if g.opts.get("earlyA", 0):
        assert not any(x[2] == "WO" for x in g.bg)
        g.vwait("WO")
        g("s_barrier")
        for ks in range(8):
            pre += p2_a_items(ks)
    g0 = g

    class GI:
        def __call__(self, s):
            for ln in s.split("\n"):
                if ln.strip():
                    g0(ln)
                    if pre and ln.strip().startswith("v_") and not ln.strip().startswith("v_mfma"):
                        emit_items(g0, [pre.pop(0)])

        def __getattr__(self, k):
            return getattr(g0, k)
    g = GI()
    X = 36
    for t in range(4):
        d = S + 8 * t
        for r in range(4):
            g(f"v_max_f32 v{d+r}, v{d+r}, v{d+4+r}")
    for t in range(4):
        d = S + 8 * t
        g(f"v_max3_f32 v{X+t}, v{d}, v{d+1}, v{d+2}")
    for t in range(4):
        d = S + 8 * t
        g(f"v_max_f32 v{X+t}, v{X+t}, v{d+3}")
    for op in ("v_permlane16_swap_b32", "v_permlane32_swap_b32"):
        for t in range(4):
            g(f"v_mov_b32 v{X+4+t}, v{X+t}")
        g.tick()
        g("s_nop 0")
        for t in range(4):
            g(f"{op} v{X+t}, v{X+4+t}")
        for t in range(4):
            g(f"v_max_f32 v{X+t}, v{X+t}, v{X+4+t}")
    for t in range(4):
        g(f"v_mul_f32 v{X+t}, {f2h(-0.25 * 1.4426950408889634)}, v{X+t}")
    P = 44
    O = 76
    va = {0: VP, 1: VP + 2, 2: VP + 6, 3: VP + 8}
    for t in range(4):
        d = S + 8 * t
        for r in range(4):
            g(f"v_fma_f32 v{d+r}, v{d+r}, s{S_C}, v{X+t}")
    for t in range(5):
        if t < 4:
            d = S + 8 * t
            for r in range(4):
                g(f"v_exp_f32 v{d+r}, v{d+r}")
        if t >= 1:
            d = S + 8 * (t - 1)
            p = P + 8 * (t - 1)
            if t == 4:
                g("s_nop 0")
            g(f"""
            v_cvt_pk_bf16_f32 v{p}, v{d}, v{d+1}
            v_cvt_pk_bf16_f32 v{p+1}, v{d+2}, v{d+3}
            v_and_b32 v{p+2}, v{M+18}, v{p}
            v_and_b32 v{p+3}, v{M+19}, v{p+1}
            v_and_b32 v{p+4}, v{M+16}, v{p}
            v_and_b32 v{p+5}, v{M+17}, v{p+1}
            """)
        g.tick()
        if t >= 2:
            tt = t - 2
            g(f"v_mfma_f32_16x16x16_bf16 {vr(S+8*tt+4,4)}, {vr(V_ONE2,2)}, {vr(P+8*tt,2)}, 0")
            g(f"v_mfma_f32_16x16x32_bf16 {vr(O+4*tt,4)}, {vr(va[tt],4)}, {vr(P+8*tt+2,4)}, 0")
    g("s_nop 0")
    tt = 3
    g(f"v_mfma_f32_16x16x16_bf16 {vr(S+8*tt+4,4)}, {vr(V_ONE2,2)}, {vr(P+8*tt,2)}, 0")
    g(f"v_mfma_f32_16x16x32_bf16 {vr(O+4*tt,4)}, {vr(va[tt],4)}, {vr(P+8*tt+2,4)}, 0")
    g.stamp("sm")
    OP = 96
    pos = {0: OP, 2: OP + 2, 1: OP + 4, 3: OP + 6}
    for tt in (0, 1):
        g(f"v_rcp_f32 v{S+8*tt+4}, v{S+8*tt+4}")
    for tt in (0, 1):
        for h in range(2):
            g(f"v_pk_mul_f32 {vr(O+4*tt+2*h,2)}, {vr(O+4*tt+2*h,2)}, {vr(S+8*tt+4,2)} op_sel:[0,0] op_sel_hi:[1,0]")
    g(f"v_rcp_f32 v{S+8*2+4}, v{S+8*2+4}")
    for tt in (0, 1):
        for h in range(2):
            g(f"v_cvt_pk_bf16_f32 v{pos[tt]+h}, v{O+4*tt+2*h}, v{O+4*tt+2*h+1}")
    g(f"v_rcp_f32 v{S+8*3+4}, v{S+8*3+4}")
    for tt in (2, 3):
        for h in range(2):
            g(f"v_pk_mul_f32 {vr(O+4*tt+2*h,2)}, {vr(O+4*tt+2*h,2)}, {vr(S+8*tt+4,2)} op_sel:[0,0] op_sel_hi:[1,0]")
    for tt in (2, 3):
        for h in range(2):
            g(f"v_cvt_pk_bf16_f32 v{pos[tt]+h}, v{O+4*tt+2*h}, v{O+4*tt+2*h+1}")
    g(f"""
    s_mov_b32 s{S_T}, 32768
    v_permlane16_swap_b32 v{OP}, v{OP+2}
    v_permlane16_swap_b32 v{OP+1}, v{OP+3}
    v_permlane16_swap_b32 v{OP+4}, v{OP+6}
    v_permlane16_swap_b32 v{OP+5}, v{OP+7}
    """)
    if g.opts.get("osc1", 0):
        g.vm(f"buffer_store_dwordx4 {vr(OP,4)}, v{V_OS}, {sr(S_WS,4)}, 0 offen sc1", "OST")
        g.vm(f"buffer_store_dwordx4 {vr(OP+4,4)}, v{V_OS}, {sr(S_WS,4)}, s{S_T} offen sc1", "OST")
    else:
        g.store([f"buffer_store_dwordx4 {vr(OP,4)}, v{V_OS}, {sr(S_WS,4)}, 0 offen",
                 f"buffer_store_dwordx4 {vr(OP+4,4)}, v{V_OS}, {sr(S_WS,4)}, s{S_T} offen"], "OST")


def signal(g, phase, tags):
    t = g.T
    g(f"""
    v_mov_b32 v{t}, {phase*4096}
    v_mov_b32 v{t+1}, s{S_NONCE}
    """)
    g.vwait(*tags)
    g("s_mov_b64 exec, 1")
    g.store([f"buffer_store_dword v{t+1}, v{t}, {sr(S_WS,4)}, s{S_FLO} offen"], "FLAG")
    g("s_mov_b64 exec, -1")


def poll_issue(g, phase, tag, r=0):
    t = g.T + r
    g(f"s_add_u32 s{S_T+2}, s{S_FLB}, {phase*4096}")
    g.vm(f"buffer_load_dword v{t+2}, v{V_L4}, {sr(S_WS,4)}, s{S_T+2} offen sc1", tag)


def poll_check(g, phase, tag, mask, r=0, slp=False):
    t = g.T + r
    lp = g.lab("poll")
    g.vwait(tag)
    g(f"""
    v_cmp_ne_u32 vcc, s{S_NONCE}, v{t+2}
    s_mov_b32 s{S_T+6}, 0
    s_and_b64 vcc, vcc, s[{mask}:{mask+1}]
    s_cbranch_vccnz {lp}
    {lp}_ok:
    """)
    g.cold.append(f"""{lp}:
    {"s_sleep 4" if slp else ""}
    s_add_u32 s{S_T+2}, s{S_FLB}, {phase*4096}
    s_add_u32 s{S_T+6}, s{S_T+6}, 1
    buffer_load_dword v{t+2}, v{V_L4}, {sr(S_WS,4)}, s{S_T+2} offen sc1
    s_cmp_gt_u32 s{S_T+6}, {SPIN_MAX}
    s_waitcnt vmcnt(0)
    s_cbranch_scc1 {lp}_ok
    v_cmp_ne_u32 vcc, s{S_NONCE}, v{t+2}
    s_and_b64 vcc, vcc, s[{mask}:{mask+1}]
    s_cbranch_vccnz {lp}
    s_branch {lp}_ok""")


def ko_adv(u):
    lo = (u // 16) * 256 * 3584
    hi = lo + 256 * 3584
    t = f"""s_add_u32 s{S_KO}, s{S_KO}, {16*3584}
    s_cmp_lt_u32 s{S_KO}, {hi}
    s_cselect_b32 s{S_KO}, s{S_KO}, {lo}"""
    if u == 15:
        t += f"\ns_add_u32 s{S_KO}, s{S_KO}, {256*3584}"
    return t


def w13_load_items(u):
    return [("vm", f"buffer_load_dwordx4 {ar(8*u,4)}, v{V3_WD}, {sr(S_W1,4)}, s{S_KO} offen", f"W13_{u}"),
            ("vm", f"""buffer_load_dwordx4 {ar(8*u+4,4)}, v{V3_WD}, {sr(S_W3,4)}, s{S_KO} offen
            {ko_adv(u)}""", f"W13_{u}")]


S_SG = 62
NSLOT = 11


def slot_addr(k):
    if k < 3:
        return S_SG, k * 2048, 0
    if k < 9:
        return S_SG + 1, (k - 3) * 2048, 1
    return S_SG + 2, (k - 9) * 2048, 2


def w13_dma_items(u):
    sb, off, _ = slot_addr(u % NSLOT)
    return [("vm", f"""s_add_u32 m0, s{sb}, {off}
            s_nop 0
            buffer_load_dwordx4 v{V3_WD}, {sr(S_W1,4)}, s{S_KO} offen lds""", f"W13_{u}"),
            ("vm", f"""s_add_u32 m0, s{sb}, {off+1024}
            s_nop 0
            buffer_load_dwordx4 v{V3_WD}, {sr(S_W3,4)}, s{S_KO} offen lds
            {ko_adv(u)}""", f"W13_{u}")]


V_SGA = 24


def w13_stage_setup(g):
    g(f"""
    s_lshl_b32 s{S_T}, s{S_WAVE}, 10
    s_add_u32 s{S_T}, s{S_T}, {L_MISC}
    v_subrev_u32 v{V_SGA+2}, s{S_T}, v{V3_TR}
    v_add_u32 v{V_SGA}, s{S_SG}, v{V_SGA+2}
    v_add_u32 v{V_SGA+1}, s{S_SG+1}, v{V_SGA+2}
    v_add_u32 v{V_SGA+2}, s{S_SG+2}, v{V_SGA+2}
    """)


def w13_pick_items(g, u):
    _, off, r = slot_addr(u % NSLOT)
    out = [("fn", lambda: g.vwait(f"W13_{u}"), None)]
    for m in range(2):
        for half in range(2):
            out.append(("ds", f"ds_read_b64_tr_b16 {ar(8*u+4*m+2*half,2)}, v{V_SGA+r} offset:{off + m*1024 + half*256}", f"A3_{u}"))
    return out


def w13_xpose_items(g, u):
    out = [("fn", lambda: g.vwait(f"W13_{u}"), None)]
    for m in range(2):
        out.append(("ds", f"ds_write_b128 v{V3_SW}, {ar(8*u+4*m,4)}", f"A3_{u}"))
        for half in range(2):
            out.append(("ds", f"ds_read_b64_tr_b16 {ar(8*u+4*m+2*half,2)}, v{V3_TR} offset:{half*256}", f"A3_{u}"))
    return out


V2_B = 32
V2_A = 96
V2_ACC = 240
V2_AD = 28
L_HKX = 159744 - 8192


def unpack_bf16(g, dst, src, n=8):
    for d in range(n):
        g(f"v_lshlrev_b32 v{dst+2*d}, 16, v{src+d}")
        g(f"v_and_b32 v{dst+2*d+1}, 0xffff0000, v{src+d}")


def p2_areg(ks, a, n=4, off=0):
    if ks < 8:
        return ar(128 + (ks * 4 + a) * 4 + off, n)
    return vr(V2_A + ((ks - 8) * 4 + a) * 4 + off, n)


def p2_a_items(ks, ad=None):
    ad = V2_AD if ad is None else ad
    out = []
    for a in range(4):
        for half in range(2):
            out.append(("ds", f"ds_read_b64_tr_b16 {p2_areg(ks, a, 2, 2*half)}, v{ad+a} offset:{ks*4096 + half*512}", f"A2_{ks}"))
    return out


def p2_pre(g):
    A = S_A
    g(f"""
    s_cmp_lt_u32 s{S_M}, 8
    s_cselect_b32 s6, -1, 0
    s_cselect_b32 s7, 0, -1
    s_lshl_b32 s{S_T}, s{S_KH}, 16
    s_lshr_b32 s{S_T+1}, s{S_WAVE}, 1
    s_lshl_b32 s{S_T+1}, s{S_T+1}, 15
    s_add_u32 s{S_T}, s{S_T}, s{S_T+1}
    s_add_u32 s{A}, s{S_T}, {WS_O}
    s_lshl_b32 s{S_T+1}, s{S_C8}, 12
    s_add_u32 s{S_A2}, s{A}, s{S_T+1}
    s_lshl_b32 s{S_A2+1}, s{S_KH}, 13
    s_lshl_b32 s{S_T+1}, s{S_WAVE}, 11
    s_add_u32 s{S_A2+1}, s{S_A2+1}, s{S_T+1}
    s_add_u32 s{S_A2+1}, s{S_A2+1}, {WS_ST}
    s_lshl_b32 s{S_T+1}, s{S_C8}, 8
    s_add_u32 s{S_A2+2}, s{S_A2+1}, s{S_T+1}
    """)
    g.vwait("XR")
    for d in range(7, -1, -1):
        g(f"v_and_b32 v{V2_ACC+2*d+1}, 0xffff0000, v{V_XRES+d}")
        g(f"v_lshlrev_b32 v{V2_ACC+2*d}, 16, v{V_XRES+d}")


def p2_main(g):
    t = g.T
    A = S_A
    def oload(ks):
        if ks % 2 == 0 and ks:
            g(f"s_add_u32 s{A}, s{A}, 4096")
        g.vm(f"buffer_load_dwordx4 {vr(V2_B+4*ks,4)}, v{V_GA}, {sr(S_WS,4)}, s{A} offen offset:{(ks%2)*2048} sc1", f"B2_{ks}")
    PFO = g.opts.get("pfo", 8)
    late = g.opts.get("_late", [])
    for ks in range(PFO):
        oload(ks)
        emit_items(g, late[:4])
        late = late[4:]
    for ks in range(16):
        g.vwait(f"B2_{ks}")
        g.lwait(f"A2_{ks}")
        if ks + PFO < 16:
            oload(ks + PFO)
        for a in range(4):
            acc = V2_ACC + 4 * a
            g(f"v_mfma_f32_16x16x32_bf16 {vr(acc,4)}, {p2_areg(ks, a)}, {vr(V2_B+4*ks,4)}, {vr(acc,4)}")
            emit_items(g, late[:2])
            late = late[2:]
            assert not any(x[2] == f"A2_{ks+1}" for x in late) or a < 3
        if ks >= 16 - PFO:
            g.tick(1 if ks < 14 else 2)
    g.stamp("p2mfma")
    e = 32
    g(f"""
    v_mov_b32 v{e+2}, s{S_NONCE}
    v_mov_b32 v{e+3}, 0
    s_nop 5
    """)
    H = 40
    for d in range(8):
        g(f"v_cvt_pk_bf16_f32 v{H+d}, v{V2_ACC+2*d}, v{V2_ACC+2*d+1}")
    g(f"v_dot2_f32_bf16 v{e}, v{H}, s{S_ONES}, 0")
    g(f"v_dot2_f32_bf16 v{e+1}, v{H}, v{H}, 0")
    g(f"v_dot2_f32_bf16 v{e+4}, v{H+1}, s{S_ONES}, 0")
    g(f"v_dot2_f32_bf16 v{e+5}, v{H+1}, v{H+1}, 0")
    for d in range(2, 8):
        oo = 4 * (d & 1)
        g(f"v_dot2c_f32_bf16 v{e+oo}, s{S_ONES}, v{H+d}")
        g(f"v_dot2c_f32_bf16 v{e+oo+1}, v{H+d}, v{H+d}")

    def xred(x, y):
        for op in ("v_permlane16_swap_b32", "v_permlane32_swap_b32"):
            g(f"""
            v_mov_b32 v{y}, v{x}
            v_mov_b32 v{y+1}, v{x+1}
            s_nop 0
            {op} v{x}, v{y}
            {op} v{x+1}, v{y+1}
            v_pk_add_f32 {vr(x,2)}, {vr(x,2)}, {vr(y,2)}
            """)
    g(f"""
    v_permlane16_swap_b32 v{H}, v{H+2}
    v_permlane16_swap_b32 v{H+1}, v{H+3}
    v_permlane16_swap_b32 v{H+4}, v{H+6}
    v_pk_add_f32 {vr(e,2)}, {vr(e,2)}, {vr(e+4,2)}
    v_permlane16_swap_b32 v{H+5}, v{H+7}
    """)
    xred(e, e + 4)
    g("s_mov_b64 exec, 0xffff")
    g.store([f"buffer_store_dwordx4 {vr(e,4)}, v{V_L16}, {sr(S_WS,4)}, s{S_A2+2} offen"], "SST")
    g("s_mov_b64 exec, -1")
    g.stamp("p2stat")
    U = 48
    unpack_bf16(g, U, H)
    hk_exchange_write(g)
    p34_pre(g, 0)
    lp = g.lab("sg")
    q = 64
    g(f"""
    s_mov_b32 s{S_T+6}, 0
    {lp}:
    buffer_load_dwordx4 {vr(q,4)}, v{V_L16}, {sr(S_WS,4)}, s{S_A2+1} offen sc1
    buffer_load_dwordx4 {vr(q+4,4)}, v{V_L16}, {sr(S_WS,4)}, s{S_A2+1} offen offset:1024 sc1
    s_add_u32 s{S_T+6}, s{S_T+6}, 1
    s_cmp_gt_u32 s{S_T+6}, {SPIN_MAX}
    s_waitcnt vmcnt(0)
    s_cbranch_scc1 {lp}_x
    v_cmp_ne_u32 vcc, s{S_NONCE}, v{q+2}
    v_cmp_ne_u32 s[{S_T+3}:{S_T+4}], s{S_NONCE}, v{q+6}
    s_or_b64 vcc, vcc, s[{S_T+3}:{S_T+4}]
    s_cbranch_vccnz {lp}
    {lp}_x:
    v_pk_add_f32 {vr(q,2)}, {vr(q,2)}, {vr(q+4,2)}
    """)
    g.vq = []
    g.stamp("p2gath")
    emit_items(g, g.opts.get("_picks", []))
    xred(q, q + 2)
    g(f"""
    v_mul_f32 v{q+4}, {f2h(-1.0/512)}, v{q}
    v_mul_f32 v{q+5}, {f2h(1.0/512)}, v{q+1}
    v_fma_f32 v{q+5}, -v{q+4}, v{q+4}, v{q+5}
    v_max_f32 v{q+5}, 0, v{q+5}
    v_add_f32 v{q+5}, {f2h(1e-5)}, v{q+5}
    v_rsq_f32 v{q+5}, v{q+5}
    s_nop 0
    v_mul_f32 v{q+5}, {f2h(LOG2E)}, v{q+5}
    v_mul_f32 v{q+4}, v{q+4}, v{q+5}
    """)
    for d in range(8):
        a = U + 2 * d
        g(f"v_pk_fma_f32 {vr(a,2)}, {vr(a,2)}, {vr(q+4,2)}, {vr(q+4,2)} op_sel:[0,1,0] op_sel_hi:[1,1,0]")
    for d in range(8):
        g(f"v_cvt_pk_bf16_f32 v{q+8+d}, v{U+2*d}, v{U+2*d+1}")
    g.store([f"buffer_store_dwordx4 {vr(q+8,4)}, v{V_RED+3}, {sr(S_WS,4)}, s{S_A2} offen",
             f"buffer_store_dwordx4 {vr(q+12,4)}, v{V_RED+3}, {sr(S_WS,4)}, s{S_A2} offen offset:2048"], "HST")


def hk_exchange_write(g):
    t = g.T
    g(f"""
    s_cmp_lt_u32 s{S_WAVE}, 2
    s_mov_b32 s{S_T}, {L_MISC}
    s_cselect_b32 s{S_T}, 16384, s{S_T}
    v_add_u32 v{t+4}, s{S_T}, v{V_RED+3}
    """)
    g.ds(f"ds_write_b128 v{t+4}, {vr(40,4)}", "HKW")
    g.ds(f"ds_write_b128 v{t+4}, {vr(44,4)} offset:2048", "HKW")


def hk_exchange_read(g):
    t = g.T
    g(f"""
    s_lshl_b32 s{S_T}, s{S_WAVE}, 10
    v_add_u32 v{t+4}, s{S_T}, v{V_L16}
    """)
    g.ds(f"ds_read_b128 {vr(V_HK,4)}, v{t+4} offset:16384", "HKR")
    g.ds(f"ds_read_b128 {vr(V_HK+4,4)}, v{V3_SW}", "HKR")


V3_ACC = 32
V3_B = 160
V3_E = 192
K1 = 16
TORD = [0, 1, 2, 3]
HPH = [2, 3, 6, 8]
L_SP = 131072


S_A3 = 58


def p3_pre(g):
    A = S_A3
    g(f"""
    s_cmp_lt_u32 s{S_M}, 7
    s_cselect_b32 s{S_T+2}, 2, 0
    s_mov_b32 s{A}, 0
    s_lshl_b32 s{A+1}, s{S_WAVE}, 15
    s_xor_b32 s{S_T}, s{S_WAVE}, s{S_T+2}
    s_lshl_b32 s{S_T}, s{S_T}, 15
    s_add_u32 s{A}, s{A}, s{S_T}
    s_add_u32 s{A}, s{A}, {WS_H}
    s_and_b32 s{S_K2}, s{S_XCD}, 3
    s_lshl_b32 s{S_K2}, s{S_K2}, 12
    s_mov_b32 s{S_C}, {f2h(LOG2E*LOG2E)}
    s_mov_b32 s{A+2}, 0
    s_lshl_b32 s{S_T+1}, s{S_M}, 13
    s_add_u32 s{A+2}, s{A+2}, s{S_T+1}
    s_lshl_b32 s{S_T+1}, s{S_WAVE}, 11
    s_add_u32 s{A+2}, s{A+2}, s{S_T+1}
    s_add_u32 s{A+2}, s{A+2}, {WS_HH}
    s_mul_i32 s{S_T}, s{S_T+2}, 114688
    s_sub_u32 s0, s{A+2}, s{S_T}
    s_add_u32 s{A+2}, s{A+2}, s{S_T}
    """)


def p3_h_items(b):
    A = S_A3
    out = []
    for i in range(4):
        pre = f"s_add_u32 m0, s{A+1}, {b*4096}\n"
        post = ""
        pre += f"s_add_u32 s{A+3}, s{A}, s{S_K2}\n" if i == 0 else "s_nop 0\n"
        if i == 3:
            post = f"\ns_add_u32 s{S_K2}, s{S_K2}, 4096\ns_and_b32 s{S_K2}, s{S_K2}, 16383"
            if b == 3:
                post += f"\ns_add_u32 s{A}, s{A}, 16384"
        out.append(("vm", pre + f"buffer_load_dwordx4 v{V_L16}, {sr(S_WS,4)}, s{A+3} offen offset:{i*1024} sc1 lds" + post, f"H{b}"))
    return out


def p3_epi_sched(j):
    A = V3_ACC + 32 * j
    e = V3_E
    o = V3_E + 16
    st = [
        lambda r: f"v_exp_f32 v{e+r}, -v{A+r}",
        lambda r: f"v_mul_f32 v{A+r}, v{A+r}, v{A+16+r}",
        lambda r: f"v_fma_f32 v{e+r}, v{e+r}, s{S_C}, s{S_C}",
        lambda r: f"v_rcp_f32 v{e+r}, v{e+r}",
        lambda r: f"v_mul_f32 v{A+r}, v{A+r}, v{e+r}",
        lambda r: (f"v_cvt_pk_bf16_f32 v{o+r//2}, v{A+r-1}, v{A+r}" if r % 2 else None),
    ]
    skew = [0, 0, 1, 2, 3, 4]
    out = []
    for step in range(16 + 5):
        for si, f in enumerate(st):
            r = step - skew[si]
            if 0 <= r < 16:
                x = f(r)
                if x:
                    out.append(("v", x, None))
    return out


def p3_hh_store(g, j):
    o = V3_E + 16
    g(f"s_add_u32 s{S_T}, s{S_A3+2 if j < 2 else 0}, {j*114688}")
    g.vm(f"buffer_store_dwordx4 {vr(o,4)}, v{V_L16}, {sr(S_WS,4)}, s{S_T} offen sc1", f"HHST{j}")
    g.vm(f"buffer_store_dwordx4 {vr(o+4,4)}, v{V_L16}, {sr(S_WS,4)}, s{S_T} offen offset:1024 sc1", f"HHST{j}")


def hh_touch(g, j):
    g.vwait(f"HHST{j}")
    emit_items(g, [touch(S_WS, 16, f"s_add_u32 s{S_T+3}, s{S_A+2}, {j*114688}")])


V4_AD = 4
V4_B = 32
NB4 = 16
V4_ACC = 96
V4_R = 240
S_FR = 40
S_X4 = 8
S_M4 = 16


def p34_pre(g, part):
    d = V4_AD
    l = V_L
    if part == 1:
        g(f"""
        s_mov_b64 s[{S_A2+2}:{S_A2+3}], 0x7f
        s_lshl_b64 s[{S_A2+2}:{S_A2+3}], s[{S_A2+2}:{S_A2+3}], s1
        s_mov_b32 s{S_A2}, -1
        s_mov_b32 s{S_A2+1}, 0x00ffffff
        v_add_u32 v{V_RED+3}, s{S_LB}, v{V_L16}
        """)
        return
    g(f"""
    s_lshr_b32 s{S_T+2}, s{S_M}, 3              ; kh
    s_lshl_b32 s{S_T+3}, s{S_T+2}, 2
    s_add_u32 s{S_T+3}, s{S_T+3}, s{S_WAVE}     ; K eighth
    s_mul_i32 s{S_W2O}, s{S_T+3}, {224*1024}
    s_lshl_b32 s{S_LB}, s{S_WAVE}, 15
    s_lshl_b32 s{S_LB+1}, s{S_WAVE}, 13
    s_add_u32 s{S_LB+1}, s{S_LB+1}, {L_SP}
    s_mul_i32 s{S_T+1}, s{S_T+3}, {14*1024}
    s_add_u32 s{S_T+1}, s{S_T+1}, {WS_HH}
    s_mul_i32 s{S_T}, s{S_KH}, {2*114688}
    s_add_u32 s{S_X4+2}, s{S_T}, s{S_T+1}
    s_add_u32 s{S_X4+3}, s{S_X4+2}, 114688
    s_xor_b32 s{S_T+4}, s{S_KH}, 1
    s_mul_i32 s{S_T}, s{S_T+4}, {2*114688}
    s_add_u32 s{S_X4}, s{S_T}, s{S_T+1}
    s_add_u32 s{S_X4+1}, s{S_X4}, 114688
    s_mul_i32 s1, s{S_T+3}, 7
    s_xor_b32 s{S_T}, s{S_M}, 8
    s_lshl_b32 s{S_T}, s{S_T}, 2
    s_add_u32 s{S_T}, s{S_T}, s{S_WAVE}
    s_mov_b64 s[{S_M4}:{S_M4+1}], 1
    s_lshl_b64 s[{S_M4}:{S_M4+1}], s[{S_M4}:{S_M4+1}], s{S_T}
    s_lshl_b32 s{S_T}, s{S_C8}, 12
    s_lshl_b32 s{S_T+1}, s{S_WAVE}, 10
    s_add_u32 s{S_T}, s{S_T}, s{S_T+1}
    s_add_u32 s{S_T}, s{S_T}, {WS_X}
    s_lshl_b32 s{S_T+1}, s{S_T+4}, 16
    s_add_u32 s{S_M4+2}, s{S_T}, s{S_T+1}
    s_lshl_b32 s{S_T+1}, s{S_KH}, 16
    s_add_u32 s{S_M4+3}, s{S_T}, s{S_T+1}
    s_and_b32 s{S_T}, s{S_WAVE}, 1
    s_lshl_b32 s{S_T}, s{S_T}, 5
    v_xor_b32 v{d}, s{S_T}, v{V_TR}
    v_xor_b32 v{d+1}, 64, v{d}
    v_add_u32 v{d+2}, s{S_LB}, v{d}
    v_add_u32 v{d+3}, s{S_LB}, v{d+1}
    v_add_u32 v{d+4}, s{S_LB+1}, v{d}
    v_add_u32 v{d+5}, s{S_LB+1}, v{d+1}
    s_sub_u32 s{S_T}, s{S_LB+1}, s{S_SG}
    v_add_u32 v{d+6}, s{S_T}, v{V_SGA}          ; ring (w13 image)
    s_lshl_b32 s{S_T}, s{S_TB}, 16
    s_lshl_b32 s{S_T+1}, s{S_C8}, 7
    s_add_u32 s{S_T}, s{S_T}, s{S_T+1}
    s_lshl_b32 s{S_T+1}, s{S_WAVE}, 5
    s_add_u32 s{S_T}, s{S_T}, s{S_T+1}
    v_and_b32 v{d+7}, 31, v{l}
    v_lshlrev_b32 v{d+7}, 10, v{d+7}
    v_lshrrev_b32 v{d+8}, 5, v{l}
    v_lshl_add_u32 v{d+7}, v{d+8}, 4, v{d+7}
    v_add_u32 v{d+7}, s{S_T}, v{d+7}
    v_add_u32 v{d+8}, 7168, v{V_D128}           ; second half of a w2 kstep: +8192 global, offset:1024 adds the rest
    v_add_u32 v{d+9}, 32768, v{V_L16}
    s_sub_u32 s{S_T}, s{S_LB}, s{S_SG}
    v_add_u32 v{d+10}, s{S_T}, v{V_SGA}         ; own tile region (w13 image)
    s_cmp_eq_u32 s{S_WAVE}, 3
    s_cselect_b32 s{S_FR}, 2048, s{S_LB}
    s_sub_u32 s{S_T}, s{S_FR}, s{S_SG}
    v_add_u32 v{d+11}, s{S_T}, v{V_SGA}
    v_add_u32 v27, s{S_FR}, v{d}
    v_add_u32 v28, s{S_FR}, v{d+1}
    """)
    for i in range(1, 4):
        g(f"""
        s_xor_b32 s{S_T}, s{S_WAVE}, {i%4}
        s_lshl_b32 s{S_T}, s{S_T}, 15
        s_add_u32 s{S_T}, s{S_T}, {((i-1) if i < 4 else 0)*2048}
        v_add_u32 v{V_RED+i-1}, s{S_T}, v{V_L16}
        """)


def w2_dma_items(ks, sb, off):
    return [("vm", f"""s_add_u32 m0, s{sb}, {off}
            s_add_u32 s{S_T+5}, s{S_W2O}, {ks*16*1024}
            buffer_load_dwordx4 v{V_D128}, {sr(S_W2,4)}, s{S_T+5} offen lds""", f"W2_{ks}"),
            ("vm", f"buffer_load_dwordx4 v{V4_AD+8}, {sr(S_W2,4)}, s{S_T+5} offen offset:1024 lds", f"W2_{ks}")]


def w2_pick_items(g, ks, base, off):
    out = [("fn", lambda: g.vwait(f"W2_{ks}"), None)]
    for ia in range(2):
        for half in range(2):
            out.append(("ds", f"ds_read_b64_tr_b16 {ar(8*ks+4*ia+2*half,2)}, v{base+ia} offset:{off + half*512}", f"A4_{ks}"))
    return out


def w13_ring_dma(u, off, sb=S_LB + 1):
    return [("vm", f"""s_add_u32 m0, s{sb}, {off}
            s_nop 0
            buffer_load_dwordx4 v{V3_WD}, {sr(S_W1,4)}, s{S_KO} offen lds
            s_add_u32 m0, s{sb}, {off+1024}""", f"W13_{u}"),
            ("vm", f"""buffer_load_dwordx4 v{V3_WD}, {sr(S_W3,4)}, s{S_KO} offen lds
            {ko_adv(u)}""", f"W13_{u}")]


def w13_ring_pick(g, u, off, va=V4_AD + 6):
    out = [("fn", lambda: g.vwait(f"W13_{u}"), None)]
    for m in range(2):
        for half in range(2):
            out.append(("ds", f"ds_read_b64_tr_b16 {ar(8*u+4*m+2*half,2)}, v{va} offset:{off + m*1024 + half*256}", f"A3_{u}"))
    return out


W2_PARK = {}


def p3_main(g, npre):
    o = g.opts
    KA = o.get("ka", 17)
    K3 = o.get("k3", 17)
    seq = []
    for u in range(KA):
        seq += [(j, u) for j in ((0, 1, 2, 3) if u < K3 else (0, 1, 2))]
    for j in (0, 1, 2):
        seq += [(j, u) for u in range(KA, 32)]
    seq += [(3, u) for u in range(K3, 32)]
    assert len(seq) == 128
    first = {}
    lastu = {}
    done = {}
    for n, (j, u) in enumerate(seq):
        first.setdefault(u, n)
        lastu[u] = n
        done[j] = n
    PF = 4

    def bread(n):
        j, u = seq[n]
        a = V_L16 if j < 2 else V3_HB
        return ("ds", f"ds_read_b128 {vr(V3_B+4*(n%8),4)}, v{a} offset:{(j%2)*32768 + u*1024}", f"B3_{n}")

    extra = {}

    def put(step, items, half=1):
        extra.setdefault(2 * step + half, []).extend(items)

    LAG13 = o.get("lag13", 16)
    LAG2 = o.get("lag2", 18)
    busy = set()
    bar = {b: first[4 * b] - PF for b in range(1, 8)}
    for b in range(2, 8):
        if bar[b] - bar[b - 1] < 8:
            bar[b] = bar[b - 1]
    hst = {}
    nxt = 1000
    for b in range(7, 1, -1):
        hst[b] = max(2 * (b - 2), min(bar[b] - o.get("hlead", 16), nxt - o.get("hgap", 8)))
        nxt = hst[b]
        busy.update((hst[b], hst[b] + 1))
    slots = [[0, 1000, 0, k * 2048, None] for k in range(4)]
    for b in range(2, 8):
        for k in range(2):
            slots.append([0, hst[b], 1, b * 4096 + k * 2048, None])
    for b in range(0, 6):
        lead_done = max(n for n, (j, u) in enumerate(seq) if j < 3 and u // 4 == b)
        fb = [bar[x] for x in bar if bar[x] > lead_done + 1]
        if fb:
            slots.append([min(fb) + 1, 1000, 2, b * 4096, None])
    SB = [S_LB + 1, S_LB, S_FR]
    VA13 = [V4_AD + 6, V4_AD + 10, V4_AD + 11]
    VA2 = [V4_AD + 4, V4_AD + 2, 27]
    q13 = list(range(npre, 32))
    q2 = list(range(14))
    st = 0
    last2 = -100
    last13 = -100
    per13 = o.get("per13", 250) / 100.0
    t13 = 0.0
    while q13 or q2:
        assert st < 126, ("ring overflow", q13, q2)
        if st in busy:
            st += 1
            continue
        ok13 = q13 and st >= t13
        ok2 = q2 and st >= o.get("w2s", 64) and st >= last2 + o.get("w2d", 3)
        if ok13:
            kind, x = "w13", q13[0]
            pk = min(st + LAG13, first[x] - 2)
        elif ok2:
            kind, x = "w2", q2[0]
            pk = min(max(st + LAG2, lastu[x] + 2), 127)
        else:
            st += 1
            continue
        fr = [sl for sl in slots if sl[0] <= st and pk + 2 <= sl[1]]
        if not fr:
            st += 1
            continue
        sl = min(fr, key=lambda z: (z[1], z[0]))
        off = sl[3]
        pre = []
        if sl[4]:
            pre = [("fn", lambda tg=sl[4]: g.lwait(tg), None)]
        busy.add(st)
        if kind == "w13":
            q13.pop(0)
            t13 = max(t13 + per13, st + 1)
            it = w13_ring_dma(x, off, SB[sl[2]])
            if pk - st < LAG13:
                print("  short lag for unit", x, pk - st)
            assert pk > st, (x, st)
            put(pk, w13_ring_pick(g, x, off, VA13[sl[2]]))
            sl[4] = f"A3_{x}"
        else:
            q2.pop(0)
            last2 = st
            it = w2_dma_items(x, SB[sl[2]], off)
            put(pk, w2_pick_items(g, x, VA2[sl[2]], off))
            sl[4] = f"A4_{x}"
        put(st, pre + it[:1], 0); put(st, it[1:], 1)
        sl[0] = pk + 2
        st += 1
    for b in range(2, 8):
        tags = [sl[4] for sl in slots if sl[2] == 1 and sl[3] // 4096 == b and sl[4]]
        pre = [("fn", lambda tags=tags: g.lwait(*tags), None)] if tags else []
        it = p3_h_items(b)
        st = hst[b]
        put(st, pre + it[0:1], 0); put(st, it[1:2], 1); put(st + 1, it[2:3], 0); put(st + 1, it[3:4], 1)
    print("p3 stream ends at step", max(busy))
    def cost(it):
        if it[0] == "fn":
            return 1
        c = 0
        for ln in it[1].split("\n"):
            ln = ln.strip()
            if ln:
                c += 2 if ln.startswith(("v_exp", "v_rcp")) else 1
        return c
    h0 = 2 * (done[0] + 1) + 4
    hend = 256
    span = (hend - h0) // 3
    stst = []
    pc_ = o.get("pol0c", 120)
    for i in range(3):
        ep = p3_epi_sched(i)
        base = max(h0 + i * span, 2 * (done[i] + 1) + 4)
        sp = h0 + (i + 1) * span - base - 1
        if o.get("pack", 1):
            used = {h: 1 + sum(cost(x) for x in extra.get(h, [])) for h in range(base, base + sp)}
            for h in used:
                if h % 2 == 1 and h // 2 > pc_:
                    used[h] += 2
            cap = 5.0
            while True:
                h = base
                fill = dict(used)
                place = []
                ok = True
                for it in ep:
                    while h < base + sp and fill[h] + cost(it) > cap + 0.01:
                        h += 1
                    if h >= base + sp:
                        ok = False
                        break
                    fill[h] += cost(it)
                    place.append(h)
                if ok:
                    break
                cap += 1
            print("epilogue", i, "capacity", cap, "ends", place[-1], "of", base + sp)
            for h, it in zip(place, ep):
                extra.setdefault(h, []).append(it)
            endh = min(place[-1] + 1, base + sp)
        else:
            for k, it in enumerate(ep):
                extra.setdefault(base + k * sp // len(ep), []).append(it)
            endh = base + sp
        extra.setdefault(endh, []).append(("fn", lambda j=i: p3_hh_store(g, j), None))
        stst.append(endh)
    sd = 2 * o.get("sigd", 10)
    late = []
    for i in range(2):
        if stst[i] + sd < 256:
            extra.setdefault(stst[i] + sd, []).append(("fn", lambda i=i: signal(g, HPH[i], [f"HHST{i}"]), None))
        else:
            late.append(i)
    assert not late
    nf = 0
    pc = o.get("pol0c", 120)
    if 2 * (pc - 6) >= stst[0] + sd + 2 * o.get("polgap", 3) and pc < 127:
        put(pc - 6, [("fn", lambda: poll_issue(g, HPH[0], "POLLH0"), None)])
        put(pc, [("fn", lambda: poll_check(g, HPH[0], "POLLH0", S_A2 + 2), None)])
        nf = o.get("nf4", 8)
        for i in range(nf):
            stp = min(127, pc + 1 + i)
            assert i < 8 or 2 * stp > stst[1]
            put(stp, [("fn", lambda i=i: p4_load(g, i), None)], 1)
    print("early p4 loads:", nf)

    g.vwait("H0")
    g.lwait_all()
    g("s_barrier")
    g.stamp("p3start")
    for n in range(PF):
        emit_items(g, [bread(n)])
    for n, (j, u) in enumerate(seq):
        bs = [b for b in bar if bar[b] == n]
        if bs:
            g.vwait(f"H{max(bs)}")
            g("s_barrier")
        g.lwait(f"B3_{n}", f"A3_{u}")
        A = V3_ACC + 32 * j
        for m in range(2):
            a = A + 16 * m
            c = "0" if u == 0 else vr(a, 16)
            g(f"v_mfma_f32_32x32x16_bf16 {vr(a,16)}, {ar(8*u+4*m,4)}, {vr(V3_B+4*(n%8),4)}, {c}")
            if m == 0 and n + PF < len(seq):
                emit_items(g, [bread(n + PF)])
            emit_items(g, extra.get(2 * n + m, []))
        if n == 63:
            g.stamp("p3pass1")
        if n in (7, 15, 23, 31, 39, 47, 55, 71, 79, 87, 95, 103, 111, 119):
            g.stamp(f"p3s{n}")
    g.stamp("p3mfma")
    return nf


def p4_load(g, n):
    sl, ks = n // 14, n % 14
    if ks % 4 == 0:
        g(f"s_add_u32 s{S_T+4}, s{S_X4+sl}, {(ks//4)*4096}")
    g.vm(f"buffer_load_dwordx4 {vr(V4_B+4*(n%NB4),4)}, v{V_L16}, {sr(S_WS,4)}, s{S_T+4} offen offset:{(ks%4)*1024} sc1", f"B4_{n}")


def p4_ship_items(sl):
    out = []
    for i, r0 in enumerate([8, 16, 24]):
        a = V4_ACC + 32 * sl + r0
        for q in range(2):
            out.append(("ds", f"ds_write_b128 v{V_RED+i}, {vr(a+4*q,4)} offset:{sl*6144 + q*1024}", f"RW{sl}"))
    return out


def p4_get_items(g, sl):
    out = [("fn", lambda: (g.lwait(f"RW{sl}"), g("s_barrier")), None)]
    for i in range(6):
        out.append(("ds", f"ds_read_b128 {vr(V4_ACC+32*sl+8+4*i,4)}, v{V_RED+3} offset:{sl*6144 + i*1024}", f"RR{sl}"))
    return out


def padd(d, x, y, pk):
    if pk:
        return [("v", f"v_pk_add_f32 {vr(d,2)}, {vr(x,2)}, {vr(y,2)}", None)]
    return [("v", f"v_add_f32 v{d}, v{x}, v{y}", None), ("v", f"v_add_f32 v{d+1}, v{x+1}, v{y+1}", None)]


def p4_add_items(g, sl, pk=False):
    a = V4_ACC + 32 * sl
    out = [("fn", lambda: g.lwait(f"RR{sl}"), None)]
    for d in range(4):
        out += padd(a + 2 * d, a + 2 * d, a + 8 + 2 * d, pk)
        out += padd(a + 16 + 2 * d, a + 16 + 2 * d, a + 24 + 2 * d, pk)
    for d in range(4):
        out += padd(a + 2 * d, a + 2 * d, a + 16 + 2 * d, pk)
    return out


def p4_send(g, sl):
    a = V4_ACC + 32 * sl
    for d in range(4):
        g(f"v_cvt_pk_bf16_f32 v{a+8+d}, v{a+2*d}, v{a+2*d+1}")
    va = V_L16 if sl == 0 else V4_AD + 9
    g.vm(f"buffer_store_dwordx4 {vr(a+8,4)}, v{va}, {sr(S_WS,4)}, s{S_M4+2} offen sc1", f"XST{sl}")


def p4_recv(g, ti):
    va = V_L16 if ti == 0 else V4_AD + 9
    g.vm(f"buffer_load_dwordx4 {vr(V4_R+4*ti,4)}, v{va}, {sr(S_WS,4)}, s{S_M4+3} offen sc1", f"XLD{ti}")


def p4_extra_items(g, src, dst, pk=False):
    out = []
    for d in range(4):
        out.append(("v", f"v_lshlrev_b32 v{dst+8+2*d}, 16, v{src+d}", None))
        out.append(("v", f"v_and_b32 v{dst+9+2*d}, 0xffff0000, v{src+d}", None))
    for d in range(4):
        out += padd(dst + 2 * d, dst + 2 * d, dst + 8 + 2 * d, pk)
    return out


def p4_out(g, sl):
    a = V4_ACC + 32 * sl
    for d in range(4):
        g(f"v_cvt_pk_bf16_f32 v{a+8+d}, v{a+2*d}, v{a+2*d+1}")
    fl = " " + g.opts.get("outfl", "sc0")
    if sl == 2:
        g.vm(f"buffer_store_dwordx4 {vr(a+8,4)}, v{V4_AD+7}, {sr(S_OUT,4)}, 0 offen{fl}", "OUT")
    else:
        g(f"s_mov_b32 s{S_T}, 32768")
        g.vm(f"buffer_store_dwordx4 {vr(a+8,4)}, v{V4_AD+7}, {sr(S_OUT,4)}, s{S_T} offen{fl}", "OUT")


def p4_main(g, nloaded):
    o = g.opts
    PFN = o.get("pf4", 10)
    g.lwait_all()
    g.stamp("p4pre")
    ex = {}

    def put(hs, items, step=1):
        for i, it in enumerate(items):
            ex.setdefault(hs + int(i * step), []).append(it)
    F = lambda f: [("fn", f, None)]
    put(1, F(lambda: signal(g, HPH[2], ["HHST2"])))
    put(2 * o.get("sig3b", 6), F(lambda: signal(g, HPH[3], ["HHST3"])))
    put(2 * 8, F(lambda: g("s_barrier")))
    pol = {1: (-1, o.get("p1c", 4)), 2: (o.get("p2i", 9), o.get("p2c", 18)), 3: (o.get("p3i", 22), o.get("p3c", 32))}
    put(2 * 16, p4_ship_items(0), 1.5)
    put(2 * 21, p4_get_items(g, 0), 0.5)
    put(2 * 23 + 1, p4_add_items(g, 0), 0.25)
    put(2 * 27, F(lambda: p4_send(g, 0)))
    put(2 * 29 + 1, p4_ship_items(1), 1)
    put(2 * 33, p4_get_items(g, 1), 0.34)
    put(2 * 35, p4_add_items(g, 1), 0.25)
    put(2 * 38 + 1, F(lambda: p4_send(g, 1)))
    put(2 * o.get("xs1", 47), F(lambda: signal(g, 4, ["XST0", "XST1"])))
    put(2 * 43 + 1, p4_ship_items(2), 1)
    put(2 * 48, p4_get_items(g, 2), 0.34)
    put(2 * 50, p4_add_items(g, 2), 0.25)
    put(2 * o.get("xp1", 50), F(lambda: poll_issue(g, 4, "POLL4")))
    put(2 * o.get("xc1", 53), F(lambda: (poll_check(g, 4, "POLL4", S_M4), p4_recv(g, 0), p4_recv(g, 1))))
    put(2 * 53 + 1, p4_extra_items(g, V_HK, V4_ACC + 64), 0.25)
    nl = nloaded
    for n in range(56):
        sl, ks = n // 14, n % 14
        if n in (7, 14, 21, 28, 35, 42, 49):
            g.stamp(f"p4n{n}")
        for sx, (pi, pc) in pol.items():
            if n == pi:
                poll_issue(g, HPH[sx], f"POLLH{sx}", sx & 1)
            if n == pc:
                poll_check(g, HPH[sx], f"POLLH{sx}", S_A2 + 2, sx & 1)
        g.vwait(f"B4_{n}")
        for ia in range(2):
            a = V4_ACC + 32 * sl + 16 * ia
            c = "0" if ks == 0 else vr(a, 16)
            g(f"v_mfma_f32_32x32x16_bf16 {vr(a,16)}, {ar(8*ks+4*ia,4)}, {vr(V4_B+4*(n%NB4),4)}, {c}")
            if nl < 56 and nl <= n + PFN and (nl < 14 or n >= pol[nl // 14][1]):
                p4_load(g, nl)
                nl += 1
            emit_items(g, ex.get(2 * n + ia, []))
    g.stamp("p4mfma")
    g("s_nop 1")
    R = V4_B
    unpack_bf16(g, R, V_HK + 4, 4)
    g("s_nop 1")
    emit_items(g, p4_ship_items(3))
    g.vwait("XLD1")
    emit_items(g, p4_extra_items(g, V4_R + 4, R, True))
    emit_items(g, p4_get_items(g, 3))
    emit_items(g, p4_extra_items(g, V4_R, V4_ACC + 64, True))
    p4_out(g, 2)
    emit_items(g, p4_add_items(g, 3, True))
    a = V4_ACC + 96
    for d in range(4):
        g(f"v_pk_add_f32 {vr(a+2*d,2)}, {vr(a+2*d,2)}, {vr(R+2*d,2)}")
    p4_out(g, 3)


def idle_warm13(g):
    lab = g.lab("iw")
    g(f"s_cmp_ge_u32 s{S_M}, 14\ns_cbranch_scc1 {lab}\n{lab}_j:")
    g.cold.append(f"""{lab}:

        s_lshl_b32 s{S_T}, s{S_G}, 1
        s_and_b32 s{S_T+1}, s{S_M}, 1
        s_add_u32 s{S_T}, s{S_T}, s{S_T+1}
        s_lshl_b32 s{S_T}, s{S_T}, 2
        s_add_u32 s{S_T}, s{S_T}, s{S_WAVE}
        s_mul_i32 s{S_T}, s{S_T}, 7168
        s_add_u32 s{S_T}, s{S_T}, {256*3584}
        s_mov_b32 exec_hi, 0x00ffffff
        buffer_load_dword v3, v2, {sr(S_W1,4)}, s{S_T} offen
        buffer_load_dword v3, v2, {sr(S_W3,4)}, s{S_T} offen
        s_mov_b64 exec, -1
        
    s_branch {lab}_j""")


def write_stamps(g):
    if not g.stamps:
        return
    g(f"""
    s_waitcnt lgkmcnt(0) vmcnt(0)
    s_lshl_b32 s{S_T}, s{S_M}, 2
    s_add_u32 s{S_T}, s{S_T}, s{S_WAVE}
    s_lshl_b32 s{S_T}, s{S_T}, 6
    s_add_u32 s{S_T}, s{S_T}, {WS_STAMP}
    v_mov_b32 v2, 0
    """)
    for i in range(g.nst):
        g(f"v_mov_b32 v3, s{S_STAMP+2*i}")
        g(f"buffer_store_dword v3, v2, {sr(S_WS,4)}, s{S_T} offen offset:{i*4}")
    g(f"v_mov_b32 v3, s{S_FAST}")
    g(f"buffer_store_dword v3, v2, {sr(S_WS,4)}, s{S_T} offen offset:60")


def build(stamps=False, opts=None):
    g = G(stamps, opts)
    o = g.opts
    for k_ in ("srow", "x", "pre", "w"):
        if o.get("nt" + k_, 1 if k_ in ("srow", "x") else 0):
            NT[k_] = " nt"
    n_a = o.get("n_a", 2)
    n_b = o.get("n_b", 3)
    n_c = o.get("n_c", 5)
    n_d = o.get("n_d", 2)
    prologue(g)
    code_prefetch(g, o.get("codesz", 28672))
    p1_setup(g)
    p1_setup_offsets(g)
    for r_, sz in ((S_WQKV, 1572864), (S_X, 2097152), (S_WS, WS_SIZE), (S_WO, 524288)):
        g(f"s_mov_b32 s{r_+2}, {sz}\ns_mov_b32 s{r_+3}, 0x20000")
    g("s_waitcnt lgkmcnt(0)")
    g(f"s_and_b32 s{S_WQKV+1}, s{S_WQKV+1}, 0xffff\ns_and_b32 s{S_X+1}, s{S_X+1}, 0xffff")
    g.stamp("args")
    x0 = p1_dma_x(0)
    emit_items(g, [touch_res3(g, S_WQKV, 12)] + p1_dma_w(0) + x0[:3])
    g.stamp("i2")
    nonce_publish(g)
    g(f"""s_lshl_b32 s{S_T}, s{S_G}, 20
    s_add_u32 s{S_WS}, s{S_WS}, s{S_T}
    s_addc_u32 s{S_WS+1}, s{S_WS+1}, 0
    s_and_b32 s{S_WS+1}, s{S_WS+1}, 0xffff
    s_and_b32 s{S_WO+1}, s{S_WO+1}, 0xffff""")
    dfr = setup_deferred(g)
    emit_items(g, dfr[:16])
    if o.get("tlb", 0):
        lab = g.lab("tlb")
        g(f"""
        s_lshl_b32 s{S_T}, s2, 10
        s_mov_b64 exec, 1
        s_cmp_lg_u32 s{S_WAVE}, 0
        s_cbranch_scc1 {lab}_1
        buffer_load_dword v3, v2, {sr(S_W1,4)}, s{S_T} offen
        buffer_load_dword v3, v2, {sr(S_WO,4)}, s{S_T} offen
        s_branch {lab}_e
        {lab}_1:
        s_cmp_lg_u32 s{S_WAVE}, 1
        s_cbranch_scc1 {lab}_2
        buffer_load_dword v3, v2, {sr(S_W3,4)}, s{S_T} offen
        buffer_load_dword v3, v2, {sr(S_W2,4)}, s{S_T} offen
        s_branch {lab}_e
        {lab}_2:
        s_cmp_lg_u32 s{S_WAVE}, 2
        s_cbranch_scc1 {lab}_3
        buffer_load_dword v3, v2, {sr(S_OUT,4)}, s{S_T} offen
        global_load_dword v3, v{V_NA}, s[{S_DBG}:{S_DBG+1}] offset:128 sc1
        s_branch {lab}_e
        {lab}_3:
        s_lshl_b32 s{S_T}, s{S_M}, 7
        s_add_u32 s{S_T}, s{S_T}, 0xe0000
        buffer_load_dword v3, v2, {sr(S_WS,4)}, s{S_T} offen sc1
        {lab}_e:
        s_mov_b64 exec, -1
        """)
    setup_rest(g)
    emit_items(g, dfr[16:])
    p1_stats_addr(g)
    g.stamp("setup")
    emit_items(g, x0[3:])
    if o.get("ord", 1) == 0:
        emit_items(g, p1_dma_w(1) + p1_srow_items())
    else:
        emit_items(g, p1_srow_items() + p1_dma_w(1))
    g.stamp("issued")
    assert n_a <= NSLOT
    if not o.get("woraw", 0):
        g.bg += wo_dma_items()
    for u in range(min(3, n_a)):
        g.bg += w13_dma_items(u)
    p1_gemm(g)
    g.lwait("WOW")
    g("s_barrier")
    for u in range(3, n_a):
        g.bg += w13_dma_items(u)
    if o.get("kpre", 9) == 16:
        pr = preread_items()
        emit_items(g, pr)
    g.skip = o.get("askip", 0)
    p1_attention(g)
    g.skip = 0
    g.tick(100)
    g.T = 16
    g.stamp("attn")
    u0 = n_a
    assert n_a + n_b <= NSLOT
    for u in range(u0, u0 + n_b):
        emit_items(g, w13_dma_items(u))
    ea = o.get("earlyA", 0)
    rest = []
    for ks in range(8 if ea else 0, 16):
        rest += p2_a_items(ks)
    if ea:
        emit_items(g, rest[8:24])
    w13_stage_setup(g)
    p2_pre(g)
    signal(g, 0, ["OST", "WO"])
    g.stamp("p1done")
    poll_issue(g, 0, "POLL1")
    if not ea:
        g("s_barrier")
        na0 = o.get("na0", 24)
        emit_items(g, rest[:na0])
        o["_late"] = rest[na0:]
    else:
        emit_items(g, rest[:8])
        o["_late"] = rest[24:]
    p3_pre(g)
    for u in range(n_a):
        emit_items(g, w13_pick_items(g, u))
    poll_check(g, 0, "POLL1", 6)
    g.stamp("f1")
    if n_a:
        g.lwait(f"A3_{n_a-1}")
    u0 += n_b
    assert n_b + n_c + n_d <= NSLOT
    if o.get("iw", 0) == 2:
        g.bg.append(("fn", lambda: (idle_warm13(g), g.tick()), None))
    for u in range(u0, u0 + n_c):
        g.bg += w13_dma_items(u)
    o["_picks"] = [it for u in range(n_a, u0 + n_c) for it in w13_pick_items(g, u)]
    p2_main(g)
    assert not g.bg
    u0 += n_c
    if o.get("iw", 0) == 1:
        idle_warm13(g)
    for u in range(u0, u0 + n_d):
        emit_items(g, w13_dma_items(u))
    npre = u0 + n_d
    signal(g, 1, ["HST"])
    if o.get("iw", 0) == 3:
        idle_warm13(g)
    g.stamp("p2done")
    poll_issue(g, 1, "POLL2")
    g("s_mov_b64 s[6:7], -1")
    p34_pre(g, 1)
    for u in range(u0, npre):
        emit_items(g, w13_pick_items(g, u))
    g.lwait_all()
    g("s_barrier")
    hk_exchange_read(g)
    g(f"s_cmp_ge_u32 s{S_M}, 14\ns_cbranch_scc1 L_idle3")
    poll_check(g, 1, "POLL2", 6)
    g.stamp("f2")
    emit_items(g, p3_h_items(0) + p3_h_items(1))
    got = p3_main(g, npre)
    nf = got if got else 8
    ep = p3_epi_sched(TORD[3])
    if not got:
        poll_issue(g, HPH[0], "POLLH0")
    g("s_nop 7\ns_nop 3")
    emit_items(g, ep[:40])
    if not got:
        poll_check(g, HPH[0], "POLLH0", S_A2 + 2)
        for i in range(nf):
            p4_load(g, i)
    poll_issue(g, HPH[1], "POLLH1", 1)
    emit_items(g, ep[40:])
    p3_hh_store(g, TORD[3])
    g.stamp("p3done")
    g("L_p4:")
    p4_main(g, nf)
    g.stamp("end")
    write_stamps(g)
    g("L_done:\ns_endpgm")
    g("L_idle3:")
    g.vq = []
    g.lq = []
    if o.get("iw", 0) == 0:
        idle_warm13(g)
    if o.get("idlepf", 1):
        g(f"""
        s_and_b32 s{S_T}, s{S_G}, 1
        s_lshl_b32 s{S_T}, s{S_T}, 1
        s_and_b32 s{S_T+1}, s{S_M}, 1
        s_add_u32 s{S_T}, s{S_T}, s{S_T+1}
        s_mul_i32 s{S_T}, s{S_T}, {448*1024}
        s_lshl_b32 s{S_T+1}, s{S_WAVE}, 13
        s_add_u32 s{S_T}, s{S_T}, s{S_T+1}
        s_min_u32 s{S_T+1}, s{S_XCD}, 6
        s_lshl_b32 s{S_T+1}, s{S_T+1}, 16
        s_add_u32 s{S_T+1}, s{S_T+1}, s{S_T}
        buffer_load_dword v3, v2, {sr(S_W2,4)}, s{S_T+1} offen
        s_add_u32 s{S_T+1}, s{S_T+1}, 32768
        buffer_load_dword v3, v2, {sr(S_W2,4)}, s{S_T+1} offen
        """)
        if o.get("idr3", 1):
            g(f"""
            v_lshlrev_b32 v{g.T+5}, 10, v{V_L}
            s_mul_i32 s{S_T+1}, s{S_WAVE}, {112*1024 - 8192}
            s_add_u32 s{S_T+1}, s{S_T+1}, s{S_T}
            s_waitcnt vmcnt(0)
            buffer_load_dword v3, v{g.T+5}, {sr(S_W2,4)}, s{S_T+1} offen offset:384
            s_add_u32 s{S_T+1}, s{S_T+1}, {56*1024}
            buffer_load_dword v3, v{g.T+5}, {sr(S_W2,4)}, s{S_T+1} offen offset:384
            """)
        for _ in range(o.get("idsl", 0)):
            g("s_sleep 16")
        for j in [0, 7, 1, 8, 2, 9, 3, 10, 4, 11, 5, 12, 6, 13][:o.get('idn', 0)]:
            g(f"s_add_u32 s{S_T+1}, s{S_T}, {j*32768}")
            g(f"buffer_load_dword v3, v2, {sr(S_W2,4)}, s{S_T+1} offen")
    for ks in range(14):
        emit_items(g, w2_dma_items(ks, S_LB, ks * 2048))
    for ks in range(14):
        emit_items(g, w2_pick_items(g, ks, V4_AD + 2, ks * 2048))
    g.lwait_all()
    if o.get("wbl2", 0):
        g(f"""
        s_cmp_lg_u32 s{S_IDXW}, {31*4}
        s_cbranch_scc1 L_nowb
        buffer_wbl2 sc1
        L_nowb:
        """)
    poll_issue(g, HPH[0], "POLLH0")
    poll_check(g, HPH[0], "POLLH0", S_A2 + 2, slp=True)
    for i in range(nf):
        p4_load(g, i)
    poll_issue(g, HPH[1], "POLLH1", 1)
    g.vwait_all()
    g("s_branch L_p4")
    for c in g.cold:
        g(c)
    return g


if __name__ == "__main__":
    out = sys.argv[1] if len(sys.argv) > 1 else "k.s"
    stamps = "--stamps" in sys.argv
    if "--cyc" in sys.argv:
        stamps = "cyc"
    opts = {}
    if "--slow" in sys.argv:
        opts["slow"] = True
    for a in sys.argv:
        if a.startswith("--st="):
            opts["stsel"] = a[5:].split(",")
        if a.startswith("--o:"):
            k, v = a[4:].split("=")
            opts[k] = int(v) if v.lstrip("-").isdigit() else v
    g = build(stamps, opts)
    emit_file(out, [g.k], single=True)
    print("stamps:", g.nst, g.stnames, "lines:", len(g.k.lines))
```

```python
import sys
import struct
from asmlib import *

KNAME = "sequential_preLN__sliding_local_dilated__glu_gated_swiglu__prompt_kernel"

WS_GRP = 0x100000
WS_O = 0x00000
WS_H = 0x00000
WS_X = 0x20000
WS_HH = 0x40000
WS_ST = 0xB0000
WS_S1 = 0xB8000
WS_FL = 0xC0000
WS_STAMP = 0xD0000
WS_SIZE = WS_GRP
SPIN_MAX = 400000
LOG2E = 1.4426950408889634

S_NONCE = 3
S_IDXW = 4
S_FLO = 5
S_X, S_WQKV, S_WO, S_W1, S_W3, S_W2, S_OUT, S_WS = 8, 12, 16, 20, 24, 28, 32, 36
S_DBG = 100
S_WAVE = 42
S_XCD = 43
S_FAST = 44
S_G = 45
S_M = 46
S_TB = 47
S_KH = 41
S_C8 = 48
S_T = 49
S_ONES = 56
S_XOFF = 57
S_WOFF = 61
S_SW = 65
S_EXM = 66
S_LB = 68
S_C = 70
S_FLB = 71
S_STAMP = 72
S_KO = 66
S_A = 57
S_A2 = 12
S_K2 = 65
S_W2O = 67


NT = {}


def f2h(x):
    return "0x%08x" % struct.unpack("<I", struct.pack("<f", x))[0]


def vr(a, n):
    return f"v[{a}:{a+n-1}]"


def ar(a, n):
    return f"a[{a}:{a+n-1}]"


def sr(a, n):
    return f"s[{a}:{a+n-1}]"


class G:
    def __init__(self, stamps=False, opts=None):
        self.k = Kernel(KNAME, 256, 256, 160 * 1024, nvgpr=256, nagpr=256)
        self.vq = []
        self.lq = []
        self.stamps = stamps
        self.nst = 0
        self.stnames = []
        self.opts = opts or {}
        self.nlab = 0
        self.bg = []
        self.cold = []
        self.T = 212

    def __call__(self, s):
        self.k(s)

    def lab(self, base):
        self.nlab += 1
        return f"L_{base}_{self.nlab}"

    def tick(self, n=1):
        if getattr(self, "skip", 0) > 0:
            self.skip -= 1
            return
        for _ in range(n):
            if self.bg:
                emit_items(self, [self.bg.pop(0)])

    def vm(self, ins, tag):
        self.k(ins)
        self.vq.append(tag)

    def store(self, ins, tag):
        a = self.lab("slow")
        self.k(f"s_cmp_eq_u32 s{S_FAST}, 0\ns_cbranch_scc1 {a}")
        for x in ins:
            self.k(x)
        self.k(f"{a}_j:")
        self.cold.append(f"{a}:\n" + "\n".join(x + " sc1" for x in ins) + f"\ns_branch {a}_j")
        self.vq += [tag] * len(ins)

    def vwait(self, *tags):
        last = -1
        for i, t in enumerate(self.vq):
            if t in tags:
                last = i
        if last < 0:
            return
        n = len(self.vq) - 1 - last
        if n > 63:
            n = 63
            last = len(self.vq) - 1 - 63
        self.k(f"s_waitcnt vmcnt({n})")
        self.vq = self.vq[last + 1:]

    def vwait_all(self):
        self.k("s_waitcnt vmcnt(0)")
        self.vq = []

    def ds(self, ins, tag):
        self.k(ins)
        self.lq.append(tag)

    def lwait(self, *tags):
        last = -1
        for i, t in enumerate(self.lq):
            if t in tags:
                last = i
        if last < 0:
            return
        n = len(self.lq) - 1 - last
        if n > 15:
            n = 15
            last = len(self.lq) - 1 - 15
        self.k(f"s_waitcnt lgkmcnt({n})")
        self.lq = self.lq[last + 1:]

    def lwait_all(self):
        self.k("s_waitcnt lgkmcnt(0)")
        self.lq = []

    def stamp(self, name):
        if not self.stamps:
            return
        sel = self.opts.get("stsel")
        if sel is not None and name not in sel:
            return
        r = S_STAMP + 2 * self.nst
        assert r + 1 <= 99, "too many stamps"
        self.k(f"{'s_memtime' if self.stamps == 'cyc' and self.nst > 0 else 's_memrealtime'} s[{r}:{r+1}]")
        self.nst += 1
        self.stnames.append(name)

    def srd(self, s, lo, hi, size):
        self(f"s_mov_b32 s{s}, s{lo}\ns_and_b32 s{s+1}, s{hi}, 0xffff\ns_mov_b32 s{s+2}, {size}\ns_mov_b32 s{s+3}, 0x20000")


def emit_items(g, items):
    for kind, ins, tag in items:
        if kind == "ds":
            g.ds(ins, tag)
        elif kind == "vm":
            g.vm(ins, tag)
        elif kind == "fn":
            ins()
        else:
            g(ins)


def sched(g, mf, slots):
    for i, x in enumerate(mf):
        g(x)
        emit_items(g, slots.get(i, []))


def spread(slots, items, lo, hi):
    n = hi - lo
    for j, it in enumerate(items):
        slots.setdefault(lo + j * n // len(items), []).append(it)


V_L = 1
V_TR = 224
V_D128 = 226
V_L16 = 227
V_RED = 228
V_XO = 232
V3_WD = 233
V3_TR = 234
V3_SW = 235
V3_HB = 236
V_GA = 237
V_OS = 238
V_L4 = 239
V_XRES = 240
V_HK = 248
V_XD = 4
V_WD = 9
V_XR = 10
V_WR = 14
V_MK = 16
V_ACC = 36
V_AF = 96
V_BF = 120
V_NM2 = 160
V_SR = 160
V_NM = 200
V_NA = 210
V_S1A = 220
V_ONE2 = 222

L_X = 0
L_W = 61440
L_MISC = 159744
L_WO = 45056


def prologue(g):
    g.stamp("start")
    g(f"""
    s_cmp_ge_u32 s2, 256
    s_cbranch_scc1 L_done
    s_load_dwordx2 s[{S_WQKV}:{S_WQKV+1}], s[0:1], 8
    s_load_dwordx2 s[{S_X}:{S_X+1}], s[0:1], 0
    s_load_dwordx2 s[{S_DBG}:{S_DBG+1}], s[0:1], 64
    s_load_dwordx2 s[{S_WS}:{S_WS+1}], s[0:1], 72
    s_load_dwordx2 s[{S_WO}:{S_WO+1}], s[0:1], 16
    s_load_dwordx8 s[{S_STAMP+20}:{S_STAMP+27}], s[0:1], 32
    v_lshrrev_b32 v2, 6, v0
    v_and_b32 v1, 63, v0
    s_and_b32 s{S_XCD}, s2, 7
    v_readfirstlane_b32 s{S_WAVE}, v2
    s_lshr_b32 s{S_T+1}, s2, 3
    s_lshr_b32 s{S_T}, s{S_T+1}, 4
    s_lshl_b32 s{S_G}, s{S_XCD}, 1
    s_add_u32 s{S_G}, s{S_G}, s{S_T}
    s_and_b32 s{S_M}, s{S_T+1}, 15
    s_lshl_b32 s{S_IDXW}, s{S_T+1}, 2
    s_add_u32 s{S_IDXW}, s{S_IDXW}, s{S_WAVE}
    s_lshr_b32 s{S_KH}, s{S_M}, 3
    s_lshl_b32 s{S_TB}, s{S_G}, 1
    s_add_u32 s{S_TB}, s{S_TB}, s{S_KH}
    s_and_b32 s{S_C8}, s{S_M}, 7
    """)


def code_prefetch(g, nbytes):
    g(f"""
    s_getpc_b64 s[6:7]
    L_pc:
    v_lshlrev_b32 v2, 7, v{V_L}
    s_lshl_b32 s{S_T}, s{S_IDXW}, 8
    v_add_u32 v4, s{S_T}, v2
    v_min_u32 v4, L_codeend-L_pc-4, v4
    s_mov_b64 exec, 3
    """)
    g.vm("global_load_dword v3, v4, s[6:7]", "PF")
    g("s_mov_b64 exec, -1")
    g("s_memrealtime s[6:7]")


def p1_setup(g):
    l = V_L
    t = g.T
    g(f"""
    v_lshrrev_b32 v{t+2}, 3, v{l}
    v_bfe_u32 v{t+3}, v{l}, 4, 1
    s_and_b32 s{S_T}, s{S_WAVE}, 1
    s_lshl_b32 s{S_T}, s{S_T}, 1
    v_or_b32 v{t+3}, s{S_T}, v{t+3}
    v_lshlrev_b32 v{t+3}, 1, v{t+3}
    v_and_b32 v{t+4}, 7, v{l}
    v_xor_b32 v{t+3}, v{t+3}, v{t+4}
    s_lshl_b32 s{S_T}, s{S_WAVE}, 3
    v_add_u32 v{t+2}, s{S_T}, v{t+2}
    v_mul_u32_u24 v{t+2}, 3072, v{t+2}
    v_lshl_add_u32 v{t+2}, v{t+3}, 4, v{t+2}
    s_lshl_b32 s{S_T}, s{S_C8}, 7
    v_add_u32 v{V_WD}, s{S_T}, v{t+2}
    s_lshl_b32 s{S_LB}, s{S_WAVE}, 10
    s_mul_i32 s{S_LB+1}, s{S_WAVE}, 3072
    v_lshrrev_b32 v{t}, 4, v0                 ; p = tid>>4
    v_and_b32 v{t+1}, 15, v{l}
    v_xor_b32 v{t+1}, v{t+1}, v{t}
    v_lshlrev_b32 v{t+1}, 4, v{t+1}
    s_lshl_b32 s{S_T+1}, s{S_TB}, 16          ; T0*1024
    v_add_u32 v{t+1}, s{S_T+1}, v{t+1}
    v_lshl_add_u32 v{V_XD+1}, v{t}, 11, v{t+1}
    s_lshr_b32 s{S_T}, s{S_WAVE}, 1           ; p>>3
    s_mul_i32 s{S_T}, s{S_T}, {17*1024}
    s_add_u32 s{S_T}, s{S_T}, {15*1024}
    v_subrev_u32 v{V_XD}, s{S_T}, v{V_XD+1}   ; 2p - 16(p>>3) - 15 - (p>>3)
    v_lshlrev_b32 v{V_L16}, 4, v{l}
    v_min_u32 v{V_SR+17}, 9, v{t}
    s_mul_i32 s{S_T}, s{S_C8}, 10
    v_add_u32 v{V_SR+17}, s{S_T}, v{V_SR+17}  ; e = delta + 16
    s_sub_u32 s{S_T}, s{S_T+1}, {16*1024}
    v_and_b32 v{t+2}, 0xf0, v{V_L16}
    v_lshl_add_u32 v{t+2}, v{V_SR+17}, 10, v{t+2}
    v_add_u32 v{V_SR+16}, s{S_T}, v{t+2}
    """)


def p1_setup_offsets(g):
    g(f"""
    s_cmp_eq_u32 s{S_WAVE}, 0
    s_cselect_b32 s{S_EXM}, 0xffff0000, -1
    s_mov_b32 s{S_EXM+1}, -1
    {["s_mov_b32 s%d, s%d" % (S_T, S_XCD), "s_add_u32 s%d, s%d, s%d" % (S_T, S_XCD, S_TB), "s_lshl_b32 s%d, s%d, 1" % (S_T, S_G) + chr(10) + "s_add_u32 s%d, s%d, s%d" % (S_T, S_T, S_XCD)][g.opts.get("rot", 0)]}
    s_and_b32 s{S_T}, s{S_T}, 3
    s_lshr_b32 s{S_T+2}, s{S_XCD}, 2
    s_mul_i32 s{S_SW}, s{S_T+2}, {64*3072}
    """)
    for q in range(4):
        g(f"""
        s_add_u32 s{S_T+1}, s{S_T}, {q}
        s_and_b32 s{S_T+1}, s{S_T+1}, 3
        s_lshl_b32 s{S_XOFF+q}, s{S_T+1}, 8
        s_mul_i32 s{S_WOFF+q}, s{S_T+1}, {128*3072}
        """)


def p1_srow_items():
    return [("vm", f"buffer_load_dwordx4 {vr(V_SR+4*i,4)}, v{V_SR+16}, {sr(S_X,4)}, 0 offen offset:{256*i}{NT.get('srow','')}", "SROW") for i in range(4)]


def nonce_publish(g):
    lab = g.lab("nolead")
    t = g.T
    g(f"""
    s_lshl_b32 s{S_T}, s{S_G}, 2
    v_mov_b32 v{V_NA}, s{S_T}
    s_or_b32 s{S_T+1}, s{S_M}, s{S_WAVE}
    s_cmp_lg_u32 s{S_T+1}, 0
    s_cbranch_scc1 {lab}
    s_or_b32 s{S_T+1}, s6, 1
    v_mov_b32 v{t+6}, s{S_T+1}
    s_mov_b64 exec, 1
    global_store_dword v{V_NA}, v{t+6}, s[{S_DBG}:{S_DBG+1}] sc1
    s_mov_b64 exec, -1
    {lab}:
    """)


def nonce_poll_issue(g):
    g.vm(f"global_load_dword v{V_NA+1}, v{V_NA}, s[{S_DBG}:{S_DBG+1}] sc1", "NONCE")


def nonce_check(g):
    lp = g.lab("nl")
    g.vwait("NONCE")
    g(f"""
    v_readfirstlane_b32 s{S_NONCE}, v{V_NA+1}
    s_mov_b32 s{S_T+6}, 0
    s_cmp_eq_u32 s{S_NONCE}, 0
    s_cbranch_scc1 {lp}
    {lp}_ok:
    """)
    g.cold.append(f"""{lp}:
    global_load_dword v{V_NA+1}, v{V_NA}, s[{S_DBG}:{S_DBG+1}] sc1
    s_add_u32 s{S_T+6}, s{S_T+6}, 1
    s_waitcnt vmcnt(0)
    v_readfirstlane_b32 s{S_NONCE}, v{V_NA+1}
    s_cmp_gt_u32 s{S_T+6}, {SPIN_MAX}
    s_cbranch_scc1 {lp}_ok
    s_cmp_eq_u32 s{S_NONCE}, 0
    s_cbranch_scc1 {lp}
    s_branch {lp}_ok""")


def p1_stats_addr(g):
    e = V_SR + 17
    b = V_SR + 18
    g(f"""
    v_lshrrev_b32 v{b}, 1, v{e}
    v_and_b32 v{b+1}, 1, v{e}
    v_lshl_add_u32 v{b+2}, v{b+1}, 5, v{b}
    v_add_u32 v{b+2}, 8, v{b+2}
    v_xor_b32 v{b+1}, 1, v{b+1}
    v_lshl_add_u32 v{b}, v{b+1}, 3, v{b}
    v_cmp_gt_u32 vcc, 16, v{e}
    s_nop 1
    v_cndmask_b32 v{e}, v{b+2}, v{b}, vcc
    v_lshlrev_b32 v{e}, 3, v{e}
    """)


def p1_stats_compute(g):
    R = V_SR
    a = R + 18
    g.vwait("SROW")
    for i in range(2):
        g(f"v_dot2_f32_bf16 v{a+2*i}, v{R+i}, s{S_ONES}, 0")
        g(f"v_dot2_f32_bf16 v{a+2*i+1}, v{R+i}, v{R+i}, 0")
    for d in range(2, 16):
        i = d & 1
        g(f"v_dot2c_f32_bf16 v{a+2*i}, s{S_ONES}, v{R+d}")
        g(f"v_dot2c_f32_bf16 v{a+2*i+1}, v{R+d}, v{R+d}")
    g(f"""
    s_lshl_b32 s{S_T+2}, s{S_KH}, 10
    s_add_u32 s{S_T+2}, s{S_T+2}, {WS_S1}
    s_nop 0
    v_pk_add_f32 {vr(a,2)}, {vr(a,2)}, {vr(a+2,2)}
    s_nop 1
    """)
    for sh in (8, 4, 2, 1):
        g(f"v_add_f32_dpp v{a}, v{a}, v{a} row_ror:{sh} row_mask:0xf bank_mask:0xf")
        g(f"v_add_f32_dpp v{a+1}, v{a+1}, v{a+1} row_ror:{sh} row_mask:0xf bank_mask:0xf")
        g("s_nop 0")
    g(f"""
    v_mul_f32 v{a+2}, {f2h(-1.0/512)}, v{a}
    v_mul_f32 v{a+3}, {f2h(1.0/512)}, v{a+1}
    v_fma_f32 v{a+3}, -v{a+2}, v{a+2}, v{a+3}
    v_max_f32 v{a+3}, 0, v{a+3}
    v_add_f32 v{a+3}, {f2h(1e-5)}, v{a+3}
    v_rsq_f32 v{a+3}, v{a+3}
    s_mov_b32 exec_lo, 0x00010001
    s_mov_b32 exec_hi, 0x00010001
    """)
    assert a % 2 == 0
    g.vm(f"buffer_store_dwordx2 {vr(a+2,2)}, v{R+17}, {sr(S_WS,4)}, s{S_T+2} offen sc1", "S1ST")
    g("s_mov_b64 exec, -1")


def p1_started(g):
    lab = g.lab("nostart")
    t = g.T
    g(f"""
    s_cmp_lg_u32 s{S_WAVE}, 0
    s_cbranch_scc1 {lab}
    s_getreg_b32 s{S_T+4}, hwreg(HW_REG_XCC_ID)
    s_and_b32 s{S_T+4}, s{S_T+4}, 15
    s_lshl_b32 s{S_T+5}, s{S_M}, 3
    s_add_u32 s{S_T+5}, s{S_T+5}, s{S_FLB}
    v_mov_b32 v{t+2}, {7*4096}
    v_mov_b32 v{t}, s{S_NONCE}
    v_mov_b32 v{t+1}, s{S_T+4}
    s_mov_b64 exec, 1
    buffer_store_dwordx2 {vr(t,2)}, v{t+2}, {sr(S_WS,4)}, s{S_T+5} offen sc1
    s_mov_b64 exec, -1
    {lab}:
    """)


def setup_rest(g):
    l = V_L
    t = g.T
    a = S_STAMP + 20
    g(f"""
    s_mov_b32 s{S_ONES}, 0x3f803f80
    s_mov_b32 s{S_FLB}, 0
    s_add_u32 s{S_FLB}, s{S_FLB}, {WS_FL}
    s_lshl_b32 s{S_T}, s{S_M}, 4
    s_lshl_b32 s{S_T+1}, s{S_WAVE}, 2
    s_add_u32 s{S_FLO}, s{S_T}, s{S_T+1}
    s_add_u32 s{S_FLO}, s{S_FLO}, s{S_FLB}
    v_lshlrev_b32 v{V_L4}, 2, v{l}
    v_lshrrev_b32 v{t}, 4, v{l}            ; g
    v_and_b32 v{t+1}, 15, v{l}             ; r
    v_xor_b32 v{t+2}, v{t}, v{t+1}
    s_lshr_b32 s{S_T+2}, s{S_XCD}, 2
    s_lshl_b32 s{S_T+2}, s{S_T+2}, 3
    v_xor_b32 v{t+2}, s{S_T+2}, v{t+2}
    v_lshlrev_b32 v{t+3}, 8, v{t+1}
    """)
    for ks in range(4):
        g(f"""
        v_xor_b32 v{t+4}, {4*ks}, v{t+2}
        v_lshl_add_u32 v{V_XR+ks}, v{t+4}, 4, v{t+3}
        """)
    g(f"""
    v_mul_u32_u24 v{t+2}, 3072, v{t}
    v_bfe_u32 v{t+3}, v{l}, 2, 2
    v_lshl_add_u32 v{t+2}, v{t+3}, 7, v{t+2}
    v_bfe_u32 v{t+3}, v{l}, 3, 2
    v_xor_b32 v{t+3}, s{S_WAVE}, v{t+3}
    v_lshl_add_u32 v{t+2}, v{t+3}, 5, v{t+2}
    v_and_b32 v{t+3}, 3, v{l}
    v_lshl_add_u32 v{t+2}, v{t+3}, 3, v{t+2}
    v_add_u32 v{V_WR}, {L_W}, v{t+2}
    v_add_u32 v{V_WR+1}, {L_W+49152}, v{t+2}
    """)
    lab = g.lab("noones")
    g(f"""
    v_mov_b32 v{t+4}, s{S_ONES}
    v_mov_b32 v{t+5}, s{S_ONES}
    v_mov_b32 v{t+6}, s{S_ONES}
    v_mov_b32 v{t+7}, s{S_ONES}
    v_mov_b32 v{V_ONE2}, s{S_ONES}
    v_mov_b32 v{V_ONE2+1}, s{S_ONES}
    v_min_u32 v{t+2}, 2, v{t}
    v_mul_u32_u24 v{t+2}, 20480, v{t+2}
    v_lshl_add_u32 v{t+2}, v{t+1}, 4, v{t+2}
    s_cmp_lg_u32 s{S_WAVE}, 0
    s_cbranch_scc1 {lab}
    ds_write_b128 v{t+2}, {vr(t+4,4)} offset:{L_X}
    {lab}:
    v_lshlrev_b32 v{V_S1A}, 3, v{t+1}          ; r*8
    v_lshlrev_b32 v{V_S1A+1}, 5, v{t}          ; g*32
    """)


class Rec:
    def __init__(self, g):
        self.g = g
        self.items = []
        self.T = g.T

    def __call__(self, s):
        self.items.append(("v", s, None))

    def lab(self, b):
        return self.g.lab(b)

    def srd(self, s, lo, hi, size):
        self(f"s_mov_b32 s{s}, s{lo}\ns_and_b32 s{s+1}, s{hi}, 0xffff\ns_mov_b32 s{s+2}, {size}\ns_mov_b32 s{s+3}, 0x20000")


def setup_deferred(g0):
    g = Rec(g0)
    l = V_L
    t = 184
    a = S_STAMP + 20
    nw = g0.opts.get("now", 0)
    g.srd(S_W1, a, a + 1, 0 if nw & 1 else 1835008)
    g.srd(S_W3, a + 2, a + 3, 0 if nw & 1 else 1835008)
    g.srd(S_W2, a + 4, a + 5, 0 if nw & 2 else 1835008)
    g.srd(S_OUT, a + 6, a + 7, 2097152)
    g(f"""
    v_lshrrev_b32 v{t}, 4, v{l}
    v_and_b32 v{t+1}, 15, v{l}
    """)
    M = V_MK
    big = f2h(-1e30)
    g(f"""
    v_lshlrev_b32 v{t+2}, 2, v{t}
    v_sub_u32 v{t+3}, v{t+2}, v{t+1}           ; d0 = 4g - q (signed)
    s_cmp_eq_u32 s{S_TB}, 0
    s_cselect_b32 s0, {big}, 0
    s_mov_b32 s1, {big}
    v_mov_b32 v{t+5}, s1
    v_mov_b32 v{t+6}, s0
    v_mov_b32 v{M+16}, 0
    v_mov_b32 v{M+17}, 0
    """)
    for r in range(4):
        g(f"""
        v_add_u32 v{t+4}, {r+7}, v{t+3}
        v_cmp_gt_u32 vcc, 8, v{t+4}
        v_mov_b32 v{t+7}, {hex(0xffff << (16*(r&1)))}
        s_nop 0
        v_cndmask_b32 v{M+r}, v{t+5}, 0, vcc
        v_cndmask_b32 v{t+7}, 0, v{t+7}, vcc
        v_or_b32 v{M+16+r//2}, v{M+16+r//2}, v{t+7}
        v_add_u32 v{t+4}, {r}, v{t+3}
        v_cmp_lt_i32 vcc, 8, v{t+4}                ; d >= 9
        s_nop 1
        v_cndmask_b32 v{M+4+r}, v{t+5}, 0, vcc
        v_cndmask_b32 v{M+8+r}, v{t+5}, v{t+6}, vcc
        v_cmp_lt_i32 vcc, 0, v{t+4}                ; d >= 1
        v_cmp_gt_u32 s[6:7], 2, v{t}   ; c <= 7  <=> g < 2
        s_and_b64 vcc, vcc, s[6:7]
        s_nop 1
        v_cndmask_b32 v{M+12+r}, v{t+5}, v{t+6}, vcc
        """)
    g(f"""
    v_not_b32 v{M+18}, v{M+16}
    v_not_b32 v{M+19}, v{M+17}
    """)
    g(f"""
    s_lshl_b32 s0, s{S_KH}, 16
    s_lshl_b32 s1, s{S_C8}, 12
    s_add_u32 s0, s0, s1
    s_lshl_b32 s1, s{S_WAVE}, 10
    s_add_u32 s0, s0, s1
    s_add_u32 s0, s0, {WS_O}
    v_lshrrev_b32 v{t+2}, 5, v{l}
    v_lshlrev_b32 v{t+2}, 9, v{t+2}
    v_lshl_add_u32 v{t+2}, v{t+1}, 5, v{t+2}
    v_and_b32 v{t+3}, 1, v{t}
    v_lshl_add_u32 v{t+2}, v{t+3}, 4, v{t+2}
    v_add_u32 v{V_OS}, s0, v{t+2}
    """)
    g(f"""
    v_lshrrev_b32 v{t+2}, 3, v{l}
    v_lshlrev_b32 v{t+2}, 10, v{t+2}
    v_bfe_u32 v{t+3}, v{l}, 4, 1
    v_lshlrev_b32 v{t+3}, 2, v{t+3}
    v_and_b32 v{t+4}, 7, v{l}
    v_xor_b32 v{t+3}, v{t+3}, v{t+4}
    v_lshl_add_u32 v{t+2}, v{t+3}, 4, v{t+2}
    s_lshl_b32 s0, s{S_C8}, 7
    v_add_u32 v{V_D128}, s0, v{t+2}
    """)
    lab = g.lab("w13ok")
    g(f"""
    v_lshrrev_b32 v{t+2}, 2, v{l}
    v_mul_u32_u24 v{t+2}, 3584, v{t+2}
    v_and_b32 v{t+3}, 3, v{l}
    v_lshl_add_u32 v{t+2}, v{t+3}, 4, v{t+2}
    s_lshl_b32 s0, s{S_M}, 8
    s_lshl_b32 s1, s{S_WAVE}, 6
    s_add_u32 s0, s0, s1
    s_cmp_lt_u32 s{S_M}, 14
    s_cselect_b32 s0, s0, 0x40000000
    v_add_u32 v{V3_WD}, s0, v{t+2}
    """)
    g(f"""
    v_bfe_u32 v{t+3}, v{l}, 4, 1
    v_lshlrev_b32 v{t+2}, 5, v{t+3}
    v_and_b32 v{t+3}, 1, v{l}
    v_lshl_add_u32 v{t+2}, v{t+3}, 4, v{t+2}
    v_bfe_u32 v{t+3}, v{l}, 1, 1
    v_lshl_add_u32 v{t+2}, v{t+3}, 3, v{t+2}  ; (G&1)*32 + (c&1)*16 + (c>>1)*8
    v_lshrrev_b32 v{t+4}, 5, v{l}
    v_lshlrev_b32 v{t+4}, 3, v{t+4}
    v_bfe_u32 v{t+3}, v{l}, 2, 2
    v_add_u32 v{t+4}, v{t+4}, v{t+3}          ; 8h + r
    v_lshl_add_u32 v{t+5}, v{t+4}, 7, v{t+2}
    v_lshl_add_u32 v{t+6}, v{t+4}, 6, v{t+2}
    v_bfe_u32 v{t+3}, v{l}, 3, 1
    s_lshr_b32 s0, s{S_WAVE}, 1
    v_xor_b32 v{t+3}, s0, v{t+3}
    v_lshl_add_u32 v{V_TR}, v{t+3}, 6, v{t+5}
    v_xor_b32 v{V_TR+1}, 64, v{V_TR}
    s_lshl_b32 s0, s{S_WAVE}, 10
    s_add_u32 s0, s0, {L_MISC}
    v_add_u32 v{V3_TR}, s0, v{t+6}
    v_add_u32 v{V3_SW}, s0, v{V_L16}
    v_add_u32 v{V3_HB}, 65536, v{V_L16}
    """)
    g(f"""
    v_lshrrev_b32 v{t+2}, 3, v{l}
    v_lshlrev_b32 v{t+2}, 10, v{t+2}
    v_bfe_u32 v{t+3}, v{l}, 4, 1
    v_lshlrev_b32 v{t+3}, 1, v{t+3}
    v_and_b32 v{t+4}, 7, v{l}
    v_xor_b32 v{t+3}, v{t+3}, v{t+4}
    v_lshl_add_u32 v{t+2}, v{t+3}, 4, v{t+2}
    s_lshl_b32 s0, s{S_C8}, 7
    v_add_u32 v{V_RED}, s0, v{t+2}
    v_xor_b32 v{V_RED+1}, 64, v{V_RED}
    v_lshlrev_b32 v{t+2}, 10, v{t}
    v_bfe_u32 v{t+3}, v{l}, 2, 2
    v_lshl_add_u32 v{t+2}, v{t+3}, 7, v{t+2}
    v_bfe_u32 v{t+3}, v{l}, 3, 2
    v_lshl_add_u32 v{t+2}, v{t+3}, 5, v{t+2}
    v_and_b32 v{t+3}, 3, v{l}
    v_lshl_add_u32 v{t+2}, v{t+3}, 3, v{t+2}
    v_add_u32 v{V_RED+2}, {L_WO}, v{t+2}
    s_and_b32 s0, s{S_WAVE}, 1
    s_lshl_b32 s0, s0, 8
    v_lshlrev_b32 v{t+2}, 4, v{t+1}
    v_add_u32 v{t+2}, s0, v{t+2}
    v_lshl_add_u32 v{V_GA}, v{t}, 9, v{t+2}
    v_and_b32 v{t+3}, 1, v{t}
    v_lshl_add_u32 v{t+2}, v{t+3}, 10, v{t+2}
    v_lshrrev_b32 v{t+3}, 1, v{t}
    v_lshl_add_u32 v{V_RED+3}, v{t+3}, 9, v{t+2}
    s_lshl_b32 s0, s{S_TB}, 16
    s_lshl_b32 s1, s{S_WAVE}, 14
    s_add_u32 s0, s0, s1
    s_lshl_b32 s1, s{S_C8}, 7
    s_add_u32 s0, s0, s1
    v_lshlrev_b32 v{t+2}, 10, v{t+1}
    v_lshl_add_u32 v{t+2}, v{t}, 3, v{t+2}
    v_add_u32 v{V_XO}, s0, v{t+2}
    """)
    out = []
    for _, txt, _ in g.items:
        lines = [x.strip() for x in txt.split("\n") if x.strip() and not x.strip().startswith(";")]
        i = 0
        while i < len(lines):
            if lines[i].startswith("s_cmp"):
                out.append(("v", lines[i] + "\n" + lines[i + 1], None))
                i += 2
            else:
                out.append(("v", lines[i], None))
                i += 1
    return out


def touch(srd, nlines, pre, va="v2", off=0):
    o = f" offset:{off}" if off else ""
    return ("vm", f"""{pre}
    s_mov_b64 exec, {hex((1 << nlines) - 1)}
    buffer_load_dword v3, {va}, {sr(srd,4)}, s{S_T+3} offen{o}
    s_mov_b64 exec, -1""", "PF")


def touch_w13(i):
    pre = f"""s_and_b32 s{S_T+3}, s{S_XCD}, 3
    s_lshl_b32 s{S_T+3}, s{S_T+3}, 1
    s_lshr_b32 s{S_T+2}, s{S_XCD}, 2
    s_add_u32 s{S_T+3}, s{S_T+3}, s{S_T+2}
    s_lshl_b32 s{S_T+3}, s{S_T+3}, 7
    s_add_u32 s{S_T+3}, s{S_T+3}, s{S_IDXW}
    s_mul_i32 s{S_T+3}, s{S_T+3}, 896"""
    return touch(S_W1 if i % 2 == 0 else S_W3, 7, pre)


def touch_wo(j):
    pre = f"""s_add_u32 s{S_T+3}, s{S_XCD}, {j}
    s_and_b32 s{S_T+3}, s{S_T+3}, 1
    s_lshl_b32 s{S_T+3}, s{S_T+3}, 18
    s_lshl_b32 s{S_T+2}, s{S_IDXW}, 11
    s_add_u32 s{S_T+3}, s{S_T+3}, s{S_T+2}"""
    return touch(S_WO, 16, pre)


def touch_res3(g, srd, nlines):
    t = g.T + 7
    return touch(srd, nlines, f"v_lshlrev_b32 v{t}, 10, v{V_L}\ns_mul_i32 s{S_T+3}, s{S_IDXW}, {nlines*1024}", f"v{t}", 384)


def p1_dma_x(q):
    slot = q % 3
    out = []
    rowoff = [0, 0, 32 * 1024, 1024, 33 * 1024]
    for i in range(5):
        pre = f"s_add_u32 m0, s{S_LB}, {L_X + slot*20480 + i*4096}\n"
        if i == 0:
            pre += f"s_mov_b64 exec, s[{S_EXM}:{S_EXM+1}]\n"
            ins = pre + f"buffer_load_dwordx4 v{V_XD}, {sr(S_X,4)}, s{S_XOFF+q} offen{NT.get('x','')} lds\ns_mov_b64 exec, -1"
        else:
            pre += f"s_add_u32 s{S_T+1}, s{S_XOFF+q}, {rowoff[i]}\n"
            ins = pre + f"buffer_load_dwordx4 v{V_XD+1}, {sr(S_X,4)}, s{S_T+1} offen{NT.get('x','')} lds"
        out.append(("vm", ins, f"X{q}"))
    return out


def p1_dma_w(s):
    slot = s % 4
    q = s // 2
    out = []
    for hi in range(2):
        if s & 1:
            pre = f"s_sub_u32 s{S_T}, {64*3072 + hi*32*3072}, s{S_SW}\n"
        else:
            pre = f"s_add_u32 s{S_T}, {hi*32*3072}, s{S_SW}\n"
        pre += f"s_add_u32 m0, s{S_LB+1}, {L_W + slot*24576 + hi*4*3072}\n"
        pre += f"s_add_u32 s{S_T}, s{S_T}, s{S_WOFF+q}\n"
        for p in range(3):
            out.append(("vm", (pre if p == 0 else "") + f"buffer_load_dwordx4 v{V_WD}, {sr(S_WQKV,4)}, s{S_T} offen offset:{p*1024}{NT.get('w','')} lds", f"W{s}"))
    return out


def p1_read_frags(n):
    s = n // 2
    kk = n % 2
    buf = n & 1
    q = n // 4
    ks = n % 4
    slot = s % 4
    wa = V_WR + (slot // 2)
    ins = []
    for p in range(3):
        for half in range(2):
            d = V_AF + buf * 12 + p * 4 + half * 2
            off = (slot % 2) * 24576 + kk * 12288 + p * 1024 + half * 512
            ins.append(f"ds_read_b64_tr_b16 {vr(d,2)}, v{wa} offset:{off}")
    for t in range(5):
        d = V_BF + buf * 20 + t * 4
        ins.append(f"ds_read_b128 {vr(d,4)}, v{V_XR+ks} offset:{L_X + (q%3)*20480 + t*4096}")
    return ins


def acc1(p, t):
    return V_ACC + (p * 5 + t) * 4


def p1_mfmas(n):
    buf = n & 1
    ins = []
    for t in range(5):
        for p in range(3):
            a = acc1(p, t)
            c = "0" if n == 0 else vr(a, 4)
            w = vr(V_AF + buf * 12 + p * 4, 4)
            x = vr(V_BF + buf * 20 + t * 4, 4)
            if p == 2:
                w, x = x, w
            ins.append(f"v_mfma_f32_16x16x32_bf16 {vr(a,4)}, {w}, {x}, {c}")
    return ins


def poll_started_issue(g):
    t = g.T
    g(f"s_add_u32 s{S_T+4}, s{S_FLB}, {7*4096}")
    g.vm(f"buffer_load_dwordx2 {vr(t,2)}, v{V_S1A}, {sr(S_WS,4)}, s{S_T+4} offen sc1", "POLL0")


def poll_started_check(g):
    t = g.T
    lp = g.lab("pst")
    g.vwait("POLL0")
    g(f"""
    v_cmp_ne_u32 vcc, s{S_NONCE}, v{t}
    s_mov_b32 s{S_T+6}, 0
    s_cbranch_vccnz {lp}
    {lp}_ok:
    v_readfirstlane_b32 s{S_T+4}, v{t+1}
    s_lshl_b32 s{S_T+5}, s{S_KH}, 10
    s_add_u32 s{S_T+5}, s{S_T+5}, {WS_S1}
    v_cmp_ne_u32 vcc, s{S_T+4}, v{t+1}
    s_nop 0
    s_cmp_eq_u64 vcc, 0
    s_cselect_b32 s{S_FAST}, {0 if g.opts.get('slow') else 1}, 0
    """)
    g.cold.append(f"""{lp}:
    buffer_load_dwordx2 {vr(t,2)}, v{V_S1A}, {sr(S_WS,4)}, s{S_T+4} offen sc1
    s_add_u32 s{S_T+6}, s{S_T+6}, 1
    s_cmp_gt_u32 s{S_T+6}, {SPIN_MAX}
    s_waitcnt vmcnt(0)
    s_cbranch_scc1 {lp}_ok
    v_cmp_ne_u32 vcc, s{S_NONCE}, v{t}
    s_cbranch_vccnz {lp}
    s_branch {lp}_ok""")


def nm_dma_items():
    return [("vm", f"""s_lshl_b32 s{S_T+4}, s{S_WAVE}, 10
    s_add_u32 m0, s{S_T+4}, {L_MISC}
    s_add_u32 s{S_T+4}, s{S_T+4}, {L_MISC}
    buffer_load_dwordx4 v{V_L16}, {sr(S_WS,4)}, s{S_T+5} offen sc1 lds
    v_add_u32 v{V_S1A}, s{S_T+4}, v{V_S1A}
    v_add_u32 v{V_S1A+1}, s{S_T+4}, v{V_S1A+1}""", "NM")]


def nm_read_items(g):
    out = [("fn", lambda: g.vwait("NM"), None)]
    for tt in range(5):
        out.append(("ds", f"ds_read_b64 {vr(V_NM+2*tt,2)}, v{V_S1A} offset:{tt*128}", "NMR"))
    for tt in range(5):
        for h in range(2):
            out.append(("ds", f"ds_read_b128 {vr(V_NM2+8*tt+4*h,4)}, v{V_S1A+1} offset:{tt*128+16*h}", "NMR"))
    return out


def wo_dma_items():
    out = []
    for i in range(16):
        pre = ""
        if i == 0:
            pre = f"""s_lshl_b32 s{S_LB}, s{S_WAVE}, 14
            s_add_u32 s{S_LB}, s{S_LB}, {L_WO}
            s_lshl_b32 s{S_LB+1}, s{S_WAVE}, 17
            """
        out.append(("vm", pre + f"""s_add_u32 m0, s{S_LB}, {i*1024}
        s_add_u32 s{S_T+1}, s{S_LB+1}, {i*8192}
        buffer_load_dwordx4 v{V_RED+(i&1)}, {sr(S_WO,4)}, s{S_T+1} offen lds""", "WO"))
    return out


def wo_raw_items():
    out = []
    for i in range(16):
        out.append(("vm", f"""s_lshl_b32 s{S_T+1}, s{S_WAVE}, 17
        s_add_u32 s{S_T+1}, s{S_T+1}, {i*8192}
        buffer_load_dwordx4 {ar(192+4*i,4)}, v{V_RED+(i&1)}, {sr(S_WO,4)}, s{S_T+1} offen""", f"WOR{i}"))
    return out


def wo_write_items(g):
    t = g.T + 5
    out = [("v", f"""s_lshl_b32 s{S_T+1}, s{S_WAVE}, 14
    s_add_u32 s{S_T+1}, s{S_T+1}, {L_WO}
    v_add_u32 v{t}, s{S_T+1}, v{V_L16}""", None)]
    for i in range(16):
        out.append(("fn", lambda i=i: (g.vwait(f"WOR{i}"), g.ds(f"ds_write_b128 v{t}, {ar(192+4*i,4)} offset:{i*1024}", "WOW")), None))
    return out


def preread_items():
    return [("vm", f"""s_lshl_b32 s{S_T+3}, s{S_KH}, 16
            s_lshl_b32 s{S_T+2}, s{S_C8}, 12
            s_add_u32 s{S_T+3}, s{S_T+3}, s{S_T+2}
            s_lshl_b32 s{S_T+2}, s{S_WAVE}, 10
            s_add_u32 s{S_T+3}, s{S_T+3}, s{S_T+2}
            s_mov_b64 exec, 0xff
            buffer_load_dword v3, v2, {sr(S_WS,4)}, s{S_T+3} offen sc1{NT.get('pre','')}
            s_add_u32 s{S_T+3}, s{S_T+3}, 32768
            s_mov_b64 exec, -1""", "PF"),
            ("vm", f"""s_mov_b64 exec, 0xff
            buffer_load_dword v3, v2, {sr(S_WS,4)}, s{S_T+3} offen sc1{NT.get('pre','')}
            s_mov_b64 exec, -1""", "PF"),
            ("vm", f"""s_lshl_b32 s{S_T+3}, s{S_KH}, 13
            s_lshl_b32 s{S_T+2}, s{S_C8}, 8
            s_add_u32 s{S_T+3}, s{S_T+3}, s{S_T+2}
            s_lshl_b32 s{S_T+2}, s{S_WAVE}, 11
            s_add_u32 s{S_T+3}, s{S_T+3}, s{S_T+2}
            s_add_u32 s{S_T+3}, s{S_T+3}, {WS_ST}
            s_mov_b64 exec, 0x3
            buffer_load_dword v3, v2, {sr(S_WS,4)}, s{S_T+3} offen sc1{NT.get('pre','')}
            s_mov_b64 exec, -1""", "PF"),
            ("vm", f"""s_lshl_b32 s{S_T+2}, s{S_WAVE}, 12
            s_add_u32 s{S_T+3}, s{S_FLB}, s{S_T+2}
            s_mov_b64 exec, 3
            buffer_load_dword v3, v2, {sr(S_WS,4)}, s{S_T+3} offen sc1{NT.get('pre','')}
            s_add_u32 s{S_T+3}, s{S_T+3}, 16384
            s_mov_b64 exec, -1""", "PF"),
            ("vm", f"""s_cmp_eq_u32 s{S_WAVE}, 3
            s_cselect_b32 s{S_T+2}, 4096, 0
            s_add_u32 s{S_T+3}, s{S_T+3}, s{S_T+2}
            s_mov_b64 exec, 3
            buffer_load_dword v3, v2, {sr(S_WS,4)}, s{S_T+3} offen sc1{NT.get('pre','')}
            s_mov_b64 exec, -1""", "PF")]


def xres_items():
    return [("vm", f"buffer_load_dwordx2 {vr(V_XRES+2*a,2)}, v{V_XO}, {sr(S_X,4)}, 0 offen offset:{32*a}", "XR") for a in range(4)]


def p1_gemm(g):
    NSTART = g.opts.get('nstart', 3)
    stream = p1_dma_w(2) + p1_dma_x(1) + p1_dma_w(3) + p1_dma_x(2) + p1_dma_w(4) + p1_dma_w(5) + p1_dma_x(3) + p1_dma_w(6) + p1_dma_w(7)
    if g.opts.get("woraw", 0):
        stream = stream + wo_raw_items()
    earliest = {"W4": 1, "W5": 3, "X3": 3, "W6": 5, "W7": 7}
    span = g.opts.get("p1span", 128)
    dpos = {}
    for i, it in enumerate(stream):
        fast = g.opts.get("p1fast", 11)
        pos = i if i < fast else fast + (i - fast) * (span - fast) // (len(stream) - fast)
        pos = max(pos, 15 * earliest.get(it[2], 0))
        dpos.setdefault(pos // 15, []).append((pos % 15, it))
    nlast = max(dpos)
    g.vwait("X0", "W0")
    g.lwait_all()
    g("s_barrier")
    g.stamp("B0")
    for x in p1_read_frags(0):
        g.ds(x, "F0")
    for n in range(16):
        s = n // 2
        mf = p1_mfmas(n)
        if n == g.opts.get("nstat", 1):
            p1_stats_compute(g)
            nonce_poll_issue(g)
        g.lwait(f"F{n}")
        if n % 2 == 1 and n < 15:
            need = [f"W{s+1}"]
            if (s + 1) % 2 == 0:
                need.append(f"X{(s+1)//2}")
            if n == NSTART:
                nonce_check(g)
                need.append("S1ST")
            g.vwait(*need)
            g("s_barrier")
            g.stamp(f"B{s+1}")
            if n == NSTART:
                p1_started(g)
        slots = {}
        if n < 15:
            spread(slots, [("ds", x, f"F{n+1}") for x in p1_read_frags(n + 1)], 0, 11)
        for pos, it in dpos.get(n, []):
            slots.setdefault(pos, []).append(it)
        if n == 6 and not g.opts.get("two", 2):
            slots.setdefault(14, []).append(touch_res3(g, S_WO, 4))
        t0, tn = g.opts.get("t13s", 2), g.opts.get("t13n", 0)
        if t0 <= n < t0 + tn:
            slots.setdefault(12, []).append(touch_w13(n - t0))
        kb = g.opts.get("kbatch", 9)
        assert kb > nlast or g.opts.get("woraw", 0)
        if g.opts.get("woraw", 0) and 12 <= n <= 15:
            ww = wo_write_items(g)
            k0 = [0, 4, 8, 12, 17]
            spread(slots, ww[k0[n-12]:k0[n-11]], 2, 15)
        if n == kb - 2:
            slots.setdefault(1, []).append(("fn", lambda: poll_started_issue(g), None))
        if n == kb:
            slots.setdefault(0, []).append(("fn", lambda: poll_started_check(g), None))
            slots.setdefault(0, []).extend(nm_dma_items())
            spread(slots, xres_items(), 1, 8)
        if n == g.opts.get("kpre", kb):
            slots.setdefault(14, []).extend(preread_items()[(2 if g.opts.get("osc1", 0) else 0):])
        if n == g.opts.get("twok", 10) and g.opts.get("two", 2):
            spread(slots, [touch_wo(i) for i in range(2)], 3, 9)
        if n == g.opts.get("t13k", 10) and g.opts.get("t13e", 2):
            slots.setdefault(14, []).extend([touch_w13(i) for i in range(g.opts.get("t13e", 2))])
        if n == 15:
            spread(slots, nm_read_items(g), 0, 12)
        if n == 10:
            slots.setdefault(13, []).append(("v", f"""s_and_b32 s{S_KO}, s{S_XCD}, 3
            s_mul_i32 s{S_KO}, s{S_KO}, {4*16*3584}
            s_mul_i32 s{S_SG}, s{S_WAVE}, 6144
            s_add_u32 s{S_SG}, s{S_SG}, 20480
            s_mul_i32 s{S_SG+1}, s{S_WAVE}, 12288
            s_add_u32 s{S_SG+1}, s{S_SG+1}, 110592
            s_lshl_b32 s{S_SG+2}, s{S_WAVE}, 12""", None))
        if g.opts.get("tailbeg", 15) <= n <= g.opts.get("tailend", 15):
            spread(slots, [("fn", lambda: g.tick(), None)] * g.opts.get("tailrate", 2), 1, 13)
        sched(g, mf, slots)
    g.stamp("p1gemm")


def p1_attention(g):
    M = V_MK
    CS = 4
    QP = 96
    KP = 104
    VP = 114
    S = 128
    g("s_nop 4")
    for p in range(2):
        for r in range(4):
            g(f"v_mov_b32_dpp v{CS+p*4+r}, v{acc1(p,0)+r} row_newbcast:0 row_mask:0xf bank_mask:0xf")
    g(f"""
    v_mov_b32 v{CS+8}, v{acc1(2,0)}
    v_mov_b32 v{CS+9}, v{acc1(2,0)}
    s_mov_b32 s{S_C}, {f2h(0.25 * 1.4426950408889634)}
    s_nop 0
    v_permlane16_swap_b32 v{CS+8}, v{CS+9}
    s_nop 0
    v_mov_b32 v{CS+9}, v{CS+8}
    s_nop 1
    v_permlane32_swap_b32 v{CS+8}, v{CS+9}
    """)
    g.lwait("NMR")
    g.stamp("nm")

    def qk_fix(p, tt, dst):
        a = acc1(p, tt)
        nm = V_NM + 2 * tt
        return [[f"v_pk_fma_f32 {vr(a+2*h,2)}, {vr(CS+p*4+2*h,2)}, {vr(nm,2)}, {vr(a+2*h,2)} op_sel:[0,0,0] op_sel_hi:[1,0,1]" for h in range(2)],
                [f"v_pk_mul_f32 {vr(a+2*h,2)}, {vr(a+2*h,2)}, {vr(nm,2)} op_sel:[0,1] op_sel_hi:[1,1]" for h in range(2)],
                [f"v_cvt_pk_bf16_f32 v{dst+h}, v{a+2*h}, v{a+2*h+1}" for h in range(2)]]

    def v_fix(tt, dst):
        a = acc1(2, tt)
        nm = V_NM2 + 8 * tt
        return [[f"v_fmac_f32 v{a+r}, v{nm+2*r}, v{CS+8}" for r in range(4)],
                [f"v_mul_f32 v{a+r}, v{nm+2*r+1}, v{a+r}" for r in range(4)],
                [f"v_cvt_pk_bf16_f32 v{dst+h}, v{a+2*h}, v{a+2*h+1}" for h in range(2)]]

    def pipe(jobs, after=None):
        N = len(jobs)
        for i in range(N + 2):
            for st in range(3):
                j = i - st
                if 0 <= j < N:
                    for x in jobs[j][st]:
                        g(x)
            if i % g.opts.get("attick", 1) == 1 % g.opts.get("attick", 1):
                g.tick()
            if after and i in after:
                after[i]()

    jobs = [qk_fix(1, 0, KP), qk_fix(1, 1, KP + 2), qk_fix(0, 1, QP), qk_fix(1, 2, KP + 4), qk_fix(0, 2, QP + 2),
            qk_fix(1, 3, KP + 6), qk_fix(0, 3, QP + 4), qk_fix(1, 4, KP + 8), qk_fix(0, 4, QP + 6)]
    pipe(jobs)
    g("s_nop 1")
    prev = {1: (0, M + 8), 2: (1, M + 4), 3: (0, M + 12), 4: (3, M + 4)}
    for t in range(1, 5):
        pt, pm = prev[t]
        d = S + 8 * (t - 1)
        g(f"v_mfma_f32_16x16x16_bf16 {vr(d,4)}, {vr(KP+2*pt,2)}, {vr(QP+2*(t-1),2)}, {vr(pm,4)}")
        g(f"v_mfma_f32_16x16x16_bf16 {vr(d+4,4)}, {vr(KP+2*t,2)}, {vr(QP+2*(t-1),2)}, {vr(M,4)}")
    vdst = {0: VP, 1: VP + 2, 2: VP + 4, 3: VP + 8, 4: VP + 10}
    pipe([v_fix(tt, vdst[tt]) for tt in range(5)])
    g(f"v_mov_b32 v{VP+6}, v{VP}\nv_mov_b32 v{VP+7}, v{VP+1}")
    g.stamp("qk")
    g(f"""
    v_mov_b32 v{V2_AD}, v{V_RED+2}
    v_xor_b32 v{V2_AD+1}, 32, v{V_RED+2}
    v_xor_b32 v{V2_AD+2}, 64, v{V_RED+2}
    v_xor_b32 v{V2_AD+3}, 96, v{V_RED+2}
    """)
    pre = []
    if g.opts.get("earlyA", 0):
        assert not any(x[2] == "WO" for x in g.bg)
        g.vwait("WO")
        g("s_barrier")
        for ks in range(8):
            pre += p2_a_items(ks)
    g0 = g

    class GI:
        def __call__(self, s):
            for ln in s.split("\n"):
                if ln.strip():
                    g0(ln)
                    if pre and ln.strip().startswith("v_") and not ln.strip().startswith("v_mfma"):
                        emit_items(g0, [pre.pop(0)])

        def __getattr__(self, k):
            return getattr(g0, k)
    g = GI()
    X = 36
    for t in range(4):
        d = S + 8 * t
        for r in range(4):
            g(f"v_max_f32 v{d+r}, v{d+r}, v{d+4+r}")
    for t in range(4):
        d = S + 8 * t
        g(f"v_max3_f32 v{X+t}, v{d}, v{d+1}, v{d+2}")
    for t in range(4):
        d = S + 8 * t
        g(f"v_max_f32 v{X+t}, v{X+t}, v{d+3}")
    for op in ("v_permlane16_swap_b32", "v_permlane32_swap_b32"):
        for t in range(4):
            g(f"v_mov_b32 v{X+4+t}, v{X+t}")
        g.tick()
        g("s_nop 0")
        for t in range(4):
            g(f"{op} v{X+t}, v{X+4+t}")
        for t in range(4):
            g(f"v_max_f32 v{X+t}, v{X+t}, v{X+4+t}")
    for t in range(4):
        g(f"v_mul_f32 v{X+t}, {f2h(-0.25 * 1.4426950408889634)}, v{X+t}")
    P = 44
    O = 76
    va = {0: VP, 1: VP + 2, 2: VP + 6, 3: VP + 8}
    for t in range(4):
        d = S + 8 * t
        for r in range(4):
            g(f"v_fma_f32 v{d+r}, v{d+r}, s{S_C}, v{X+t}")
    for t in range(5):
        if t < 4:
            d = S + 8 * t
            for r in range(4):
                g(f"v_exp_f32 v{d+r}, v{d+r}")
        if t >= 1:
            d = S + 8 * (t - 1)
            p = P + 8 * (t - 1)
            if t == 4:
                g("s_nop 0")
            g(f"""
            v_cvt_pk_bf16_f32 v{p}, v{d}, v{d+1}
            v_cvt_pk_bf16_f32 v{p+1}, v{d+2}, v{d+3}
            v_and_b32 v{p+2}, v{M+18}, v{p}
            v_and_b32 v{p+3}, v{M+19}, v{p+1}
            v_and_b32 v{p+4}, v{M+16}, v{p}
            v_and_b32 v{p+5}, v{M+17}, v{p+1}
            """)
        g.tick()
        if t >= 2:
            tt = t - 2
            g(f"v_mfma_f32_16x16x16_bf16 {vr(S+8*tt+4,4)}, {vr(V_ONE2,2)}, {vr(P+8*tt,2)}, 0")
            g(f"v_mfma_f32_16x16x32_bf16 {vr(O+4*tt,4)}, {vr(va[tt],4)}, {vr(P+8*tt+2,4)}, 0")
    g("s_nop 0")
    tt = 3
    g(f"v_mfma_f32_16x16x16_bf16 {vr(S+8*tt+4,4)}, {vr(V_ONE2,2)}, {vr(P+8*tt,2)}, 0")
    g(f"v_mfma_f32_16x16x32_bf16 {vr(O+4*tt,4)}, {vr(va[tt],4)}, {vr(P+8*tt+2,4)}, 0")
    g.stamp("sm")
    OP = 96
    pos = {0: OP, 2: OP + 2, 1: OP + 4, 3: OP + 6}
    for tt in (0, 1):
        g(f"v_rcp_f32 v{S+8*tt+4}, v{S+8*tt+4}")
    for tt in (0, 1):
        for h in range(2):
            g(f"v_pk_mul_f32 {vr(O+4*tt+2*h,2)}, {vr(O+4*tt+2*h,2)}, {vr(S+8*tt+4,2)} op_sel:[0,0] op_sel_hi:[1,0]")
    g(f"v_rcp_f32 v{S+8*2+4}, v{S+8*2+4}")
    for tt in (0, 1):
        for h in range(2):
            g(f"v_cvt_pk_bf16_f32 v{pos[tt]+h}, v{O+4*tt+2*h}, v{O+4*tt+2*h+1}")
    g(f"v_rcp_f32 v{S+8*3+4}, v{S+8*3+4}")
    for tt in (2, 3):
        for h in range(2):
            g(f"v_pk_mul_f32 {vr(O+4*tt+2*h,2)}, {vr(O+4*tt+2*h,2)}, {vr(S+8*tt+4,2)} op_sel:[0,0] op_sel_hi:[1,0]")
    for tt in (2, 3):
        for h in range(2):
            g(f"v_cvt_pk_bf16_f32 v{pos[tt]+h}, v{O+4*tt+2*h}, v{O+4*tt+2*h+1}")
    g(f"""
    s_mov_b32 s{S_T}, 32768
    v_permlane16_swap_b32 v{OP}, v{OP+2}
    v_permlane16_swap_b32 v{OP+1}, v{OP+3}
    v_permlane16_swap_b32 v{OP+4}, v{OP+6}
    v_permlane16_swap_b32 v{OP+5}, v{OP+7}
    """)
    if g.opts.get("osc1", 0):
        g.vm(f"buffer_store_dwordx4 {vr(OP,4)}, v{V_OS}, {sr(S_WS,4)}, 0 offen sc1", "OST")
        g.vm(f"buffer_store_dwordx4 {vr(OP+4,4)}, v{V_OS}, {sr(S_WS,4)}, s{S_T} offen sc1", "OST")
    else:
        g.store([f"buffer_store_dwordx4 {vr(OP,4)}, v{V_OS}, {sr(S_WS,4)}, 0 offen",
                 f"buffer_store_dwordx4 {vr(OP+4,4)}, v{V_OS}, {sr(S_WS,4)}, s{S_T} offen"], "OST")


def signal(g, phase, tags):
    t = g.T
    g(f"""
    v_mov_b32 v{t}, {phase*4096}
    v_mov_b32 v{t+1}, s{S_NONCE}
    """)
    g.vwait(*tags)
    g("s_mov_b64 exec, 1")
    g.store([f"buffer_store_dword v{t+1}, v{t}, {sr(S_WS,4)}, s{S_FLO} offen"], "FLAG")
    g("s_mov_b64 exec, -1")


def poll_w0(g, phase, mask, wave=0):
    t = g.T
    lp = g.lab("pw")
    g(f"""
    s_cmp_lg_u32 s{S_WAVE}, {wave}
    s_cbranch_scc1 {lp}_ok
    s_mov_b32 s{S_T+6}, 0
    s_add_u32 s{S_T+2}, s{S_FLB}, {phase*4096}
    {lp}:
    buffer_load_dword v{t+2}, v{V_L4}, {sr(S_WS,4)}, s{S_T+2} offen sc1
    s_add_u32 s{S_T+6}, s{S_T+6}, 1
    s_cmp_gt_u32 s{S_T+6}, {SPIN_MAX}
    s_waitcnt vmcnt(0)
    s_cbranch_scc1 {lp}_ok
    v_cmp_ne_u32 vcc, s{S_NONCE}, v{t+2}
    s_and_b64 vcc, vcc, s[{mask}:{mask+1}]
    s_cbranch_vccnz {lp}
    {lp}_ok:
    """)


def poll_issue(g, phase, tag, r=0):
    t = g.T + r
    g(f"s_add_u32 s{S_T+2}, s{S_FLB}, {phase*4096}")
    g.vm(f"buffer_load_dword v{t+2}, v{V_L4}, {sr(S_WS,4)}, s{S_T+2} offen sc1", tag)


def poll_check(g, phase, tag, mask, r=0, slp=False, inline=False):
    t = g.T + r
    lp = g.lab("poll")
    g.vwait(tag)
    if inline:
        g(f"""
        s_mov_b32 s{S_T+6}, 0
        s_add_u32 s{S_T+2}, s{S_FLB}, {phase*4096}
        {lp}:
        v_cmp_ne_u32 vcc, s{S_NONCE}, v{t+2}
        s_add_u32 s{S_T+6}, s{S_T+6}, 1
        s_and_b64 vcc, vcc, s[{mask}:{mask+1}]
        s_cbranch_vccz {lp}_ok
        {"s_sleep %d" % g.opts.get("psl", 0) if g.opts.get("psl", 0) else ""}
        buffer_load_dword v{t+2}, v{V_L4}, {sr(S_WS,4)}, s{S_T+2} offen sc1
        s_cmp_gt_u32 s{S_T+6}, {SPIN_MAX}
        s_waitcnt vmcnt(0)
        s_cbranch_scc0 {lp}
        {lp}_ok:
        """)
        return
    g(f"""
    v_cmp_ne_u32 vcc, s{S_NONCE}, v{t+2}
    s_mov_b32 s{S_T+6}, 0
    s_and_b64 vcc, vcc, s[{mask}:{mask+1}]
    s_cbranch_vccnz {lp}
    {lp}_ok:
    """)
    g.cold.append(f"""{lp}:
    {"s_sleep 4" if slp else ""}
    s_add_u32 s{S_T+2}, s{S_FLB}, {phase*4096}
    s_add_u32 s{S_T+6}, s{S_T+6}, 1
    buffer_load_dword v{t+2}, v{V_L4}, {sr(S_WS,4)}, s{S_T+2} offen sc1
    s_cmp_gt_u32 s{S_T+6}, {SPIN_MAX}
    s_waitcnt vmcnt(0)
    s_cbranch_scc1 {lp}_ok
    v_cmp_ne_u32 vcc, s{S_NONCE}, v{t+2}
    s_and_b64 vcc, vcc, s[{mask}:{mask+1}]
    s_cbranch_vccnz {lp}
    s_branch {lp}_ok""")


def ko_adv(u):
    lo = (u // 16) * 256 * 3584
    hi = lo + 256 * 3584
    t = f"""s_add_u32 s{S_KO}, s{S_KO}, {16*3584}
    s_cmp_lt_u32 s{S_KO}, {hi}
    s_cselect_b32 s{S_KO}, s{S_KO}, {lo}"""
    if u == 15:
        t += f"\ns_add_u32 s{S_KO}, s{S_KO}, {256*3584}"
    return t


def w13_load_items(u):
    return [("vm", f"buffer_load_dwordx4 {ar(8*u,4)}, v{V3_WD}, {sr(S_W1,4)}, s{S_KO} offen", f"W13_{u}"),
            ("vm", f"""buffer_load_dwordx4 {ar(8*u+4,4)}, v{V3_WD}, {sr(S_W3,4)}, s{S_KO} offen
            {ko_adv(u)}""", f"W13_{u}")]


S_SG = 62
NSLOT = 11


def slot_addr(k):
    if k < 3:
        return S_SG, k * 2048, 0
    if k < 9:
        return S_SG + 1, (k - 3) * 2048, 1
    return S_SG + 2, (k - 9) * 2048, 2


def w13_dma_items(u):
    sb, off, _ = slot_addr(u % NSLOT)
    return [("vm", f"""s_add_u32 m0, s{sb}, {off}
            s_nop 0
            buffer_load_dwordx4 v{V3_WD}, {sr(S_W1,4)}, s{S_KO} offen lds""", f"W13_{u}"),
            ("vm", f"""s_add_u32 m0, s{sb}, {off+1024}
            s_nop 0
            buffer_load_dwordx4 v{V3_WD}, {sr(S_W3,4)}, s{S_KO} offen lds
            {ko_adv(u)}""", f"W13_{u}")]


V_SGA = 24


def w13_stage_setup(g):
    g(f"""
    s_lshl_b32 s{S_T}, s{S_WAVE}, 10
    s_add_u32 s{S_T}, s{S_T}, {L_MISC}
    v_subrev_u32 v{V_SGA+2}, s{S_T}, v{V3_TR}
    v_add_u32 v{V_SGA}, s{S_SG}, v{V_SGA+2}
    v_add_u32 v{V_SGA+1}, s{S_SG+1}, v{V_SGA+2}
    v_add_u32 v{V_SGA+2}, s{S_SG+2}, v{V_SGA+2}
    """)


def w13_pick_items(g, u):
    _, off, r = slot_addr(u % NSLOT)
    out = [("fn", lambda: g.vwait(f"W13_{u}"), None)]
    for m in range(2):
        for half in range(2):
            out.append(("ds", f"ds_read_b64_tr_b16 {ar(8*u+4*m+2*half,2)}, v{V_SGA+r} offset:{off + m*1024 + half*256}", f"A3_{u}"))
    return out


def w13_xpose_items(g, u):
    out = [("fn", lambda: g.vwait(f"W13_{u}"), None)]
    for m in range(2):
        out.append(("ds", f"ds_write_b128 v{V3_SW}, {ar(8*u+4*m,4)}", f"A3_{u}"))
        for half in range(2):
            out.append(("ds", f"ds_read_b64_tr_b16 {ar(8*u+4*m+2*half,2)}, v{V3_TR} offset:{half*256}", f"A3_{u}"))
    return out


V2_B = 32
V2_A = 96
V2_ACC = 240
V2_AD = 28
L_HKX = 159744 - 8192


def unpack_bf16(g, dst, src, n=8):
    for d in range(n):
        g(f"v_lshlrev_b32 v{dst+2*d}, 16, v{src+d}")
        g(f"v_and_b32 v{dst+2*d+1}, 0xffff0000, v{src+d}")


def p2_areg(ks, a, n=4, off=0):
    if ks < 8:
        return ar(128 + (ks * 4 + a) * 4 + off, n)
    return vr(V2_A + ((ks - 8) * 4 + a) * 4 + off, n)


def p2_a_items(ks, ad=None):
    ad = V2_AD if ad is None else ad
    out = []
    for a in range(4):
        for half in range(2):
            out.append(("ds", f"ds_read_b64_tr_b16 {p2_areg(ks, a, 2, 2*half)}, v{ad+a} offset:{ks*4096 + half*512}", f"A2_{ks}"))
    return out


def p2_pre(g):
    A = S_A
    g(f"""
    s_cmp_lt_u32 s{S_M}, 8
    s_cselect_b32 s6, -1, 0
    s_cselect_b32 s7, 0, -1
    s_lshl_b32 s{S_T}, s{S_KH}, 16
    s_lshr_b32 s{S_T+1}, s{S_WAVE}, 1
    s_lshl_b32 s{S_T+1}, s{S_T+1}, 15
    s_add_u32 s{S_T}, s{S_T}, s{S_T+1}
    s_add_u32 s{A}, s{S_T}, {WS_O}
    s_lshl_b32 s{S_T+1}, s{S_C8}, 12
    s_add_u32 s{S_A2}, s{A}, s{S_T+1}
    s_lshl_b32 s{S_A2+1}, s{S_KH}, 13
    s_lshl_b32 s{S_T+1}, s{S_WAVE}, 11
    s_add_u32 s{S_A2+1}, s{S_A2+1}, s{S_T+1}
    s_add_u32 s{S_A2+1}, s{S_A2+1}, {WS_ST}
    s_lshl_b32 s{S_T+1}, s{S_C8}, 8
    s_add_u32 s{S_A2+2}, s{S_A2+1}, s{S_T+1}
    """)
    g.vwait("XR")
    for d in range(7, -1, -1):
        g(f"v_and_b32 v{V2_ACC+2*d+1}, 0xffff0000, v{V_XRES+d}")
        g(f"v_lshlrev_b32 v{V2_ACC+2*d}, 16, v{V_XRES+d}")


def p2_main(g):
    t = g.T
    A = S_A
    def oload(ks):
        if ks % 2 == 0 and ks:
            g(f"s_add_u32 s{A}, s{A}, 4096")
        g.vm(f"buffer_load_dwordx4 {vr(V2_B+4*ks,4)}, v{V_GA}, {sr(S_WS,4)}, s{A} offen offset:{(ks%2)*2048} sc1", f"B2_{ks}")
    PFO = g.opts.get("pfo", 8)
    late = g.opts.get("_late", [])
    for ks in range(PFO):
        oload(ks)
        emit_items(g, late[:4])
        late = late[4:]
    for ks in range(16):
        g.vwait(f"B2_{ks}")
        g.lwait(f"A2_{ks}")
        if ks + PFO < 16:
            oload(ks + PFO)
        for a in range(4):
            acc = V2_ACC + 4 * a
            g(f"v_mfma_f32_16x16x32_bf16 {vr(acc,4)}, {p2_areg(ks, a)}, {vr(V2_B+4*ks,4)}, {vr(acc,4)}")
            emit_items(g, late[:2])
            late = late[2:]
            assert not any(x[2] == f"A2_{ks+1}" for x in late) or a < 3
        if ks >= 16 - PFO:
            g.tick(1 if ks < 14 else 2)
    g.stamp("p2mfma")
    e = 32
    g(f"""
    v_mov_b32 v{e+2}, s{S_NONCE}
    v_mov_b32 v{e+3}, 0
    s_nop 5
    """)
    H = 40
    for d in range(8):
        g(f"v_cvt_pk_bf16_f32 v{H+d}, v{V2_ACC+2*d}, v{V2_ACC+2*d+1}")
    g(f"v_dot2_f32_bf16 v{e}, v{H}, s{S_ONES}, 0")
    g(f"v_dot2_f32_bf16 v{e+1}, v{H}, v{H}, 0")
    g(f"v_dot2_f32_bf16 v{e+4}, v{H+1}, s{S_ONES}, 0")
    g(f"v_dot2_f32_bf16 v{e+5}, v{H+1}, v{H+1}, 0")
    for d in range(2, 8):
        oo = 4 * (d & 1)
        g(f"v_dot2c_f32_bf16 v{e+oo}, s{S_ONES}, v{H+d}")
        g(f"v_dot2c_f32_bf16 v{e+oo+1}, v{H+d}, v{H+d}")

    def xred(x, y):
        for op in ("v_permlane16_swap_b32", "v_permlane32_swap_b32"):
            g(f"""
            v_mov_b32 v{y}, v{x}
            v_mov_b32 v{y+1}, v{x+1}
            s_nop 0
            {op} v{x}, v{y}
            {op} v{x+1}, v{y+1}
            v_pk_add_f32 {vr(x,2)}, {vr(x,2)}, {vr(y,2)}
            """)
    g(f"""
    v_permlane16_swap_b32 v{H}, v{H+2}
    v_permlane16_swap_b32 v{H+1}, v{H+3}
    v_permlane16_swap_b32 v{H+4}, v{H+6}
    v_pk_add_f32 {vr(e,2)}, {vr(e,2)}, {vr(e+4,2)}
    v_permlane16_swap_b32 v{H+5}, v{H+7}
    """)
    xred(e, e + 4)
    g("s_mov_b64 exec, 0xffff")
    g.store([f"buffer_store_dwordx4 {vr(e,4)}, v{V_L16}, {sr(S_WS,4)}, s{S_A2+2} offen"], "SST")
    g("s_mov_b64 exec, -1")
    g.stamp("p2stat")
    U = 48
    unpack_bf16(g, U, H)
    hk_exchange_write(g)
    p34_pre(g, 0)
    lp = g.lab("sg")
    q = 64
    g(f"""
    s_mov_b32 s{S_T+6}, 0
    {lp}:
    buffer_load_dwordx4 {vr(q,4)}, v{V_L16}, {sr(S_WS,4)}, s{S_A2+1} offen sc1
    buffer_load_dwordx4 {vr(q+4,4)}, v{V_L16}, {sr(S_WS,4)}, s{S_A2+1} offen offset:1024 sc1
    s_add_u32 s{S_T+6}, s{S_T+6}, 1
    s_cmp_gt_u32 s{S_T+6}, {SPIN_MAX}
    s_waitcnt vmcnt(0)
    s_cbranch_scc1 {lp}_x
    v_cmp_ne_u32 vcc, s{S_NONCE}, v{q+2}
    v_cmp_ne_u32 s[{S_T+3}:{S_T+4}], s{S_NONCE}, v{q+6}
    s_or_b64 vcc, vcc, s[{S_T+3}:{S_T+4}]
    s_cbranch_vccnz {lp}
    {lp}_x:
    v_pk_add_f32 {vr(q,2)}, {vr(q,2)}, {vr(q+4,2)}
    """)
    g.vq = []
    g.stamp("p2gath")
    emit_items(g, g.opts.get("_picks", []))
    xred(q, q + 2)
    g(f"""
    v_mul_f32 v{q+4}, {f2h(-1.0/512)}, v{q}
    v_mul_f32 v{q+5}, {f2h(1.0/512)}, v{q+1}
    v_fma_f32 v{q+5}, -v{q+4}, v{q+4}, v{q+5}
    v_max_f32 v{q+5}, 0, v{q+5}
    v_add_f32 v{q+5}, {f2h(1e-5)}, v{q+5}
    v_rsq_f32 v{q+5}, v{q+5}
    s_nop 0
    v_mul_f32 v{q+5}, {f2h(LOG2E)}, v{q+5}
    v_mul_f32 v{q+4}, v{q+4}, v{q+5}
    """)
    for d in range(8):
        a = U + 2 * d
        g(f"v_pk_fma_f32 {vr(a,2)}, {vr(a,2)}, {vr(q+4,2)}, {vr(q+4,2)} op_sel:[0,1,0] op_sel_hi:[1,1,0]")
    for d in range(8):
        g(f"v_cvt_pk_bf16_f32 v{q+8+d}, v{U+2*d}, v{U+2*d+1}")
    g.store([f"buffer_store_dwordx4 {vr(q+8,4)}, v{V_RED+3}, {sr(S_WS,4)}, s{S_A2} offen",
             f"buffer_store_dwordx4 {vr(q+12,4)}, v{V_RED+3}, {sr(S_WS,4)}, s{S_A2} offen offset:2048"], "HST")


def hk_exchange_write(g):
    t = g.T
    g(f"""
    s_cmp_lt_u32 s{S_WAVE}, 2
    s_mov_b32 s{S_T}, {L_MISC}
    s_cselect_b32 s{S_T}, 16384, s{S_T}
    v_add_u32 v{t+4}, s{S_T}, v{V_RED+3}
    """)
    g.ds(f"ds_write_b128 v{t+4}, {vr(40,4)}", "HKW")
    g.ds(f"ds_write_b128 v{t+4}, {vr(44,4)} offset:2048", "HKW")


def hk_exchange_read(g):
    t = g.T
    g(f"""
    s_lshl_b32 s{S_T}, s{S_WAVE}, 10
    v_add_u32 v{t+4}, s{S_T}, v{V_L16}
    """)
    g.ds(f"ds_read_b128 {vr(V_HK,4)}, v{t+4} offset:16384", "HKR")
    g.ds(f"ds_read_b128 {vr(V_HK+4,4)}, v{V3_SW}", "HKR")


V3_ACC = 32
V3_B = 160
V3_E = 192
K1 = 16
TORD = [0, 1, 2, 3]
HPH = [2, 3, 6, 8]
L_SP = 131072


S_A3 = 58


def p3_pre(g):
    A = S_A3
    g(f"""
    s_cmp_lt_u32 s{S_M}, 7
    s_cselect_b32 s{S_T+2}, 2, 0
    s_mov_b32 s{A}, 0
    s_lshl_b32 s{A+1}, s{S_WAVE}, 15
    s_xor_b32 s{S_T}, s{S_WAVE}, s{S_T+2}
    s_lshl_b32 s{S_T}, s{S_T}, 15
    s_add_u32 s{A}, s{A}, s{S_T}
    s_add_u32 s{A}, s{A}, {WS_H}
    s_and_b32 s{S_K2}, s{S_XCD}, 3
    s_lshl_b32 s{S_K2}, s{S_K2}, 12
    s_mov_b32 s{S_C}, {f2h(LOG2E*LOG2E)}
    s_mov_b32 s{A+2}, 0
    s_lshl_b32 s{S_T+1}, s{S_M}, 13
    s_add_u32 s{A+2}, s{A+2}, s{S_T+1}
    s_lshl_b32 s{S_T+1}, s{S_WAVE}, 11
    s_add_u32 s{A+2}, s{A+2}, s{S_T+1}
    s_add_u32 s{A+2}, s{A+2}, {WS_HH}
    s_mul_i32 s{S_T}, s{S_T+2}, 114688
    s_sub_u32 s0, s{A+2}, s{S_T}
    s_add_u32 s{A+2}, s{A+2}, s{S_T}
    """)


def p3_h_items(b):
    A = S_A3
    out = []
    for i in range(4):
        pre = f"s_add_u32 m0, s{A+1}, {b*4096}\n"
        post = ""
        pre += f"s_add_u32 s{A+3}, s{A}, s{S_K2}\n" if i == 0 else "s_nop 0\n"
        if i == 3:
            post = f"\ns_add_u32 s{S_K2}, s{S_K2}, 4096\ns_and_b32 s{S_K2}, s{S_K2}, 16383"
            if b == 3:
                post += f"\ns_add_u32 s{A}, s{A}, 16384"
        out.append(("vm", pre + f"buffer_load_dwordx4 v{V_L16}, {sr(S_WS,4)}, s{A+3} offen offset:{i*1024} sc1 lds" + post, f"H{b}"))
    return out


def p3_epi_sched(j):
    A = V3_ACC + 32 * j
    e = V3_E
    o = V3_E + 16
    st = [
        lambda r: f"v_exp_f32 v{e+r}, -v{A+r}",
        lambda r: f"v_mul_f32 v{A+r}, v{A+r}, v{A+16+r}",
        lambda r: f"v_fma_f32 v{e+r}, v{e+r}, s{S_C}, s{S_C}",
        lambda r: f"v_rcp_f32 v{e+r}, v{e+r}",
        lambda r: f"v_mul_f32 v{A+r}, v{A+r}, v{e+r}",
        lambda r: (f"v_cvt_pk_bf16_f32 v{o+r//2}, v{A+r-1}, v{A+r}" if r % 2 else None),
    ]
    skew = [0, 0, 1, 2, 3, 4]
    out = []
    for step in range(16 + 5):
        for si, f in enumerate(st):
            r = step - skew[si]
            if 0 <= r < 16:
                x = f(r)
                if x:
                    out.append(("v", x, None))
    return out


def p3_hh_store(g, j):
    o = V3_E + 16
    g(f"s_add_u32 s{S_T}, s{S_A3+2 if j < 2 else 0}, {j*114688}")
    g.vm(f"buffer_store_dwordx4 {vr(o,4)}, v{V_L16}, {sr(S_WS,4)}, s{S_T} offen sc1", f"HHST{j}")
    g.vm(f"buffer_store_dwordx4 {vr(o+4,4)}, v{V_L16}, {sr(S_WS,4)}, s{S_T} offen offset:1024 sc1", f"HHST{j}")


def hh_touch(g, j):
    if not g.opts.get("hht", 0) >> j & 1:
        return
    g.vwait(f"HHST{j}")
    emit_items(g, [touch(S_WS, 16, f"s_add_u32 s{S_T+3}, s{S_A3+2 if j < 2 else 0}, {j*114688}")])


V4_AD = 4
V4_B = 32
NB4 = 16
V4_ACC = 96
V4_R = 240
S_FR = 40
S_X4 = 8
S_M4 = 16


def p34_pre(g, part):
    d = V4_AD
    l = V_L
    if part == 1:
        g(f"""
        s_mov_b64 s[{S_A2+2}:{S_A2+3}], 0x7f
        s_lshl_b64 s[{S_A2+2}:{S_A2+3}], s[{S_A2+2}:{S_A2+3}], s1
        s_mov_b32 s{S_A2}, -1
        s_mov_b32 s{S_A2+1}, 0x00ffffff
        v_add_u32 v{V_RED+3}, s{S_LB}, v{V_L16}
        """)
        return
    g(f"""
    s_lshr_b32 s{S_T+2}, s{S_M}, 3              ; kh
    s_lshl_b32 s{S_T+3}, s{S_T+2}, 2
    s_add_u32 s{S_T+3}, s{S_T+3}, s{S_WAVE}     ; K eighth
    s_mul_i32 s{S_W2O}, s{S_T+3}, {224*1024}
    s_lshl_b32 s{S_LB}, s{S_WAVE}, 15
    s_lshl_b32 s{S_LB+1}, s{S_WAVE}, 13
    s_add_u32 s{S_LB+1}, s{S_LB+1}, {L_SP}
    s_mul_i32 s{S_T+1}, s{S_T+3}, {14*1024}
    s_add_u32 s{S_T+1}, s{S_T+1}, {WS_HH}
    s_mul_i32 s{S_T}, s{S_KH}, {2*114688}
    s_add_u32 s{S_X4+2}, s{S_T}, s{S_T+1}
    s_add_u32 s{S_X4+3}, s{S_X4+2}, 114688
    s_xor_b32 s{S_T+4}, s{S_KH}, 1
    s_mul_i32 s{S_T}, s{S_T+4}, {2*114688}
    s_add_u32 s{S_X4}, s{S_T}, s{S_T+1}
    s_add_u32 s{S_X4+1}, s{S_X4}, 114688
    s_mul_i32 s1, s{S_T+3}, 7
    s_xor_b32 s{S_T}, s{S_M}, 8
    s_lshl_b32 s{S_T}, s{S_T}, 2
    s_add_u32 s{S_T}, s{S_T}, s{S_WAVE}
    s_mov_b64 s[{S_M4}:{S_M4+1}], 1
    s_lshl_b64 s[{S_M4}:{S_M4+1}], s[{S_M4}:{S_M4+1}], s{S_T}
    s_lshl_b32 s{S_T}, s{S_C8}, 12
    s_lshl_b32 s{S_T+1}, s{S_WAVE}, 10
    s_add_u32 s{S_T}, s{S_T}, s{S_T+1}
    s_add_u32 s{S_T}, s{S_T}, {WS_X}
    s_lshl_b32 s{S_T+1}, s{S_T+4}, 16
    s_add_u32 s{S_M4+2}, s{S_T}, s{S_T+1}
    s_lshl_b32 s{S_T+1}, s{S_KH}, 16
    s_add_u32 s{S_M4+3}, s{S_T}, s{S_T+1}
    s_and_b32 s{S_T}, s{S_WAVE}, 1
    s_lshl_b32 s{S_T}, s{S_T}, 5
    v_xor_b32 v{d}, s{S_T}, v{V_TR}
    v_xor_b32 v{d+1}, 64, v{d}
    v_add_u32 v{d+2}, s{S_LB}, v{d}
    v_add_u32 v{d+3}, s{S_LB}, v{d+1}
    v_add_u32 v{d+4}, s{S_LB+1}, v{d}
    v_add_u32 v{d+5}, s{S_LB+1}, v{d+1}
    s_sub_u32 s{S_T}, s{S_LB+1}, s{S_SG}
    v_add_u32 v{d+6}, s{S_T}, v{V_SGA}          ; ring (w13 image)
    s_lshl_b32 s{S_T}, s{S_TB}, 16
    s_lshl_b32 s{S_T+1}, s{S_C8}, 7
    s_add_u32 s{S_T}, s{S_T}, s{S_T+1}
    s_lshl_b32 s{S_T+1}, s{S_WAVE}, 5
    s_add_u32 s{S_T}, s{S_T}, s{S_T+1}
    v_and_b32 v{d+7}, 31, v{l}
    v_lshlrev_b32 v{d+7}, 10, v{d+7}
    v_lshrrev_b32 v{d+8}, 5, v{l}
    v_lshl_add_u32 v{d+7}, v{d+8}, 4, v{d+7}
    v_add_u32 v{d+7}, s{S_T}, v{d+7}
    v_add_u32 v{d+8}, 7168, v{V_D128}           ; second half of a w2 kstep: +8192 global, offset:1024 adds the rest
    v_add_u32 v{d+9}, 32768, v{V_L16}
    s_sub_u32 s{S_T}, s{S_LB}, s{S_SG}
    v_add_u32 v{d+10}, s{S_T}, v{V_SGA}         ; own tile region (w13 image)
    s_cmp_eq_u32 s{S_WAVE}, 3
    s_cselect_b32 s{S_FR}, 2048, s{S_LB}
    s_sub_u32 s{S_T}, s{S_FR}, s{S_SG}
    v_add_u32 v{d+11}, s{S_T}, v{V_SGA}
    v_add_u32 v27, s{S_FR}, v{d}
    v_add_u32 v28, s{S_FR}, v{d+1}
    """)
    for i in range(1, 4):
        g(f"""
        s_xor_b32 s{S_T}, s{S_WAVE}, {i%4}
        s_lshl_b32 s{S_T}, s{S_T}, 15
        s_add_u32 s{S_T}, s{S_T}, {((i-1) if i < 4 else 0)*2048}
        v_add_u32 v{V_RED+i-1}, s{S_T}, v{V_L16}
        """)


def w2_dma_items(ks, sb, off):
    return [("vm", f"""s_add_u32 m0, s{sb}, {off}
            s_add_u32 s{S_T+5}, s{S_W2O}, {ks*16*1024}
            buffer_load_dwordx4 v{V_D128}, {sr(S_W2,4)}, s{S_T+5} offen lds""", f"W2_{ks}"),
            ("vm", f"buffer_load_dwordx4 v{V4_AD+8}, {sr(S_W2,4)}, s{S_T+5} offen offset:1024 lds", f"W2_{ks}")]


def w2_pick_items(g, ks, base, off):
    out = [("fn", lambda: g.vwait(f"W2_{ks}"), None)]
    for ia in range(2):
        for half in range(2):
            out.append(("ds", f"ds_read_b64_tr_b16 {ar(8*ks+4*ia+2*half,2)}, v{base+ia} offset:{off + half*512}", f"A4_{ks}"))
    return out


def w13_ring_dma(u, off, sb=S_LB + 1):
    return [("vm", f"""s_add_u32 m0, s{sb}, {off}
            s_nop 0
            buffer_load_dwordx4 v{V3_WD}, {sr(S_W1,4)}, s{S_KO} offen lds
            s_add_u32 m0, s{sb}, {off+1024}""", f"W13_{u}"),
            ("vm", f"""buffer_load_dwordx4 v{V3_WD}, {sr(S_W3,4)}, s{S_KO} offen lds
            {ko_adv(u)}""", f"W13_{u}")]


def w13_ring_pick(g, u, off, va=V4_AD + 6):
    out = [("fn", lambda: g.vwait(f"W13_{u}"), None)]
    for m in range(2):
        for half in range(2):
            out.append(("ds", f"ds_read_b64_tr_b16 {ar(8*u+4*m+2*half,2)}, v{va} offset:{off + m*1024 + half*256}", f"A3_{u}"))
    return out


W2_PARK = {}


def p3_main(g, npre):
    o = g.opts
    KA = o.get("ka", 17)
    K3 = o.get("k3", 13)
    seq = []
    for u in range(KA):
        seq += [(j, u) for j in ((0, 1, 2, 3) if u < K3 else (0, 1, 2))]
    for j in (0, 1, 2):
        seq += [(j, u) for u in range(KA, 32)]
    seq += [(3, u) for u in range(K3, 32)]
    assert len(seq) == 128
    first = {}
    lastu = {}
    done = {}
    for n, (j, u) in enumerate(seq):
        first.setdefault(u, n)
        lastu[u] = n
        done[j] = n
    PF = o.get("pf3", 5)

    def bread(n):
        j, u = seq[n]
        a = V_L16 if j < 2 else V3_HB
        return ("ds", f"ds_read_b128 {vr(V3_B+4*(n%8),4)}, v{a} offset:{(j%2)*32768 + u*1024}", f"B3_{n}")

    extra = {}

    def put(step, items, half=1):
        extra.setdefault(2 * step + half, []).extend(items)

    LAG13 = o.get("lag13", 16)
    LAG2 = o.get("lag2", 18)
    busy = set()
    bar = {b: first[4 * b] - PF for b in range(1, 8)}
    for b in range(2, 8):
        if bar[b] - bar[b - 1] < 8:
            bar[b] = bar[b - 1]
    hst = {}
    nxt = 1000
    for b in range(7, 1, -1):
        hst[b] = max(2 * (b - 2), min(bar[b] - o.get("hlead", 30), nxt - o.get("hgap", 6)))
        nxt = hst[b]
        busy.update((hst[b], hst[b] + 1))
    slots = [[0, 1000, 0, k * 2048, None] for k in range(4)]
    for b in range(2, 8):
        for k in range(2):
            slots.append([0, hst[b], 1, b * 4096 + k * 2048, None])
    for b in range(0, 6):
        all_done = max(n for n, (j, u) in enumerate(seq) if u // 4 == b)
        fb = [bar[x] for x in bar if bar[x] > all_done + 1]
        if fb:
            for k in range(2):
                slots.append([min(fb) + 1, 1000, 3, b * 4096 + k * 2048, None])
            continue
        lead_done = max(n for n, (j, u) in enumerate(seq) if j < 3 and u // 4 == b)
        fb = [bar[x] for x in bar if bar[x] > lead_done + 1]
        if fb:
            slots.append([min(fb) + 1, 1000, 2, b * 4096, None])
    SB = [S_LB + 1, S_LB, S_FR, S_LB]
    VA13 = [V4_AD + 6, V4_AD + 10, V4_AD + 11, V4_AD + 10]
    VA2 = [V4_AD + 4, V4_AD + 2, 27, V4_AD + 2]
    W2_PARK.clear()
    q13 = list(range(npre, 32))
    q2 = list(range(14))
    st = 0
    last2 = -100
    last13 = -100
    per13 = o.get("per13", 220) / 100.0
    t13 = 0.0
    while q13 or q2:
        assert st < 126, ("ring overflow", q13, q2)
        if st in busy:
            st += 1
            continue
        ok13 = q13 and st >= t13 and (q13[0] < 16 or st >= o.get('s2nd', 20))
        ok2 = q2 and st >= o.get("w2s", 64) and st >= last2 + o.get("w2d", 3)
        if ok13:
            kind, x = "w13", q13[0]
            pk = min(st + LAG13, first[x] - 2)
        elif ok2:
            kind, x = "w2", q2[0]
            pk = min(max(st + LAG2, lastu[x] + 2), 127)
            if x >= o.get("park", 4):
                pk = 500
        else:
            st += 1
            continue
        fr = [sl for sl in slots if sl[0] <= st and pk + 2 <= sl[1]]
        if not fr:
            st += 1
            continue
        sl = min(fr, key=lambda z: (z[1], z[0]))
        off = sl[3]
        pre = []
        if sl[4]:
            pre = [("fn", lambda tg=sl[4]: g.lwait(tg), None)]
        busy.add(st)
        if kind == "w13":
            q13.pop(0)
            t13 = max(t13 + per13, st + 1)
            it = w13_ring_dma(x, off, SB[sl[2]])
            if pk - st < LAG13:
                print("  short lag for unit", x, pk - st)
            assert pk > st, (x, st)
            put(pk, w13_ring_pick(g, x, off, VA13[sl[2]]))
            sl[4] = f"A3_{x}"
        else:
            q2.pop(0)
            last2 = st
            it = w2_dma_items(x, SB[sl[2]], off)
            if pk < 500:
                put(pk, w2_pick_items(g, x, VA2[sl[2]], off))
            else:
                W2_PARK[x] = (SB[sl[2]], VA2[sl[2]], off)
            sl[4] = f"A4_{x}"
        put(st, pre + it[:1], 0); put(st, it[1:], 1)
        sl[0] = pk + 2
        st += 1
    for b in range(2, 8):
        tags = [sl[4] for sl in slots if sl[2] == 1 and sl[3] // 4096 == b and sl[4]]
        pre = [("fn", lambda tags=tags: g.lwait(*tags), None)] if tags else []
        it = p3_h_items(b)
        st = hst[b]
        put(st, pre + it[0:1], 0); put(st, it[1:2], 1); put(st + 1, it[2:3], 0); put(st + 1, it[3:4], 1)
    print("p3 stream ends at step", max(busy))
    def cost(it):
        if it[0] == "fn":
            return 1
        c = 0
        for ln in it[1].split("\n"):
            ln = ln.strip()
            if ln:
                c += 2 if ln.startswith(("v_exp", "v_rcp")) else 1
        return c
    h0 = 2 * (done[0] + 1) + 4
    hend = 256
    span = (hend - h0) // 3
    stst = []
    pc_ = o.get("pol0c", 116)
    for i in range(3):
        ep = p3_epi_sched(i)
        base = max(h0 + i * span, 2 * (done[i] + 1) + 4)
        sp = h0 + (i + 1) * span - base - 1
        if o.get("pack", 1):
            used = {h: (0 if (o.get("lw2", 1) and h % 4 == 1) else 1) + sum(cost(x) for x in extra.get(h, [])) for h in range(base, base + sp)}
            for h in used:
                if h % 2 == 1 and h // 2 > pc_:
                    used[h] += 2
            cap = 5.0
            while True:
                h = base
                fill = dict(used)
                place = []
                ok = True
                for it in ep:
                    while h < base + sp and fill[h] + cost(it) > cap + 0.01:
                        h += 1
                    if h >= base + sp:
                        ok = False
                        break
                    fill[h] += cost(it)
                    place.append(h)
                if ok:
                    break
                cap += 1
            print("epilogue", i, "capacity", cap, "ends", place[-1], "of", base + sp)
            for h, it in zip(place, ep):
                extra.setdefault(h, []).append(it)
            endh = min(place[-1] + 1, base + sp)
        else:
            for k, it in enumerate(ep):
                extra.setdefault(base + k * sp // len(ep), []).append(it)
            endh = base + sp
        extra.setdefault(endh, []).append(("fn", lambda j=i: p3_hh_store(g, j), None))
        stst.append(endh)
    sd = 2 * o.get("sigd", 10)
    late = []
    for i in range(2):
        if stst[i] + sd < 256:
            extra.setdefault(stst[i] + sd, []).append(("fn", lambda i=i: (hh_touch(g, i), signal(g, HPH[i], [f"HHST{i}"])), None))
        else:
            late.append(i)
    assert not late
    nf = 0
    pc = o.get("pol0c", 116)
    if 2 * (pc - 6) >= stst[0] + sd + 2 * o.get("polgap", 3) and pc < 127:
        put(pc - 6, [("fn", lambda: poll_issue(g, HPH[0], "POLLH0"), None)])
        put(pc, [("fn", lambda: poll_check(g, HPH[0], "POLLH0", S_A2 + 2, inline=o.get("inl4", 0)), None)])
        nf = o.get("nf4", 10)
        for i in range(nf):
            stp = min(127, pc + 1 + i)
            assert i < 8 or 2 * stp > stst[1]
            put(stp, [("fn", lambda i=i: p4_load(g, i), None)], 1)
    print("early p4 loads:", nf)

    g.vwait("H0")
    g.lwait_all()
    g("s_barrier")
    g.stamp("p3start")
    for n in range(PF):
        emit_items(g, [bread(n)])
    for n, (j, u) in enumerate(seq):
        bs = [b for b in bar if bar[b] == n]
        if bs:
            g.vwait(f"H{max(bs)}")
            g("s_barrier")
        if o.get("lw2", 1) and n % 2 == 0 and n + 1 < len(seq):
            g.lwait(f"B3_{n+1}", f"A3_{u}")
        else:
            g.lwait(f"B3_{n}", f"A3_{u}")
        A = V3_ACC + 32 * j
        for m in range(2):
            a = A + 16 * m
            c = "0" if u == 0 else vr(a, 16)
            g(f"v_mfma_f32_32x32x16_bf16 {vr(a,16)}, {ar(8*u+4*m,4)}, {vr(V3_B+4*(n%8),4)}, {c}")
            if m == 0 and n + PF < len(seq):
                emit_items(g, [bread(n + PF)])
            emit_items(g, extra.get(2 * n + m, []))
        if n == 63:
            g.stamp("p3pass1")
        if n in (7, 15, 23, 31, 39, 47, 55, 71, 79, 87, 95, 103, 111, 119):
            g.stamp(f"p3s{n}")
    g.stamp("p3mfma")
    return nf


def p4_load(g, n):
    sl, ks = n // 14, n % 14
    if ks % 4 == 0:
        g(f"s_add_u32 s{S_T+4}, s{S_X4+sl}, {(ks//4)*4096}")
    g.vm(f"buffer_load_dwordx4 {vr(V4_B+4*(n%NB4),4)}, v{V_L16}, {sr(S_WS,4)}, s{S_T+4} offen offset:{(ks%4)*1024} sc1", f"B4_{n}")


def p4_ship_items(sl):
    out = []
    for i, r0 in enumerate([8, 16, 24]):
        a = V4_ACC + 32 * sl + r0
        for q in range(2):
            out.append(("ds", f"ds_write_b128 v{V_RED+i}, {vr(a+4*q,4)} offset:{sl*6144 + q*1024}", f"RW{sl}"))
    return out


def p4_get_items(g, sl):
    out = [("fn", lambda: (g.lwait(f"RW{sl}"), g("s_barrier")), None)]
    for i in range(6):
        out.append(("ds", f"ds_read_b128 {vr(V4_ACC+32*sl+8+4*i,4)}, v{V_RED+3} offset:{sl*6144 + i*1024}", f"RR{sl}"))
    return out


def padd(d, x, y, pk):
    if pk:
        return [("v", f"v_pk_add_f32 {vr(d,2)}, {vr(x,2)}, {vr(y,2)}", None)]
    return [("v", f"v_add_f32 v{d}, v{x}, v{y}", None), ("v", f"v_add_f32 v{d+1}, v{x+1}, v{y+1}", None)]


def p4_add_items(g, sl, pk=False):
    a = V4_ACC + 32 * sl
    out = [("fn", lambda: g.lwait(f"RR{sl}"), None)]
    for d in range(4):
        out += padd(a + 2 * d, a + 2 * d, a + 8 + 2 * d, pk)
        out += padd(a + 16 + 2 * d, a + 16 + 2 * d, a + 24 + 2 * d, pk)
    for d in range(4):
        out += padd(a + 2 * d, a + 2 * d, a + 16 + 2 * d, pk)
    return out


def p4_send(g, sl):
    a = V4_ACC + 32 * sl
    for d in range(4):
        g(f"v_cvt_pk_bf16_f32 v{a+8+d}, v{a+2*d}, v{a+2*d+1}")
    va = V_L16 if sl == 0 else V4_AD + 9
    g.vm(f"buffer_store_dwordx4 {vr(a+8,4)}, v{va}, {sr(S_WS,4)}, s{S_M4+2} offen sc1", f"XST{sl}")


def p4_recv(g, ti):
    va = V_L16 if ti == 0 else V4_AD + 9
    g.vm(f"buffer_load_dwordx4 {vr(V4_R+4*ti,4)}, v{va}, {sr(S_WS,4)}, s{S_M4+3} offen sc1", f"XLD{ti}")


def p4_extra_items(g, src, dst, pk=False, tmp=None):
    out = []
    tmp = dst + 8 if tmp is None else tmp
    for d in range(4):
        out.append(("v", f"v_lshlrev_b32 v{tmp+2*d}, 16, v{src+d}", None))
        out.append(("v", f"v_and_b32 v{tmp+1+2*d}, 0xffff0000, v{src+d}", None))
    for d in range(4):
        out += padd(dst + 2 * d, dst + 2 * d, tmp + 2 * d, pk)
    return out


def p4_out(g, sl):
    a = V4_ACC + 32 * sl
    for d in range(4):
        g(f"v_cvt_pk_bf16_f32 v{a+8+d}, v{a+2*d}, v{a+2*d+1}")
    fl = " " + g.opts.get("outfl", "sc0")
    if sl == 2:
        g.vm(f"buffer_store_dwordx4 {vr(a+8,4)}, v{V4_AD+7}, {sr(S_OUT,4)}, 0 offen{fl}", "OUT")
    else:
        g(f"s_mov_b32 s{S_T}, 32768")
        g.vm(f"buffer_store_dwordx4 {vr(a+8,4)}, v{V4_AD+7}, {sr(S_OUT,4)}, s{S_T} offen{fl}", "OUT")


def p4_main(g, nloaded):
    o = g.opts
    PFN = o.get("pf4", 10)
    g.lwait_all()
    g.stamp("p4pre")
    ex = {}

    def put(hs, items, step=1):
        for i, it in enumerate(items):
            ex.setdefault(hs + int(i * step), []).append(it)
    F = lambda f: [("fn", f, None)]
    put(1, F(lambda: (hh_touch(g, 2), signal(g, HPH[2], ["HHST2"]))))
    put(2 * o.get("sig3b", 6), F(lambda: (hh_touch(g, 3), signal(g, HPH[3], ["HHST3"]))))
    if W2_PARK:
        k0 = min(W2_PARK)
        for x in sorted(W2_PARK):
            put(max(0, 2 * (x - k0)), w2_pick_items(g, x, *W2_PARK[x][1:]), 0.4)
        put(2 * 15, F(lambda: (g.lwait("A4_13"), g("s_barrier"))))
    else:
        put(2 * 8, F(lambda: g("s_barrier")))
    pol = {1: (-1, o.get("p1c", 4)), 2: (o.get("p2i", 9), o.get("p2c", 18)), 3: (o.get("p3i", 22), o.get("p3c", 32))}
    if o.get("p4v", 0) == 0:
        put(2 * 16, p4_ship_items(0), 1.5)
        put(2 * 21, p4_get_items(g, 0), 0.5)
        put(2 * 23 + 1, p4_add_items(g, 0), 0.25)
        put(2 * 27, F(lambda: p4_send(g, 0)))
        put(2 * 29 + 1, p4_ship_items(1), 1)
        put(2 * 33, p4_get_items(g, 1), 0.34)
        put(2 * 35, p4_add_items(g, 1), 0.25)
        put(2 * 38 + 1, F(lambda: p4_send(g, 1)))
        put(2 * o.get("xs1", 47), F(lambda: signal(g, 4, ["XST0", "XST1"])))
        put(2 * 44, p4_ship_items(2), 1)
        put(2 * 48, p4_get_items(g, 2), 0.34)
        put(2 * 50, p4_add_items(g, 2), 0.25)
        put(2 * o.get("xp1", 50), F(lambda: poll_issue(g, 4, "POLL4")))
        put(2 * o.get("xc1", 53), F(lambda: (poll_check(g, 4, "POLL4", S_M4, inline=o.get("inl4", 0)), p4_recv(g, 0), p4_recv(g, 1))))
        put(2 * 53 + 1, p4_extra_items(g, V_HK, V4_ACC + 64), 0.25)
    else:
        put(2 * 16, p4_ship_items(0), 3.5)
        put(2 * 29 + 1, p4_ship_items(1), 1.5)
        g0 = p4_get_items(g, 0)
        g1 = p4_get_items(g, 1)
        put(2 * 34 + 1, g1[:1] + g0[1:] + g1[1:], 0.5)
        put(2 * 37 + 1, p4_add_items(g, 0), 0.25)
        put(2 * 40 + 1, F(lambda: p4_send(g, 0)))
        put(2 * 41, p4_add_items(g, 1), 0.25)
        put(2 * 44, F(lambda: p4_send(g, 1)))
        put(2 * o.get("xs1", 50), F(lambda: signal(g, 4, ["XST0", "XST1"])))
        put(2 * 45, p4_ship_items(2), 1.5)
        put(2 * 51, p4_extra_items(g, V_HK, V4_ACC + 64, tmp=V4_ACC + 16), 0.34)
        put(2 * o.get("xp1", 53), F(lambda: poll_issue(g, 4, "POLL4")))
    nl = nloaded
    for n in range(56):
        sl, ks = n // 14, n % 14
        if n in (7, 14, 21, 28, 35, 42, 49):
            g.stamp(f"p4n{n}")
        for sx, (pi, pc) in pol.items():
            if n == pi:
                poll_issue(g, HPH[sx], f"POLLH{sx}", sx & 1)
            if n == pc:
                poll_check(g, HPH[sx], f"POLLH{sx}", S_A2 + 2, sx & 1, inline=o.get("inl4", 0))
        g.vwait(f"B4_{n}")
        if sl == 0:
            g.lwait(f"A4_{ks}")
        for ia in range(2):
            a = V4_ACC + 32 * sl + 16 * ia
            c = "0" if ks == 0 else vr(a, 16)
            g(f"v_mfma_f32_32x32x16_bf16 {vr(a,16)}, {ar(8*ks+4*ia,4)}, {vr(V4_B+4*(n%NB4),4)}, {c}")
            if nl < 56 and nl <= n + PFN and (nl < 14 or n >= pol[nl // 14][1]):
                p4_load(g, nl)
                nl += 1
            emit_items(g, ex.get(2 * n + ia, []))
    g.stamp("p4mfma")
    g("s_nop 1")
    R = V4_B
    unpack_bf16(g, R, V_HK + 4, 4)
    g("s_nop 1")
    emit_items(g, p4_ship_items(3))
    if o.get("p4v", 0):
        poll_check(g, 4, "POLL4", S_M4)
        p4_recv(g, 0)
        p4_recv(g, 1)
        g3 = p4_get_items(g, 3)
        emit_items(g, g3[:1] + p4_get_items(g, 2)[1:] + g3[1:])
        emit_items(g, p4_add_items(g, 2, True))
        emit_items(g, p4_add_items(g, 3, True))
        a = V4_ACC + 96
        for d in range(4):
            g(f"v_pk_add_f32 {vr(a+2*d,2)}, {vr(a+2*d,2)}, {vr(R+2*d,2)}")
        g.vwait("XLD0")
        emit_items(g, p4_extra_items(g, V4_R, V4_ACC + 64, True))
        p4_out(g, 2)
        g.vwait("XLD1")
        emit_items(g, p4_extra_items(g, V4_R + 4, a, True))
        p4_out(g, 3)
        return
    g.vwait("XLD1")
    emit_items(g, p4_extra_items(g, V4_R + 4, R, True))
    emit_items(g, p4_get_items(g, 3))
    emit_items(g, p4_extra_items(g, V4_R, V4_ACC + 64, True))
    p4_out(g, 2)
    emit_items(g, p4_add_items(g, 3, True))
    a = V4_ACC + 96
    for d in range(4):
        g(f"v_pk_add_f32 {vr(a+2*d,2)}, {vr(a+2*d,2)}, {vr(R+2*d,2)}")
    p4_out(g, 3)


def idle_warm13(g):
    lab = g.lab("iw")
    g(f"s_cmp_ge_u32 s{S_M}, 14\ns_cbranch_scc1 {lab}\n{lab}_j:")
    g.cold.append(f"""{lab}:

        s_lshl_b32 s{S_T}, s{S_G}, 1
        s_and_b32 s{S_T+1}, s{S_M}, 1
        s_add_u32 s{S_T}, s{S_T}, s{S_T+1}
        s_lshl_b32 s{S_T}, s{S_T}, 2
        s_add_u32 s{S_T}, s{S_T}, s{S_WAVE}
        s_mul_i32 s{S_T}, s{S_T}, 7168
        s_add_u32 s{S_T}, s{S_T}, {256*3584}
        s_mov_b32 exec_hi, 0x00ffffff
        buffer_load_dword v3, v2, {sr(S_W1,4)}, s{S_T} offen
        buffer_load_dword v3, v2, {sr(S_W3,4)}, s{S_T} offen
        s_mov_b64 exec, -1
        
    s_branch {lab}_j""")


def write_stamps(g):
    if not g.stamps:
        return
    g(f"""
    s_waitcnt lgkmcnt(0) vmcnt(0)
    s_lshl_b32 s{S_T}, s{S_M}, 2
    s_add_u32 s{S_T}, s{S_T}, s{S_WAVE}
    s_lshl_b32 s{S_T}, s{S_T}, 6
    s_add_u32 s{S_T}, s{S_T}, {WS_STAMP}
    v_mov_b32 v2, 0
    """)
    for i in range(g.nst):
        g(f"v_mov_b32 v3, s{S_STAMP+2*i}")
        g(f"buffer_store_dword v3, v2, {sr(S_WS,4)}, s{S_T} offen offset:{i*4}")
    g(f"v_mov_b32 v3, s{S_FAST}")
    g(f"buffer_store_dword v3, v2, {sr(S_WS,4)}, s{S_T} offen offset:60")


def build(stamps=False, opts=None):
    g = G(stamps, opts)
    o = g.opts
    for k_ in ("srow", "x", "pre", "w"):
        if o.get("nt" + k_, 1 if k_ in ("srow", "x") else 0):
            NT[k_] = " nt"
    n_a = o.get("n_a", 2)
    n_b = o.get("n_b", 3)
    n_c = o.get("n_c", 5)
    n_d = o.get("n_d", 2)
    prologue(g)
    code_prefetch(g, o.get("codesz", 28672))
    p1_setup(g)
    p1_setup_offsets(g)
    for r_, sz in ((S_WQKV, 1572864), (S_X, 2097152), (S_WS, WS_SIZE), (S_WO, 524288)):
        g(f"s_mov_b32 s{r_+2}, {sz}\ns_mov_b32 s{r_+3}, 0x20000")
    g("s_waitcnt lgkmcnt(0)")
    g(f"s_and_b32 s{S_WQKV+1}, s{S_WQKV+1}, 0xffff\ns_and_b32 s{S_X+1}, s{S_X+1}, 0xffff")
    g.stamp("args")
    x0 = p1_dma_x(0)
    emit_items(g, [touch_res3(g, S_WQKV, 12)] + p1_dma_w(0) + x0[:3])
    g.stamp("i2")
    nonce_publish(g)
    g(f"""s_lshl_b32 s{S_T}, s{S_G}, 20
    s_add_u32 s{S_WS}, s{S_WS}, s{S_T}
    s_addc_u32 s{S_WS+1}, s{S_WS+1}, 0
    s_and_b32 s{S_WS+1}, s{S_WS+1}, 0xffff
    s_and_b32 s{S_WO+1}, s{S_WO+1}, 0xffff""")
    dfr = setup_deferred(g)
    emit_items(g, dfr[:16])
    if o.get("tlb", 0):
        lab = g.lab("tlb")
        g(f"""
        s_lshl_b32 s{S_T}, s2, 10
        s_mov_b64 exec, 1
        s_cmp_lg_u32 s{S_WAVE}, 0
        s_cbranch_scc1 {lab}_1
        buffer_load_dword v3, v2, {sr(S_W1,4)}, s{S_T} offen
        buffer_load_dword v3, v2, {sr(S_WO,4)}, s{S_T} offen
        s_branch {lab}_e
        {lab}_1:
        s_cmp_lg_u32 s{S_WAVE}, 1
        s_cbranch_scc1 {lab}_2
        buffer_load_dword v3, v2, {sr(S_W3,4)}, s{S_T} offen
        buffer_load_dword v3, v2, {sr(S_W2,4)}, s{S_T} offen
        s_branch {lab}_e
        {lab}_2:
        s_cmp_lg_u32 s{S_WAVE}, 2
        s_cbranch_scc1 {lab}_3
        buffer_load_dword v3, v2, {sr(S_OUT,4)}, s{S_T} offen
        global_load_dword v3, v{V_NA}, s[{S_DBG}:{S_DBG+1}] offset:128 sc1
        s_branch {lab}_e
        {lab}_3:
        s_lshl_b32 s{S_T}, s{S_M}, 7
        s_add_u32 s{S_T}, s{S_T}, 0xe0000
        buffer_load_dword v3, v2, {sr(S_WS,4)}, s{S_T} offen sc1
        {lab}_e:
        s_mov_b64 exec, -1
        """)
    setup_rest(g)
    emit_items(g, dfr[16:])
    p1_stats_addr(g)
    g.stamp("setup")
    emit_items(g, x0[3:])
    if o.get("ord", 1) == 0:
        emit_items(g, p1_dma_w(1) + p1_srow_items())
    else:
        emit_items(g, p1_srow_items() + p1_dma_w(1))
    g.stamp("issued")
    assert n_a <= NSLOT
    if not o.get("woraw", 0):
        g.bg += wo_dma_items()
    for u in range(min(3, n_a)):
        g.bg += w13_dma_items(u)
    p1_gemm(g)
    g.lwait("WOW")
    g("s_barrier")
    for u in range(3, n_a):
        g.bg += w13_dma_items(u)
    if o.get("kpre", 9) == 16:
        pr = preread_items()
        emit_items(g, pr)
    g.skip = o.get("askip", 0)
    p1_attention(g)
    g.skip = 0
    g.tick(100)
    g.T = 16
    g.stamp("attn")
    u0 = n_a
    assert n_a + n_b <= NSLOT
    for u in range(u0, u0 + n_b):
        emit_items(g, w13_dma_items(u))
    ea = o.get("earlyA", 0)
    rest = []
    for ks in range(8 if ea else 0, 16):
        rest += p2_a_items(ks)
    if ea:
        emit_items(g, rest[8:24])
    w13_stage_setup(g)
    p2_pre(g)
    signal(g, 0, ["OST", "WO"])
    g.stamp("p1done")
    w0 = o.get("w0poll", 0)
    if not w0 & 1:
        poll_issue(g, 0, "POLL1")
    if not ea:
        g("s_barrier")
        na0 = o.get("na0", 24)
        emit_items(g, rest[:na0])
        o["_late"] = rest[na0:]
    else:
        emit_items(g, rest[:8])
        o["_late"] = rest[24:]
    p3_pre(g)
    for u in range(n_a):
        emit_items(g, w13_pick_items(g, u))
    if w0 & 1:
        poll_w0(g, 0, 6)
        g("s_barrier")
    else:
        poll_check(g, 0, "POLL1", 6, inline=o.get("inl", 0))
    g.stamp("f1")
    if n_a:
        g.lwait(f"A3_{n_a-1}")
    u0 += n_b
    assert n_b + n_c + n_d <= NSLOT
    if o.get("iw", 0) == 2:
        g.bg.append(("fn", lambda: (idle_warm13(g), g.tick()), None))
    for u in range(u0, u0 + n_c):
        g.bg += w13_dma_items(u)
    o["_picks"] = [it for u in range(n_a, u0 + n_c) for it in w13_pick_items(g, u)]
    p2_main(g)
    assert not g.bg
    u0 += n_c
    if o.get("iw", 0) == 1:
        idle_warm13(g)
    for u in range(u0, u0 + n_d):
        emit_items(g, w13_dma_items(u))
    npre = u0 + n_d
    signal(g, 1, ["HST"])
    if o.get("iw", 0) == 3:
        idle_warm13(g)
    g.stamp("p2done")
    if not w0 & 2:
        poll_issue(g, 1, "POLL2")
    g("s_mov_b64 s[6:7], -1")
    p34_pre(g, 1)
    for u in range(u0, npre):
        emit_items(g, w13_pick_items(g, u))
    g.lwait_all()
    if w0 & 2:
        poll_w0(g, 1, 6)
    g("s_barrier")
    hk_exchange_read(g)
    g(f"s_cmp_ge_u32 s{S_M}, 14\ns_cbranch_scc1 L_idle3")
    if not w0 & 2:
        poll_check(g, 1, "POLL2", 6, inline=o.get("inl", 0))
    g.stamp("f2")
    emit_items(g, p3_h_items(0) + p3_h_items(1))
    got = p3_main(g, npre)
    nf = got if got else 8
    ep = p3_epi_sched(TORD[3])
    if not got:
        poll_issue(g, HPH[0], "POLLH0")
    g("s_nop 7\ns_nop 3")
    emit_items(g, ep[:40])
    if not got:
        poll_check(g, HPH[0], "POLLH0", S_A2 + 2)
        for i in range(nf):
            p4_load(g, i)
    poll_issue(g, HPH[1], "POLLH1", 1)
    emit_items(g, ep[40:])
    p3_hh_store(g, TORD[3])
    g.stamp("p3done")
    g("L_p4:")
    p4_main(g, nf)
    g.stamp("end")
    write_stamps(g)
    g("L_done:\ns_endpgm")
    g("L_idle3:")
    g.vq = []
    g.lq = []
    if o.get("iw", 0) == 0:
        idle_warm13(g)
    if o.get("idlepf", 1):
        g(f"""
        s_and_b32 s{S_T}, s{S_G}, 1
        s_lshl_b32 s{S_T}, s{S_T}, 1
        s_and_b32 s{S_T+1}, s{S_M}, 1
        s_add_u32 s{S_T}, s{S_T}, s{S_T+1}
        s_mul_i32 s{S_T}, s{S_T}, {448*1024}
        s_lshl_b32 s{S_T+1}, s{S_WAVE}, 13
        s_add_u32 s{S_T}, s{S_T}, s{S_T+1}
        s_min_u32 s{S_T+1}, s{S_XCD}, 6
        s_lshl_b32 s{S_T+1}, s{S_T+1}, 16
        s_add_u32 s{S_T+1}, s{S_T+1}, s{S_T}
        buffer_load_dword v3, v2, {sr(S_W2,4)}, s{S_T+1} offen
        s_add_u32 s{S_T+1}, s{S_T+1}, 32768
        buffer_load_dword v3, v2, {sr(S_W2,4)}, s{S_T+1} offen
        """)
        if o.get("idr3", 1):
            g(f"""
            v_lshlrev_b32 v{g.T+5}, 10, v{V_L}
            s_mul_i32 s{S_T+1}, s{S_WAVE}, {112*1024 - 8192}
            s_add_u32 s{S_T+1}, s{S_T+1}, s{S_T}
            s_waitcnt vmcnt(0)
            buffer_load_dword v3, v{g.T+5}, {sr(S_W2,4)}, s{S_T+1} offen offset:384
            s_add_u32 s{S_T+1}, s{S_T+1}, {56*1024}
            buffer_load_dword v3, v{g.T+5}, {sr(S_W2,4)}, s{S_T+1} offen offset:384
            """)
        for _ in range(o.get("idsl", 0)):
            g("s_sleep 16")
        for j in [0, 7, 1, 8, 2, 9, 3, 10, 4, 11, 5, 12, 6, 13][:o.get('idn', 0)]:
            g(f"s_add_u32 s{S_T+1}, s{S_T}, {j*32768}")
            g(f"buffer_load_dword v3, v2, {sr(S_W2,4)}, s{S_T+1} offen")
    g.lwait_all()
    g("s_barrier")
    nk = [ks for ks in range(14) if ks not in W2_PARK]
    for ks in nk:
        emit_items(g, w2_dma_items(ks, S_LB, ks * 2048))
    for ks in nk:
        emit_items(g, w2_pick_items(g, ks, V4_AD + 2, ks * 2048))
    g.lwait_all()
    if W2_PARK:
        g("s_barrier")
    for ks in sorted(W2_PARK):
        emit_items(g, w2_dma_items(ks, W2_PARK[ks][0], W2_PARK[ks][2]))
    if o.get("wbl2", 0):
        g(f"""
        s_cmp_lg_u32 s{S_IDXW}, {31*4}
        s_cbranch_scc1 L_nowb
        buffer_wbl2 sc1
        L_nowb:
        """)
    poll_issue(g, HPH[0], "POLLH0")
    poll_check(g, HPH[0], "POLLH0", S_A2 + 2, slp=True)
    for i in range(nf):
        p4_load(g, i)
    poll_issue(g, HPH[1], "POLLH1", 1)
    g.vwait_all()
    g("s_branch L_p4")
    for c in g.cold:
        g(c)
    g("L_codeend:")
    return g


if __name__ == "__main__":
    out = sys.argv[1] if len(sys.argv) > 1 else "k.s"
    stamps = "--stamps" in sys.argv
    if "--cyc" in sys.argv:
        stamps = "cyc"
    opts = {}
    if "--slow" in sys.argv:
        opts["slow"] = True
    for a in sys.argv:
        if a.startswith("--st="):
            opts["stsel"] = a[5:].split(",")
        if a.startswith("--o:"):
            k, v = a[4:].split("=")
            opts[k] = int(v) if v.lstrip("-").isdigit() else v
    g = build(stamps, opts)
    emit_file(out, [g.k], single=True)
    print("stamps:", g.nst, g.stnames, "lines:", len(g.k.lines))
```

```python
import sys
import struct
from asmlib import *

KNAME = "sequential_preLN__sliding_local_dilated__glu_gated_swiglu__prompt_kernel"

WS_GRP = 0x100000
WS_O = 0x00000
WS_H = 0x00000
WS_X = 0x20000
WS_HH = 0x40000
WS_ST = 0xB0000
WS_S1 = 0xB8000
WS_FL = 0xC0000
WS_STAMP = 0xD0000
WS_SIZE = WS_GRP
SPIN_MAX = 400000
LOG2E = 1.4426950408889634

S_NONCE = 3
S_IDXW = 4
S_FLO = 5
S_X, S_WQKV, S_WO, S_W1, S_W3, S_W2, S_OUT, S_WS = 8, 12, 16, 20, 24, 28, 32, 36
S_DBG = 100
S_WAVE = 42
S_XCD = 43
S_FAST = 44
S_G = 45
S_M = 46
S_TB = 47
S_KH = 41
S_C8 = 48
S_T = 49
S_ONES = 56
S_XOFF = 57
S_WOFF = 61
S_SW = 65
S_EXM = 66
S_LB = 68
S_C = 70
S_FLB = 71
S_STAMP = 72
S_KO = 66
S_A = 57
S_A2 = 12
S_K2 = 65
S_W2O = 67


NT = {}


def f2h(x):
    return "0x%08x" % struct.unpack("<I", struct.pack("<f", x))[0]


def vr(a, n):
    return f"v[{a}:{a+n-1}]"


def ar(a, n):
    return f"a[{a}:{a+n-1}]"


def sr(a, n):
    return f"s[{a}:{a+n-1}]"


class G:
    def __init__(self, stamps=False, opts=None):
        self.k = Kernel(KNAME, 256, 256, 160 * 1024, nvgpr=256, nagpr=256)
        self.vq = []
        self.lq = []
        self.stamps = stamps
        self.nst = 0
        self.stnames = []
        self.opts = opts or {}
        self.nlab = 0
        self.bg = []
        self.cold = []
        self.T = 212

    def __call__(self, s):
        self.k(s)

    def lab(self, base):
        self.nlab += 1
        return f"L_{base}_{self.nlab}"

    def tick(self, n=1):
        if getattr(self, "skip", 0) > 0:
            self.skip -= 1
            return
        for _ in range(n):
            if self.bg:
                emit_items(self, [self.bg.pop(0)])

    def vm(self, ins, tag):
        self.k(ins)
        self.vq.append(tag)

    def store(self, ins, tag):
        a = self.lab("slow")
        self.k(f"s_cmp_eq_u32 s{S_FAST}, 0\ns_cbranch_scc1 {a}")
        for x in ins:
            self.k(x)
        self.k(f"{a}_j:")
        self.cold.append(f"{a}:\n" + "\n".join(x + " sc1" for x in ins) + f"\ns_branch {a}_j")
        self.vq += [tag] * len(ins)

    def vwait(self, *tags):
        last = -1
        for i, t in enumerate(self.vq):
            if t in tags:
                last = i
        if last < 0:
            return
        n = len(self.vq) - 1 - last
        if n > 63:
            n = 63
            last = len(self.vq) - 1 - 63
        self.k(f"s_waitcnt vmcnt({n})")
        self.vq = self.vq[last + 1:]

    def vwait_all(self):
        self.k("s_waitcnt vmcnt(0)")
        self.vq = []

    def ds(self, ins, tag):
        self.k(ins)
        self.lq.append(tag)

    def lwait(self, *tags):
        last = -1
        for i, t in enumerate(self.lq):
            if t in tags:
                last = i
        if last < 0:
            return
        n = len(self.lq) - 1 - last
        if n > 15:
            n = 15
            last = len(self.lq) - 1 - 15
        self.k(f"s_waitcnt lgkmcnt({n})")
        self.lq = self.lq[last + 1:]

    def lwait_all(self):
        self.k("s_waitcnt lgkmcnt(0)")
        self.lq = []

    def stamp(self, name):
        if not self.stamps:
            return
        sel = self.opts.get("stsel")
        if sel is not None and name not in sel:
            return
        r = S_STAMP + 2 * self.nst
        assert r + 1 <= 99, "too many stamps"
        self.k(f"{'s_memtime' if self.stamps == 'cyc' and self.nst > 0 else 's_memrealtime'} s[{r}:{r+1}]")
        self.nst += 1
        self.stnames.append(name)

    def srd(self, s, lo, hi, size):
        self(f"s_mov_b32 s{s}, s{lo}\ns_and_b32 s{s+1}, s{hi}, 0xffff\ns_mov_b32 s{s+2}, {size}\ns_mov_b32 s{s+3}, 0x20000")


def emit_items(g, items):
    for kind, ins, tag in items:
        if kind == "ds":
            g.ds(ins, tag)
        elif kind == "vm":
            g.vm(ins, tag)
        elif kind == "fn":
            ins()
        else:
            g(ins)


def sched(g, mf, slots):
    for i, x in enumerate(mf):
        g(x)
        emit_items(g, slots.get(i, []))


def spread(slots, items, lo, hi):
    n = hi - lo
    for j, it in enumerate(items):
        slots.setdefault(lo + j * n // len(items), []).append(it)


V_L = 1
V_TR = 224
V_D128 = 226
V_L16 = 227
V_RED = 228
V_XO = 232
V3_WD = 233
V3_TR = 234
V3_SW = 235
V3_HB = 236
V_GA = 237
V_OS = 238
V_L4 = 239
V_XRES = 240
V_HK = 248
V_XD = 4
V_WD = 9
V_XR = 10
V_WR = 14
V_MK = 16
V_ACC = 36
V_AF = 96
V_BF = 120
V_NM2 = 160
V_SR = 160
V_NM = 200
V_NA = 210
V_S1A = 220
V_ONE2 = 222

L_X = 0
L_W = 61440
L_MISC = 159744
L_WO = 45056


def prologue(g):
    g.stamp("start")
    g(f"""
    s_cmp_ge_u32 s2, 256
    s_cbranch_scc1 L_done
    s_load_dwordx2 s[{S_WQKV}:{S_WQKV+1}], s[0:1], 8
    s_load_dwordx2 s[{S_X}:{S_X+1}], s[0:1], 0
    s_load_dwordx2 s[{S_DBG}:{S_DBG+1}], s[0:1], 64
    s_load_dwordx2 s[{S_WS}:{S_WS+1}], s[0:1], 72
    s_load_dwordx2 s[{S_WO}:{S_WO+1}], s[0:1], 16
    s_load_dwordx8 s[{S_STAMP+20}:{S_STAMP+27}], s[0:1], 32
    v_lshrrev_b32 v2, 6, v0
    v_and_b32 v1, 63, v0
    s_and_b32 s{S_XCD}, s2, 7
    v_readfirstlane_b32 s{S_WAVE}, v2
    s_lshr_b32 s{S_T+1}, s2, 3
    s_lshr_b32 s{S_T}, s{S_T+1}, 4
    s_lshl_b32 s{S_G}, s{S_XCD}, 1
    s_add_u32 s{S_G}, s{S_G}, s{S_T}
    s_and_b32 s{S_M}, s{S_T+1}, 15
    s_lshl_b32 s{S_IDXW}, s{S_T+1}, 2
    s_add_u32 s{S_IDXW}, s{S_IDXW}, s{S_WAVE}
    s_lshr_b32 s{S_KH}, s{S_M}, 3
    s_lshl_b32 s{S_TB}, s{S_G}, 1
    s_add_u32 s{S_TB}, s{S_TB}, s{S_KH}
    s_and_b32 s{S_C8}, s{S_M}, 7
    """)


def code_prefetch(g, nbytes):
    g(f"""
    s_getpc_b64 s[6:7]
    L_pc:
    v_lshlrev_b32 v2, 7, v{V_L}
    s_lshl_b32 s{S_T}, s{S_IDXW}, 8
    v_add_u32 v4, s{S_T}, v2
    v_min_u32 v4, L_codeend-L_pc-4, v4
    s_mov_b64 exec, 3
    """)
    g.vm("global_load_dword v3, v4, s[6:7]", "PF")
    g("s_mov_b64 exec, -1")
    g("s_memrealtime s[6:7]")


def p1_setup(g):
    l = V_L
    t = g.T
    g(f"""
    v_lshrrev_b32 v{t+2}, 3, v{l}
    v_bfe_u32 v{t+3}, v{l}, 4, 1
    s_and_b32 s{S_T}, s{S_WAVE}, 1
    s_lshl_b32 s{S_T}, s{S_T}, 1
    v_or_b32 v{t+3}, s{S_T}, v{t+3}
    v_lshlrev_b32 v{t+3}, 1, v{t+3}
    v_and_b32 v{t+4}, 7, v{l}
    v_xor_b32 v{t+3}, v{t+3}, v{t+4}
    s_lshl_b32 s{S_T}, s{S_WAVE}, 3
    v_add_u32 v{t+2}, s{S_T}, v{t+2}
    v_mul_u32_u24 v{t+2}, 3072, v{t+2}
    v_lshl_add_u32 v{t+2}, v{t+3}, 4, v{t+2}
    s_lshl_b32 s{S_T}, s{S_C8}, 7
    v_add_u32 v{V_WD}, s{S_T}, v{t+2}
    s_lshl_b32 s{S_LB}, s{S_WAVE}, 10
    s_mul_i32 s{S_LB+1}, s{S_WAVE}, 3072
    v_lshrrev_b32 v{t}, 4, v0                 ; p = tid>>4
    v_and_b32 v{t+1}, 15, v{l}
    v_xor_b32 v{t+1}, v{t+1}, v{t}
    v_lshlrev_b32 v{t+1}, 4, v{t+1}
    s_lshl_b32 s{S_T+1}, s{S_TB}, 16          ; T0*1024
    v_add_u32 v{t+1}, s{S_T+1}, v{t+1}
    v_lshl_add_u32 v{V_XD+1}, v{t}, 11, v{t+1}
    s_lshr_b32 s{S_T}, s{S_WAVE}, 1           ; p>>3
    s_mul_i32 s{S_T}, s{S_T}, {17*1024}
    s_add_u32 s{S_T}, s{S_T}, {15*1024}
    v_subrev_u32 v{V_XD}, s{S_T}, v{V_XD+1}   ; 2p - 16(p>>3) - 15 - (p>>3)
    v_lshlrev_b32 v{V_L16}, 4, v{l}
    v_min_u32 v{V_SR+17}, 9, v{t}
    s_mul_i32 s{S_T}, s{S_C8}, 10
    v_add_u32 v{V_SR+17}, s{S_T}, v{V_SR+17}  ; e = delta + 16
    s_sub_u32 s{S_T}, s{S_T+1}, {16*1024}
    v_and_b32 v{t+2}, 0xf0, v{V_L16}
    v_lshl_add_u32 v{t+2}, v{V_SR+17}, 10, v{t+2}
    v_add_u32 v{V_SR+16}, s{S_T}, v{t+2}
    """)


def p1_setup_offsets(g):
    g(f"""
    s_cmp_eq_u32 s{S_WAVE}, 0
    s_cselect_b32 s{S_EXM}, 0xffff0000, -1
    s_mov_b32 s{S_EXM+1}, -1
    {["s_mov_b32 s%d, s%d" % (S_T, S_XCD), "s_add_u32 s%d, s%d, s%d" % (S_T, S_XCD, S_TB), "s_lshl_b32 s%d, s%d, 1" % (S_T, S_G) + chr(10) + "s_add_u32 s%d, s%d, s%d" % (S_T, S_T, S_XCD)][g.opts.get("rot", 0)]}
    s_and_b32 s{S_T}, s{S_T}, 3
    s_lshr_b32 s{S_T+2}, s{S_XCD}, 2
    s_mul_i32 s{S_SW}, s{S_T+2}, {64*3072}
    """)
    for q in range(4):
        g(f"""
        s_add_u32 s{S_T+1}, s{S_T}, {q}
        s_and_b32 s{S_T+1}, s{S_T+1}, 3
        s_lshl_b32 s{S_XOFF+q}, s{S_T+1}, 8
        s_mul_i32 s{S_WOFF+q}, s{S_T+1}, {128*3072}
        """)


def p1_srow_items():
    return [("vm", f"buffer_load_dwordx4 {vr(V_SR+4*i,4)}, v{V_SR+16}, {sr(S_X,4)}, 0 offen offset:{256*i}{NT.get('srow','')}", "SROW") for i in range(4)]


def nonce_publish(g):
    lab = g.lab("nolead")
    t = g.T
    g(f"""
    s_lshl_b32 s{S_T}, s{S_G}, 2
    v_mov_b32 v{V_NA}, s{S_T}
    s_or_b32 s{S_T+1}, s{S_M}, s{S_WAVE}
    s_cmp_lg_u32 s{S_T+1}, 0
    s_cbranch_scc1 {lab}
    s_or_b32 s{S_T+1}, s6, 1
    v_mov_b32 v{t+6}, s{S_T+1}
    s_mov_b64 exec, 1
    global_store_dword v{V_NA}, v{t+6}, s[{S_DBG}:{S_DBG+1}] sc1
    s_mov_b64 exec, -1
    {lab}:
    """)


def nonce_poll_issue(g):
    g.vm(f"global_load_dword v{V_NA+1}, v{V_NA}, s[{S_DBG}:{S_DBG+1}] sc1", "NONCE")


def nonce_check(g):
    lp = g.lab("nl")
    g.vwait("NONCE")
    g(f"""
    v_readfirstlane_b32 s{S_NONCE}, v{V_NA+1}
    s_mov_b32 s{S_T+6}, 0
    s_cmp_eq_u32 s{S_NONCE}, 0
    s_cbranch_scc1 {lp}
    {lp}_ok:
    """)
    g.cold.append(f"""{lp}:
    global_load_dword v{V_NA+1}, v{V_NA}, s[{S_DBG}:{S_DBG+1}] sc1
    s_add_u32 s{S_T+6}, s{S_T+6}, 1
    s_waitcnt vmcnt(0)
    v_readfirstlane_b32 s{S_NONCE}, v{V_NA+1}
    s_cmp_gt_u32 s{S_T+6}, {SPIN_MAX}
    s_cbranch_scc1 {lp}_ok
    s_cmp_eq_u32 s{S_NONCE}, 0
    s_cbranch_scc1 {lp}
    s_branch {lp}_ok""")


def p1_stats_addr(g):
    e = V_SR + 17
    b = V_SR + 18
    g(f"""
    v_lshrrev_b32 v{b}, 1, v{e}
    v_and_b32 v{b+1}, 1, v{e}
    v_lshl_add_u32 v{b+2}, v{b+1}, 5, v{b}
    v_add_u32 v{b+2}, 8, v{b+2}
    v_xor_b32 v{b+1}, 1, v{b+1}
    v_lshl_add_u32 v{b}, v{b+1}, 3, v{b}
    v_cmp_gt_u32 vcc, 16, v{e}
    s_nop 1
    v_cndmask_b32 v{e}, v{b+2}, v{b}, vcc
    v_lshlrev_b32 v{e}, 3, v{e}
    """)


def p1_stats_compute(g):
    R = V_SR
    a = R + 18
    g.vwait("SROW")
    for i in range(2):
        g(f"v_dot2_f32_bf16 v{a+2*i}, v{R+i}, s{S_ONES}, 0")
        g(f"v_dot2_f32_bf16 v{a+2*i+1}, v{R+i}, v{R+i}, 0")
    for d in range(2, 16):
        i = d & 1
        g(f"v_dot2c_f32_bf16 v{a+2*i}, s{S_ONES}, v{R+d}")
        g(f"v_dot2c_f32_bf16 v{a+2*i+1}, v{R+d}, v{R+d}")
    g(f"""
    s_lshl_b32 s{S_T+2}, s{S_KH}, 10
    s_add_u32 s{S_T+2}, s{S_T+2}, {WS_S1}
    s_nop 0
    v_pk_add_f32 {vr(a,2)}, {vr(a,2)}, {vr(a+2,2)}
    s_nop 1
    """)
    for sh in (8, 4, 2, 1):
        g(f"v_add_f32_dpp v{a}, v{a}, v{a} row_ror:{sh} row_mask:0xf bank_mask:0xf")
        g(f"v_add_f32_dpp v{a+1}, v{a+1}, v{a+1} row_ror:{sh} row_mask:0xf bank_mask:0xf")
        g("s_nop 0")
    g(f"""
    v_mul_f32 v{a+2}, {f2h(-1.0/512)}, v{a}
    v_mul_f32 v{a+3}, {f2h(1.0/512)}, v{a+1}
    v_fma_f32 v{a+3}, -v{a+2}, v{a+2}, v{a+3}
    v_max_f32 v{a+3}, 0, v{a+3}
    v_add_f32 v{a+3}, {f2h(1e-5)}, v{a+3}
    v_rsq_f32 v{a+3}, v{a+3}
    s_mov_b32 exec_lo, 0x00010001
    s_mov_b32 exec_hi, 0x00010001
    """)
    assert a % 2 == 0
    g.vm(f"buffer_store_dwordx2 {vr(a+2,2)}, v{R+17}, {sr(S_WS,4)}, s{S_T+2} offen sc1", "S1ST")
    g("s_mov_b64 exec, -1")


def p1_started(g):
    lab = g.lab("nostart")
    t = g.T
    g(f"""
    s_cmp_lg_u32 s{S_WAVE}, 0
    s_cbranch_scc1 {lab}
    s_getreg_b32 s{S_T+4}, hwreg(HW_REG_XCC_ID)
    s_and_b32 s{S_T+4}, s{S_T+4}, 15
    s_lshl_b32 s{S_T+5}, s{S_M}, 3
    s_add_u32 s{S_T+5}, s{S_T+5}, s{S_FLB}
    v_mov_b32 v{t+2}, {7*4096}
    v_mov_b32 v{t}, s{S_NONCE}
    v_mov_b32 v{t+1}, s{S_T+4}
    s_mov_b64 exec, 1
    buffer_store_dwordx2 {vr(t,2)}, v{t+2}, {sr(S_WS,4)}, s{S_T+5} offen sc1
    s_mov_b64 exec, -1
    {lab}:
    """)


def setup_rest(g):
    l = V_L
    t = g.T
    a = S_STAMP + 20
    g(f"""
    s_mov_b32 s{S_ONES}, 0x3f803f80
    s_mov_b32 s{S_FLB}, 0
    s_add_u32 s{S_FLB}, s{S_FLB}, {WS_FL}
    s_lshl_b32 s{S_T}, s{S_M}, 4
    s_lshl_b32 s{S_T+1}, s{S_WAVE}, 2
    s_add_u32 s{S_FLO}, s{S_T}, s{S_T+1}
    s_add_u32 s{S_FLO}, s{S_FLO}, s{S_FLB}
    v_lshlrev_b32 v{V_L4}, 2, v{l}
    v_lshrrev_b32 v{t}, 4, v{l}            ; g
    v_and_b32 v{t+1}, 15, v{l}             ; r
    v_xor_b32 v{t+2}, v{t}, v{t+1}
    s_lshr_b32 s{S_T+2}, s{S_XCD}, 2
    s_lshl_b32 s{S_T+2}, s{S_T+2}, 3
    v_xor_b32 v{t+2}, s{S_T+2}, v{t+2}
    v_lshlrev_b32 v{t+3}, 8, v{t+1}
    """)
    for ks in range(4):
        g(f"""
        v_xor_b32 v{t+4}, {4*ks}, v{t+2}
        v_lshl_add_u32 v{V_XR+ks}, v{t+4}, 4, v{t+3}
        """)
    g(f"""
    v_mul_u32_u24 v{t+2}, 3072, v{t}
    v_bfe_u32 v{t+3}, v{l}, 2, 2
    v_lshl_add_u32 v{t+2}, v{t+3}, 7, v{t+2}
    v_bfe_u32 v{t+3}, v{l}, 3, 2
    v_xor_b32 v{t+3}, s{S_WAVE}, v{t+3}
    v_lshl_add_u32 v{t+2}, v{t+3}, 5, v{t+2}
    v_and_b32 v{t+3}, 3, v{l}
    v_lshl_add_u32 v{t+2}, v{t+3}, 3, v{t+2}
    v_add_u32 v{V_WR}, {L_W}, v{t+2}
    v_add_u32 v{V_WR+1}, {L_W+49152}, v{t+2}
    """)
    lab = g.lab("noones")
    g(f"""
    v_mov_b32 v{t+4}, s{S_ONES}
    v_mov_b32 v{t+5}, s{S_ONES}
    v_mov_b32 v{t+6}, s{S_ONES}
    v_mov_b32 v{t+7}, s{S_ONES}
    v_mov_b32 v{V_ONE2}, s{S_ONES}
    v_mov_b32 v{V_ONE2+1}, s{S_ONES}
    v_min_u32 v{t+2}, 2, v{t}
    v_mul_u32_u24 v{t+2}, 20480, v{t+2}
    v_lshl_add_u32 v{t+2}, v{t+1}, 4, v{t+2}
    s_cmp_lg_u32 s{S_WAVE}, 0
    s_cbranch_scc1 {lab}
    ds_write_b128 v{t+2}, {vr(t+4,4)} offset:{L_X}
    {lab}:
    v_lshlrev_b32 v{V_S1A}, 3, v{t+1}          ; r*8
    v_lshlrev_b32 v{V_S1A+1}, 5, v{t}          ; g*32
    """)


class Rec:
    def __init__(self, g):
        self.g = g
        self.items = []
        self.T = g.T

    def __call__(self, s):
        self.items.append(("v", s, None))

    def lab(self, b):
        return self.g.lab(b)

    def srd(self, s, lo, hi, size):
        self(f"s_mov_b32 s{s}, s{lo}\ns_and_b32 s{s+1}, s{hi}, 0xffff\ns_mov_b32 s{s+2}, {size}\ns_mov_b32 s{s+3}, 0x20000")


def setup_deferred(g0):
    g = Rec(g0)
    l = V_L
    t = 184
    a = S_STAMP + 20
    nw = g0.opts.get("now", 0)
    g.srd(S_W1, a, a + 1, 0 if nw & 1 else 1835008)
    g.srd(S_W3, a + 2, a + 3, 0 if nw & 1 else 1835008)
    g.srd(S_W2, a + 4, a + 5, 0 if nw & 2 else 1835008)
    g.srd(S_OUT, a + 6, a + 7, 2097152)
    g(f"""
    v_lshrrev_b32 v{t}, 4, v{l}
    v_and_b32 v{t+1}, 15, v{l}
    """)
    M = V_MK
    big = f2h(-1e30)
    g(f"""
    v_lshlrev_b32 v{t+2}, 2, v{t}
    v_sub_u32 v{t+3}, v{t+2}, v{t+1}           ; d0 = 4g - q (signed)
    s_cmp_eq_u32 s{S_TB}, 0
    s_cselect_b32 s0, {big}, 0
    s_mov_b32 s1, {big}
    v_mov_b32 v{t+5}, s1
    v_mov_b32 v{t+6}, s0
    v_mov_b32 v{M+16}, 0
    v_mov_b32 v{M+17}, 0
    """)
    for r in range(4):
        g(f"""
        v_add_u32 v{t+4}, {r+7}, v{t+3}
        v_cmp_gt_u32 vcc, 8, v{t+4}
        v_mov_b32 v{t+7}, {hex(0xffff << (16*(r&1)))}
        s_nop 0
        v_cndmask_b32 v{M+r}, v{t+5}, 0, vcc
        v_cndmask_b32 v{t+7}, 0, v{t+7}, vcc
        v_or_b32 v{M+16+r//2}, v{M+16+r//2}, v{t+7}
        v_add_u32 v{t+4}, {r}, v{t+3}
        v_cmp_lt_i32 vcc, 8, v{t+4}                ; d >= 9
        s_nop 1
        v_cndmask_b32 v{M+4+r}, v{t+5}, 0, vcc
        v_cndmask_b32 v{M+8+r}, v{t+5}, v{t+6}, vcc
        v_cmp_lt_i32 vcc, 0, v{t+4}                ; d >= 1
        v_cmp_gt_u32 s[6:7], 2, v{t}   ; c <= 7  <=> g < 2
        s_and_b64 vcc, vcc, s[6:7]
        s_nop 1
        v_cndmask_b32 v{M+12+r}, v{t+5}, v{t+6}, vcc
        """)
    g(f"""
    v_not_b32 v{M+18}, v{M+16}
    v_not_b32 v{M+19}, v{M+17}
    """)
    g(f"""
    s_lshl_b32 s0, s{S_KH}, 16
    s_lshl_b32 s1, s{S_C8}, 12
    s_add_u32 s0, s0, s1
    s_lshl_b32 s1, s{S_WAVE}, 10
    s_add_u32 s0, s0, s1
    s_add_u32 s0, s0, {WS_O}
    v_lshrrev_b32 v{t+2}, 5, v{l}
    v_lshlrev_b32 v{t+2}, 9, v{t+2}
    v_lshl_add_u32 v{t+2}, v{t+1}, 5, v{t+2}
    v_and_b32 v{t+3}, 1, v{t}
    v_lshl_add_u32 v{t+2}, v{t+3}, 4, v{t+2}
    v_add_u32 v{V_OS}, s0, v{t+2}
    """)
    g(f"""
    v_lshrrev_b32 v{t+2}, 3, v{l}
    v_lshlrev_b32 v{t+2}, 10, v{t+2}
    v_bfe_u32 v{t+3}, v{l}, 4, 1
    v_lshlrev_b32 v{t+3}, 2, v{t+3}
    v_and_b32 v{t+4}, 7, v{l}
    v_xor_b32 v{t+3}, v{t+3}, v{t+4}
    v_lshl_add_u32 v{t+2}, v{t+3}, 4, v{t+2}
    s_lshl_b32 s0, s{S_C8}, 7
    v_add_u32 v{V_D128}, s0, v{t+2}
    """)
    lab = g.lab("w13ok")
    g(f"""
    v_lshrrev_b32 v{t+2}, 2, v{l}
    v_mul_u32_u24 v{t+2}, 3584, v{t+2}
    v_and_b32 v{t+3}, 3, v{l}
    v_lshl_add_u32 v{t+2}, v{t+3}, 4, v{t+2}
    s_lshl_b32 s0, s{S_M}, 8
    s_lshl_b32 s1, s{S_WAVE}, 6
    s_add_u32 s0, s0, s1
    s_cmp_lt_u32 s{S_M}, 14
    s_cselect_b32 s0, s0, 0x40000000
    v_add_u32 v{V3_WD}, s0, v{t+2}
    """)
    g(f"""
    v_bfe_u32 v{t+3}, v{l}, 4, 1
    v_lshlrev_b32 v{t+2}, 5, v{t+3}
    v_and_b32 v{t+3}, 1, v{l}
    v_lshl_add_u32 v{t+2}, v{t+3}, 4, v{t+2}
    v_bfe_u32 v{t+3}, v{l}, 1, 1
    v_lshl_add_u32 v{t+2}, v{t+3}, 3, v{t+2}  ; (G&1)*32 + (c&1)*16 + (c>>1)*8
    v_lshrrev_b32 v{t+4}, 5, v{l}
    v_lshlrev_b32 v{t+4}, 3, v{t+4}
    v_bfe_u32 v{t+3}, v{l}, 2, 2
    v_add_u32 v{t+4}, v{t+4}, v{t+3}          ; 8h + r
    v_lshl_add_u32 v{t+5}, v{t+4}, 7, v{t+2}
    v_lshl_add_u32 v{t+6}, v{t+4}, 6, v{t+2}
    v_bfe_u32 v{t+3}, v{l}, 3, 1
    s_lshr_b32 s0, s{S_WAVE}, 1
    v_xor_b32 v{t+3}, s0, v{t+3}
    v_lshl_add_u32 v{V_TR}, v{t+3}, 6, v{t+5}
    v_xor_b32 v{V_TR+1}, 64, v{V_TR}
    s_lshl_b32 s0, s{S_WAVE}, 10
    s_add_u32 s0, s0, {L_MISC}
    v_add_u32 v{V3_TR}, s0, v{t+6}
    v_add_u32 v{V3_SW}, s0, v{V_L16}
    v_add_u32 v{V3_HB}, 65536, v{V_L16}
    """)
    g(f"""
    v_lshrrev_b32 v{t+2}, 3, v{l}
    v_lshlrev_b32 v{t+2}, 10, v{t+2}
    v_bfe_u32 v{t+3}, v{l}, 4, 1
    v_lshlrev_b32 v{t+3}, 1, v{t+3}
    v_and_b32 v{t+4}, 7, v{l}
    v_xor_b32 v{t+3}, v{t+3}, v{t+4}
    v_lshl_add_u32 v{t+2}, v{t+3}, 4, v{t+2}
    s_lshl_b32 s0, s{S_C8}, 7
    v_add_u32 v{V_RED}, s0, v{t+2}
    v_xor_b32 v{V_RED+1}, 64, v{V_RED}
    v_lshlrev_b32 v{t+2}, 10, v{t}
    v_bfe_u32 v{t+3}, v{l}, 2, 2
    v_lshl_add_u32 v{t+2}, v{t+3}, 7, v{t+2}
    v_bfe_u32 v{t+3}, v{l}, 3, 2
    v_lshl_add_u32 v{t+2}, v{t+3}, 5, v{t+2}
    v_and_b32 v{t+3}, 3, v{l}
    v_lshl_add_u32 v{t+2}, v{t+3}, 3, v{t+2}
    v_add_u32 v{V_RED+2}, {L_WO}, v{t+2}
    s_and_b32 s0, s{S_WAVE}, 1
    s_lshl_b32 s0, s0, 8
    v_lshlrev_b32 v{t+2}, 4, v{t+1}
    v_add_u32 v{t+2}, s0, v{t+2}
    v_lshl_add_u32 v{V_GA}, v{t}, 9, v{t+2}
    v_and_b32 v{t+3}, 1, v{t}
    v_lshl_add_u32 v{t+2}, v{t+3}, 10, v{t+2}
    v_lshrrev_b32 v{t+3}, 1, v{t}
    v_lshl_add_u32 v{V_RED+3}, v{t+3}, 9, v{t+2}
    s_lshl_b32 s0, s{S_TB}, 16
    s_lshl_b32 s1, s{S_WAVE}, 14
    s_add_u32 s0, s0, s1
    s_lshl_b32 s1, s{S_C8}, 7
    s_add_u32 s0, s0, s1
    v_lshlrev_b32 v{t+2}, 10, v{t+1}
    v_lshl_add_u32 v{t+2}, v{t}, 3, v{t+2}
    v_add_u32 v{V_XO}, s0, v{t+2}
    """)
    out = []
    for _, txt, _ in g.items:
        lines = [x.strip() for x in txt.split("\n") if x.strip() and not x.strip().startswith(";")]
        i = 0
        while i < len(lines):
            if lines[i].startswith("s_cmp"):
                out.append(("v", lines[i] + "\n" + lines[i + 1], None))
                i += 2
            else:
                out.append(("v", lines[i], None))
                i += 1
    return out


def touch(srd, nlines, pre, va="v2", off=0):
    o = f" offset:{off}" if off else ""
    return ("vm", f"""{pre}
    s_mov_b64 exec, {hex((1 << nlines) - 1)}
    buffer_load_dword v3, {va}, {sr(srd,4)}, s{S_T+3} offen{o}
    s_mov_b64 exec, -1""", "PF")


def touch_w13(i):
    pre = f"""s_and_b32 s{S_T+3}, s{S_XCD}, 3
    s_lshl_b32 s{S_T+3}, s{S_T+3}, 1
    s_lshr_b32 s{S_T+2}, s{S_XCD}, 2
    s_add_u32 s{S_T+3}, s{S_T+3}, s{S_T+2}
    s_lshl_b32 s{S_T+3}, s{S_T+3}, 7
    s_add_u32 s{S_T+3}, s{S_T+3}, s{S_IDXW}
    s_mul_i32 s{S_T+3}, s{S_T+3}, 896"""
    return touch(S_W1 if i % 2 == 0 else S_W3, 7, pre)


def touch_wo(j):
    pre = f"""s_add_u32 s{S_T+3}, s{S_XCD}, {j}
    s_and_b32 s{S_T+3}, s{S_T+3}, 1
    s_lshl_b32 s{S_T+3}, s{S_T+3}, 18
    s_lshl_b32 s{S_T+2}, s{S_IDXW}, 11
    s_add_u32 s{S_T+3}, s{S_T+3}, s{S_T+2}"""
    return touch(S_WO, 16, pre)


def touch_res3(g, srd, nlines):
    t = g.T + 7
    return touch(srd, nlines, f"v_lshlrev_b32 v{t}, 10, v{V_L}\ns_mul_i32 s{S_T+3}, s{S_IDXW}, {nlines*1024}", f"v{t}", 384)


def p1_dma_x(q):
    slot = q % 3
    out = []
    rowoff = [0, 0, 32 * 1024, 1024, 33 * 1024]
    for i in range(5):
        pre = f"s_add_u32 m0, s{S_LB}, {L_X + slot*20480 + i*4096}\n"
        if i == 0:
            pre += f"s_mov_b64 exec, s[{S_EXM}:{S_EXM+1}]\n"
            ins = pre + f"buffer_load_dwordx4 v{V_XD}, {sr(S_X,4)}, s{S_XOFF+q} offen{NT.get('x','')} lds\ns_mov_b64 exec, -1"
        else:
            pre += f"s_add_u32 s{S_T+1}, s{S_XOFF+q}, {rowoff[i]}\n"
            ins = pre + f"buffer_load_dwordx4 v{V_XD+1}, {sr(S_X,4)}, s{S_T+1} offen{NT.get('x','')} lds"
        out.append(("vm", ins, f"X{q}"))
    return out


def p1_dma_w(s):
    slot = s % 4
    q = s // 2
    out = []
    for hi in range(2):
        if s & 1:
            pre = f"s_sub_u32 s{S_T}, {64*3072 + hi*32*3072}, s{S_SW}\n"
        else:
            pre = f"s_add_u32 s{S_T}, {hi*32*3072}, s{S_SW}\n"
        pre += f"s_add_u32 m0, s{S_LB+1}, {L_W + slot*24576 + hi*4*3072}\n"
        pre += f"s_add_u32 s{S_T}, s{S_T}, s{S_WOFF+q}\n"
        for p in range(3):
            out.append(("vm", (pre if p == 0 else "") + f"buffer_load_dwordx4 v{V_WD}, {sr(S_WQKV,4)}, s{S_T} offen offset:{p*1024}{NT.get('w','')} lds", f"W{s}"))
    return out


def p1_read_frags(n):
    s = n // 2
    kk = n % 2
    buf = n & 1
    q = n // 4
    ks = n % 4
    slot = s % 4
    wa = V_WR + (slot // 2)
    ins = []
    for p in range(3):
        for half in range(2):
            d = V_AF + buf * 12 + p * 4 + half * 2
            off = (slot % 2) * 24576 + kk * 12288 + p * 1024 + half * 512
            ins.append(f"ds_read_b64_tr_b16 {vr(d,2)}, v{wa} offset:{off}")
    for t in range(5):
        d = V_BF + buf * 20 + t * 4
        ins.append(f"ds_read_b128 {vr(d,4)}, v{V_XR+ks} offset:{L_X + (q%3)*20480 + t*4096}")
    return ins


def acc1(p, t):
    return V_ACC + (p * 5 + t) * 4


def p1_mfmas(n):
    buf = n & 1
    ins = []
    for t in range(5):
        for p in range(3):
            a = acc1(p, t)
            c = "0" if n == 0 else vr(a, 4)
            w = vr(V_AF + buf * 12 + p * 4, 4)
            x = vr(V_BF + buf * 20 + t * 4, 4)
            if p == 2:
                w, x = x, w
            ins.append(f"v_mfma_f32_16x16x32_bf16 {vr(a,4)}, {w}, {x}, {c}")
    return ins


def poll_started_issue(g):
    t = g.T
    g(f"s_add_u32 s{S_T+4}, s{S_FLB}, {7*4096}")
    g.vm(f"buffer_load_dwordx2 {vr(t,2)}, v{V_S1A}, {sr(S_WS,4)}, s{S_T+4} offen sc1", "POLL0")


def poll_started_check(g):
    t = g.T
    lp = g.lab("pst")
    g.vwait("POLL0")
    g(f"""
    v_cmp_ne_u32 vcc, s{S_NONCE}, v{t}
    s_mov_b32 s{S_T+6}, 0
    s_cbranch_vccnz {lp}
    {lp}_ok:
    v_readfirstlane_b32 s{S_T+4}, v{t+1}
    s_lshl_b32 s{S_T+5}, s{S_KH}, 10
    s_add_u32 s{S_T+5}, s{S_T+5}, {WS_S1}
    v_cmp_ne_u32 vcc, s{S_T+4}, v{t+1}
    s_nop 0
    s_cmp_eq_u64 vcc, 0
    s_cselect_b32 s{S_FAST}, {0 if g.opts.get('slow') else 1}, 0
    """)
    g.cold.append(f"""{lp}:
    buffer_load_dwordx2 {vr(t,2)}, v{V_S1A}, {sr(S_WS,4)}, s{S_T+4} offen sc1
    s_add_u32 s{S_T+6}, s{S_T+6}, 1
    s_cmp_gt_u32 s{S_T+6}, {SPIN_MAX}
    s_waitcnt vmcnt(0)
    s_cbranch_scc1 {lp}_ok
    v_cmp_ne_u32 vcc, s{S_NONCE}, v{t}
    s_cbranch_vccnz {lp}
    s_branch {lp}_ok""")


def nm_dma_items():
    return [("vm", f"""s_lshl_b32 s{S_T+4}, s{S_WAVE}, 10
    s_add_u32 m0, s{S_T+4}, {L_MISC}
    s_add_u32 s{S_T+4}, s{S_T+4}, {L_MISC}
    buffer_load_dwordx4 v{V_L16}, {sr(S_WS,4)}, s{S_T+5} offen sc1 lds
    v_add_u32 v{V_S1A}, s{S_T+4}, v{V_S1A}
    v_add_u32 v{V_S1A+1}, s{S_T+4}, v{V_S1A+1}""", "NM")]


def nm_read_items(g):
    out = [("fn", lambda: g.vwait("NM"), None)]
    for tt in range(5):
        out.append(("ds", f"ds_read_b64 {vr(V_NM+2*tt,2)}, v{V_S1A} offset:{tt*128}", "NMR"))
    for tt in range(5):
        for h in range(2):
            out.append(("ds", f"ds_read_b128 {vr(V_NM2+8*tt+4*h,4)}, v{V_S1A+1} offset:{tt*128+16*h}", "NMR"))
    return out


def wo_dma_items():
    out = []
    for i in range(16):
        pre = ""
        if i == 0:
            pre = f"""s_lshl_b32 s{S_LB}, s{S_WAVE}, 14
            s_add_u32 s{S_LB}, s{S_LB}, {L_WO}
            s_lshl_b32 s{S_LB+1}, s{S_WAVE}, 17
            """
        out.append(("vm", pre + f"""s_add_u32 m0, s{S_LB}, {i*1024}
        s_add_u32 s{S_T+1}, s{S_LB+1}, {i*8192}
        buffer_load_dwordx4 v{V_RED+(i&1)}, {sr(S_WO,4)}, s{S_T+1} offen lds""", "WO"))
    return out


def wo_raw_items():
    out = []
    for i in range(16):
        out.append(("vm", f"""s_lshl_b32 s{S_T+1}, s{S_WAVE}, 17
        s_add_u32 s{S_T+1}, s{S_T+1}, {i*8192}
        buffer_load_dwordx4 {ar(192+4*i,4)}, v{V_RED+(i&1)}, {sr(S_WO,4)}, s{S_T+1} offen""", f"WOR{i}"))
    return out


def wo_write_items(g):
    t = g.T + 5
    out = [("v", f"""s_lshl_b32 s{S_T+1}, s{S_WAVE}, 14
    s_add_u32 s{S_T+1}, s{S_T+1}, {L_WO}
    v_add_u32 v{t}, s{S_T+1}, v{V_L16}""", None)]
    for i in range(16):
        out.append(("fn", lambda i=i: (g.vwait(f"WOR{i}"), g.ds(f"ds_write_b128 v{t}, {ar(192+4*i,4)} offset:{i*1024}", "WOW")), None))
    return out


def preread_items():
    return [("vm", f"""s_lshl_b32 s{S_T+3}, s{S_KH}, 16
            s_lshl_b32 s{S_T+2}, s{S_C8}, 12
            s_add_u32 s{S_T+3}, s{S_T+3}, s{S_T+2}
            s_lshl_b32 s{S_T+2}, s{S_WAVE}, 10
            s_add_u32 s{S_T+3}, s{S_T+3}, s{S_T+2}
            s_mov_b64 exec, 0xff
            buffer_load_dword v3, v2, {sr(S_WS,4)}, s{S_T+3} offen sc1{NT.get('pre','')}
            s_add_u32 s{S_T+3}, s{S_T+3}, 32768
            s_mov_b64 exec, -1""", "PF"),
            ("vm", f"""s_mov_b64 exec, 0xff
            buffer_load_dword v3, v2, {sr(S_WS,4)}, s{S_T+3} offen sc1{NT.get('pre','')}
            s_mov_b64 exec, -1""", "PF"),
            ("vm", f"""s_lshl_b32 s{S_T+3}, s{S_KH}, 13
            s_lshl_b32 s{S_T+2}, s{S_C8}, 8
            s_add_u32 s{S_T+3}, s{S_T+3}, s{S_T+2}
            s_lshl_b32 s{S_T+2}, s{S_WAVE}, 11
            s_add_u32 s{S_T+3}, s{S_T+3}, s{S_T+2}
            s_add_u32 s{S_T+3}, s{S_T+3}, {WS_ST}
            s_mov_b64 exec, 0x3
            buffer_load_dword v3, v2, {sr(S_WS,4)}, s{S_T+3} offen sc1{NT.get('pre','')}
            s_mov_b64 exec, -1""", "PF"),
            ("vm", f"""s_lshl_b32 s{S_T+2}, s{S_WAVE}, 12
            s_add_u32 s{S_T+3}, s{S_FLB}, s{S_T+2}
            s_mov_b64 exec, 3
            buffer_load_dword v3, v2, {sr(S_WS,4)}, s{S_T+3} offen sc1{NT.get('pre','')}
            s_add_u32 s{S_T+3}, s{S_T+3}, 16384
            s_mov_b64 exec, -1""", "PF"),
            ("vm", f"""s_cmp_eq_u32 s{S_WAVE}, 3
            s_cselect_b32 s{S_T+2}, 4096, 0
            s_add_u32 s{S_T+3}, s{S_T+3}, s{S_T+2}
            s_mov_b64 exec, 3
            buffer_load_dword v3, v2, {sr(S_WS,4)}, s{S_T+3} offen sc1{NT.get('pre','')}
            s_mov_b64 exec, -1""", "PF")]


def xres_items():
    return [("vm", f"buffer_load_dwordx2 {vr(V_XRES+2*a,2)}, v{V_XO}, {sr(S_X,4)}, 0 offen offset:{32*a}", "XR") for a in range(4)]


def p1_gemm(g):
    NSTART = g.opts.get('nstart', 3)
    stream = p1_dma_w(2) + p1_dma_x(1) + p1_dma_w(3) + p1_dma_x(2) + p1_dma_w(4) + p1_dma_w(5) + p1_dma_x(3) + p1_dma_w(6) + p1_dma_w(7)
    if g.opts.get("woraw", 0):
        stream = stream + wo_raw_items()
    earliest = {"W4": 1, "W5": 3, "X3": 3, "W6": 5, "W7": 7}
    span = g.opts.get("p1span", 128)
    dpos = {}
    for i, it in enumerate(stream):
        fast = g.opts.get("p1fast", 11)
        pos = i if i < fast else fast + (i - fast) * (span - fast) // (len(stream) - fast)
        pos = max(pos, 15 * earliest.get(it[2], 0))
        dpos.setdefault(pos // 15, []).append((pos % 15, it))
    nlast = max(dpos)
    g.vwait("X0", "W0")
    g.lwait_all()
    g("s_barrier")
    g.stamp("B0")
    for x in p1_read_frags(0):
        g.ds(x, "F0")
    for n in range(16):
        s = n // 2
        mf = p1_mfmas(n)
        if n == g.opts.get("nstat", 1):
            p1_stats_compute(g)
            nonce_poll_issue(g)
        g.lwait(f"F{n}")
        if n % 2 == 1 and n < 15:
            need = [f"W{s+1}"]
            if (s + 1) % 2 == 0:
                need.append(f"X{(s+1)//2}")
            if n == NSTART:
                nonce_check(g)
                need.append("S1ST")
            g.vwait(*need)
            g("s_barrier")
            g.stamp(f"B{s+1}")
            if n == NSTART:
                p1_started(g)
        slots = {}
        if n < 15:
            spread(slots, [("ds", x, f"F{n+1}") for x in p1_read_frags(n + 1)], 0, 11)
        for pos, it in dpos.get(n, []):
            slots.setdefault(pos, []).append(it)
        if n == 6 and not g.opts.get("two", 2):
            slots.setdefault(14, []).append(touch_res3(g, S_WO, 4))
        t0, tn = g.opts.get("t13s", 2), g.opts.get("t13n", 0)
        if t0 <= n < t0 + tn:
            slots.setdefault(12, []).append(touch_w13(n - t0))
        kb = g.opts.get("kbatch", 9)
        assert kb > nlast or g.opts.get("woraw", 0)
        if g.opts.get("woraw", 0) and 12 <= n <= 15:
            ww = wo_write_items(g)
            k0 = [0, 4, 8, 12, 17]
            spread(slots, ww[k0[n-12]:k0[n-11]], 2, 15)
        if n == kb - 2:
            slots.setdefault(1, []).append(("fn", lambda: poll_started_issue(g), None))
        if n == kb:
            slots.setdefault(0, []).append(("fn", lambda: poll_started_check(g), None))
            slots.setdefault(0, []).extend(nm_dma_items())
            spread(slots, xres_items(), 1, 8)
        if n == g.opts.get("kpre", kb):
            slots.setdefault(14, []).extend(preread_items()[(2 if g.opts.get("osc1", 0) else 0):])
        if n == g.opts.get("twok", 10) and g.opts.get("two", 2):
            spread(slots, [touch_wo(i) for i in range(2)], 3, 9)
        if n == g.opts.get("t13k", 10) and g.opts.get("t13e", 2):
            slots.setdefault(14, []).extend([touch_w13(i) for i in range(g.opts.get("t13e", 2))])
        if n == 15:
            spread(slots, nm_read_items(g), 0, 12)
        if n == 10:
            slots.setdefault(13, []).append(("v", f"""s_and_b32 s{S_KO}, s{S_XCD}, 3
            s_mul_i32 s{S_KO}, s{S_KO}, {4*16*3584}
            s_mul_i32 s{S_SG}, s{S_WAVE}, 6144
            s_add_u32 s{S_SG}, s{S_SG}, 20480
            s_mul_i32 s{S_SG+1}, s{S_WAVE}, 12288
            s_add_u32 s{S_SG+1}, s{S_SG+1}, 110592
            s_lshl_b32 s{S_SG+2}, s{S_WAVE}, 12""", None))
        if g.opts.get("tailbeg", 15) <= n <= g.opts.get("tailend", 15):
            spread(slots, [("fn", lambda: g.tick(), None)] * g.opts.get("tailrate", 2), 1, 13)
        sched(g, mf, slots)
    g.stamp("p1gemm")


def p1_attention(g):
    M = V_MK
    CS = 4
    QP = 96
    KP = 104
    VP = 114
    S = 128
    g("s_nop 4")
    for p in range(2):
        for r in range(4):
            g(f"v_mov_b32_dpp v{CS+p*4+r}, v{acc1(p,0)+r} row_newbcast:0 row_mask:0xf bank_mask:0xf")
    g(f"""
    v_mov_b32 v{CS+8}, v{acc1(2,0)}
    v_mov_b32 v{CS+9}, v{acc1(2,0)}
    s_mov_b32 s{S_C}, {f2h(0.25 * 1.4426950408889634)}
    s_nop 0
    v_permlane16_swap_b32 v{CS+8}, v{CS+9}
    s_nop 0
    v_mov_b32 v{CS+9}, v{CS+8}
    s_nop 1
    v_permlane32_swap_b32 v{CS+8}, v{CS+9}
    """)
    g.lwait("NMR")
    g.stamp("nm")

    def qk_fix(p, tt, dst):
        a = acc1(p, tt)
        nm = V_NM + 2 * tt
        return [[f"v_pk_fma_f32 {vr(a+2*h,2)}, {vr(CS+p*4+2*h,2)}, {vr(nm,2)}, {vr(a+2*h,2)} op_sel:[0,0,0] op_sel_hi:[1,0,1]" for h in range(2)],
                [f"v_pk_mul_f32 {vr(a+2*h,2)}, {vr(a+2*h,2)}, {vr(nm,2)} op_sel:[0,1] op_sel_hi:[1,1]" for h in range(2)],
                [f"v_cvt_pk_bf16_f32 v{dst+h}, v{a+2*h}, v{a+2*h+1}" for h in range(2)]]

    def v_fix(tt, dst):
        a = acc1(2, tt)
        nm = V_NM2 + 8 * tt
        return [[f"v_fmac_f32 v{a+r}, v{nm+2*r}, v{CS+8}" for r in range(4)],
                [f"v_mul_f32 v{a+r}, v{nm+2*r+1}, v{a+r}" for r in range(4)],
                [f"v_cvt_pk_bf16_f32 v{dst+h}, v{a+2*h}, v{a+2*h+1}" for h in range(2)]]

    def pipe(jobs, after=None):
        N = len(jobs)
        for i in range(N + 2):
            for st in range(3):
                j = i - st
                if 0 <= j < N:
                    for x in jobs[j][st]:
                        g(x)
            if i % g.opts.get("attick", 1) == 1 % g.opts.get("attick", 1):
                g.tick()
            if after and i in after:
                after[i]()

    jobs = [qk_fix(1, 0, KP), qk_fix(1, 1, KP + 2), qk_fix(0, 1, QP), qk_fix(1, 2, KP + 4), qk_fix(0, 2, QP + 2),
            qk_fix(1, 3, KP + 6), qk_fix(0, 3, QP + 4), qk_fix(1, 4, KP + 8), qk_fix(0, 4, QP + 6)]
    pipe(jobs)
    g("s_nop 1")
    prev = {1: (0, M + 8), 2: (1, M + 4), 3: (0, M + 12), 4: (3, M + 4)}
    for t in range(1, 5):
        pt, pm = prev[t]
        d = S + 8 * (t - 1)
        g(f"v_mfma_f32_16x16x16_bf16 {vr(d,4)}, {vr(KP+2*pt,2)}, {vr(QP+2*(t-1),2)}, {vr(pm,4)}")
        g(f"v_mfma_f32_16x16x16_bf16 {vr(d+4,4)}, {vr(KP+2*t,2)}, {vr(QP+2*(t-1),2)}, {vr(M,4)}")
    vdst = {0: VP, 1: VP + 2, 2: VP + 4, 3: VP + 8, 4: VP + 10}
    pipe([v_fix(tt, vdst[tt]) for tt in range(5)])
    g(f"v_mov_b32 v{VP+6}, v{VP}\nv_mov_b32 v{VP+7}, v{VP+1}")
    g.stamp("qk")
    g(f"""
    v_mov_b32 v{V2_AD}, v{V_RED+2}
    v_xor_b32 v{V2_AD+1}, 32, v{V_RED+2}
    v_xor_b32 v{V2_AD+2}, 64, v{V_RED+2}
    v_xor_b32 v{V2_AD+3}, 96, v{V_RED+2}
    """)
    pre = []
    if g.opts.get("earlyA", 0):
        assert not any(x[2] == "WO" for x in g.bg)
        g.vwait("WO")
        g("s_barrier")
        for ks in range(8):
            pre += p2_a_items(ks)
    g0 = g

    class GI:
        def __call__(self, s):
            for ln in s.split("\n"):
                if ln.strip():
                    g0(ln)
                    if pre and ln.strip().startswith("v_") and not ln.strip().startswith("v_mfma"):
                        emit_items(g0, [pre.pop(0)])

        def __getattr__(self, k):
            return getattr(g0, k)
    g = GI()
    X = 36
    for t in range(4):
        d = S + 8 * t
        for r in range(4):
            g(f"v_max_f32 v{d+r}, v{d+r}, v{d+4+r}")
    for t in range(4):
        d = S + 8 * t
        g(f"v_max3_f32 v{X+t}, v{d}, v{d+1}, v{d+2}")
    for t in range(4):
        d = S + 8 * t
        g(f"v_max_f32 v{X+t}, v{X+t}, v{d+3}")
    for op in ("v_permlane16_swap_b32", "v_permlane32_swap_b32"):
        for t in range(4):
            g(f"v_mov_b32 v{X+4+t}, v{X+t}")
        g.tick()
        g("s_nop 0")
        for t in range(4):
            g(f"{op} v{X+t}, v{X+4+t}")
        for t in range(4):
            g(f"v_max_f32 v{X+t}, v{X+t}, v{X+4+t}")
    for t in range(4):
        g(f"v_mul_f32 v{X+t}, {f2h(-0.25 * 1.4426950408889634)}, v{X+t}")
    P = 44
    O = 76
    va = {0: VP, 1: VP + 2, 2: VP + 6, 3: VP + 8}
    for t in range(4):
        d = S + 8 * t
        for r in range(4):
            g(f"v_fma_f32 v{d+r}, v{d+r}, s{S_C}, v{X+t}")
    for t in range(5):
        if t < 4:
            d = S + 8 * t
            for r in range(4):
                g(f"v_exp_f32 v{d+r}, v{d+r}")
        if t >= 1:
            d = S + 8 * (t - 1)
            p = P + 8 * (t - 1)
            if t == 4:
                g("s_nop 0")
            g(f"""
            v_cvt_pk_bf16_f32 v{p}, v{d}, v{d+1}
            v_cvt_pk_bf16_f32 v{p+1}, v{d+2}, v{d+3}
            v_and_b32 v{p+2}, v{M+18}, v{p}
            v_and_b32 v{p+3}, v{M+19}, v{p+1}
            v_and_b32 v{p+4}, v{M+16}, v{p}
            v_and_b32 v{p+5}, v{M+17}, v{p+1}
            """)
        g.tick()
        if t >= 2:
            tt = t - 2
            g(f"v_mfma_f32_16x16x16_bf16 {vr(S+8*tt+4,4)}, {vr(V_ONE2,2)}, {vr(P+8*tt,2)}, 0")
            g(f"v_mfma_f32_16x16x32_bf16 {vr(O+4*tt,4)}, {vr(va[tt],4)}, {vr(P+8*tt+2,4)}, 0")
    g("s_nop 0")
    tt = 3
    g(f"v_mfma_f32_16x16x16_bf16 {vr(S+8*tt+4,4)}, {vr(V_ONE2,2)}, {vr(P+8*tt,2)}, 0")
    g(f"v_mfma_f32_16x16x32_bf16 {vr(O+4*tt,4)}, {vr(va[tt],4)}, {vr(P+8*tt+2,4)}, 0")
    g.stamp("sm")
    OP = 96
    pos = {0: OP, 2: OP + 2, 1: OP + 4, 3: OP + 6}
    for tt in (0, 1):
        g(f"v_rcp_f32 v{S+8*tt+4}, v{S+8*tt+4}")
    for tt in (0, 1):
        for h in range(2):
            g(f"v_pk_mul_f32 {vr(O+4*tt+2*h,2)}, {vr(O+4*tt+2*h,2)}, {vr(S+8*tt+4,2)} op_sel:[0,0] op_sel_hi:[1,0]")
    g(f"v_rcp_f32 v{S+8*2+4}, v{S+8*2+4}")
    for tt in (0, 1):
        for h in range(2):
            g(f"v_cvt_pk_bf16_f32 v{pos[tt]+h}, v{O+4*tt+2*h}, v{O+4*tt+2*h+1}")
    g(f"v_rcp_f32 v{S+8*3+4}, v{S+8*3+4}")
    for tt in (2, 3):
        for h in range(2):
            g(f"v_pk_mul_f32 {vr(O+4*tt+2*h,2)}, {vr(O+4*tt+2*h,2)}, {vr(S+8*tt+4,2)} op_sel:[0,0] op_sel_hi:[1,0]")
    for tt in (2, 3):
        for h in range(2):
            g(f"v_cvt_pk_bf16_f32 v{pos[tt]+h}, v{O+4*tt+2*h}, v{O+4*tt+2*h+1}")
    g(f"""
    s_mov_b32 s{S_T}, 32768
    v_permlane16_swap_b32 v{OP}, v{OP+2}
    v_permlane16_swap_b32 v{OP+1}, v{OP+3}
    v_permlane16_swap_b32 v{OP+4}, v{OP+6}
    v_permlane16_swap_b32 v{OP+5}, v{OP+7}
    """)
    if g.opts.get("osc1", 0):
        g.vm(f"buffer_store_dwordx4 {vr(OP,4)}, v{V_OS}, {sr(S_WS,4)}, 0 offen sc1", "OST")
        g.vm(f"buffer_store_dwordx4 {vr(OP+4,4)}, v{V_OS}, {sr(S_WS,4)}, s{S_T} offen sc1", "OST")
    else:
        g.store([f"buffer_store_dwordx4 {vr(OP,4)}, v{V_OS}, {sr(S_WS,4)}, 0 offen",
                 f"buffer_store_dwordx4 {vr(OP+4,4)}, v{V_OS}, {sr(S_WS,4)}, s{S_T} offen"], "OST")


def signal(g, phase, tags):
    t = g.T
    g(f"""
    v_mov_b32 v{t}, {phase*4096}
    v_mov_b32 v{t+1}, s{S_NONCE}
    """)
    g.vwait(*tags)
    g("s_mov_b64 exec, 1")
    g.store([f"buffer_store_dword v{t+1}, v{t}, {sr(S_WS,4)}, s{S_FLO} offen"], "FLAG")
    g("s_mov_b64 exec, -1")


def poll_w0(g, phase, mask, wave=0):
    t = g.T
    lp = g.lab("pw")
    g(f"""
    s_cmp_lg_u32 s{S_WAVE}, {wave}
    s_cbranch_scc1 {lp}_ok
    s_mov_b32 s{S_T+6}, 0
    s_add_u32 s{S_T+2}, s{S_FLB}, {phase*4096}
    {lp}:
    buffer_load_dword v{t+2}, v{V_L4}, {sr(S_WS,4)}, s{S_T+2} offen sc1
    s_add_u32 s{S_T+6}, s{S_T+6}, 1
    s_cmp_gt_u32 s{S_T+6}, {SPIN_MAX}
    s_waitcnt vmcnt(0)
    s_cbranch_scc1 {lp}_ok
    v_cmp_ne_u32 vcc, s{S_NONCE}, v{t+2}
    s_and_b64 vcc, vcc, s[{mask}:{mask+1}]
    s_cbranch_vccnz {lp}
    {lp}_ok:
    """)


def poll_issue(g, phase, tag, r=0):
    t = g.T + r
    g(f"s_add_u32 s{S_T+2}, s{S_FLB}, {phase*4096}")
    g.vm(f"buffer_load_dword v{t+2}, v{V_L4}, {sr(S_WS,4)}, s{S_T+2} offen sc1", tag)


def poll_check(g, phase, tag, mask, r=0, slp=False, inline=False):
    t = g.T + r
    lp = g.lab("poll")
    g.vwait(tag)
    if inline:
        g(f"""
        s_mov_b32 s{S_T+6}, 0
        s_add_u32 s{S_T+2}, s{S_FLB}, {phase*4096}
        {lp}:
        v_cmp_ne_u32 vcc, s{S_NONCE}, v{t+2}
        s_add_u32 s{S_T+6}, s{S_T+6}, 1
        s_and_b64 vcc, vcc, s[{mask}:{mask+1}]
        s_cbranch_vccz {lp}_ok
        {"s_sleep %d" % g.opts.get("psl", 0) if g.opts.get("psl", 0) else ""}
        buffer_load_dword v{t+2}, v{V_L4}, {sr(S_WS,4)}, s{S_T+2} offen sc1
        s_cmp_gt_u32 s{S_T+6}, {SPIN_MAX}
        s_waitcnt vmcnt(0)
        s_cbranch_scc0 {lp}
        {lp}_ok:
        """)
        return
    g(f"""
    v_cmp_ne_u32 vcc, s{S_NONCE}, v{t+2}
    s_mov_b32 s{S_T+6}, 0
    s_and_b64 vcc, vcc, s[{mask}:{mask+1}]
    s_cbranch_vccnz {lp}
    {lp}_ok:
    """)
    g.cold.append(f"""{lp}:
    {"s_sleep 4" if slp else ""}
    s_add_u32 s{S_T+2}, s{S_FLB}, {phase*4096}
    s_add_u32 s{S_T+6}, s{S_T+6}, 1
    buffer_load_dword v{t+2}, v{V_L4}, {sr(S_WS,4)}, s{S_T+2} offen sc1
    s_cmp_gt_u32 s{S_T+6}, {SPIN_MAX}
    s_waitcnt vmcnt(0)
    s_cbranch_scc1 {lp}_ok
    v_cmp_ne_u32 vcc, s{S_NONCE}, v{t+2}
    s_and_b64 vcc, vcc, s[{mask}:{mask+1}]
    s_cbranch_vccnz {lp}
    s_branch {lp}_ok""")


def ko_adv(u):
    lo = (u // 16) * 256 * 3584
    hi = lo + 256 * 3584
    t = f"""s_add_u32 s{S_KO}, s{S_KO}, {16*3584}
    s_cmp_lt_u32 s{S_KO}, {hi}
    s_cselect_b32 s{S_KO}, s{S_KO}, {lo}"""
    if u == 15:
        t += f"\ns_add_u32 s{S_KO}, s{S_KO}, {256*3584}"
    return t


def w13_load_items(u):
    return [("vm", f"buffer_load_dwordx4 {ar(8*u,4)}, v{V3_WD}, {sr(S_W1,4)}, s{S_KO} offen", f"W13_{u}"),
            ("vm", f"""buffer_load_dwordx4 {ar(8*u+4,4)}, v{V3_WD}, {sr(S_W3,4)}, s{S_KO} offen
            {ko_adv(u)}""", f"W13_{u}")]


S_SG = 62
NSLOT = 11


def slot_addr(k):
    if k < 3:
        return S_SG, k * 2048, 0
    if k < 9:
        return S_SG + 1, (k - 3) * 2048, 1
    return S_SG + 2, (k - 9) * 2048, 2


def w13_dma_items(u):
    sb, off, _ = slot_addr(u % NSLOT)
    return [("vm", f"""s_add_u32 m0, s{sb}, {off}
            s_nop 0
            buffer_load_dwordx4 v{V3_WD}, {sr(S_W1,4)}, s{S_KO} offen lds""", f"W13_{u}"),
            ("vm", f"""s_add_u32 m0, s{sb}, {off+1024}
            s_nop 0
            buffer_load_dwordx4 v{V3_WD}, {sr(S_W3,4)}, s{S_KO} offen lds
            {ko_adv(u)}""", f"W13_{u}")]


V_SGA = 24


def w13_stage_setup(g):
    g(f"""
    s_lshl_b32 s{S_T}, s{S_WAVE}, 10
    s_add_u32 s{S_T}, s{S_T}, {L_MISC}
    v_subrev_u32 v{V_SGA+2}, s{S_T}, v{V3_TR}
    v_add_u32 v{V_SGA}, s{S_SG}, v{V_SGA+2}
    v_add_u32 v{V_SGA+1}, s{S_SG+1}, v{V_SGA+2}
    v_add_u32 v{V_SGA+2}, s{S_SG+2}, v{V_SGA+2}
    """)


def w13_pick_items(g, u):
    _, off, r = slot_addr(u % NSLOT)
    out = [("fn", lambda: g.vwait(f"W13_{u}"), None)]
    for m in range(2):
        for half in range(2):
            out.append(("ds", f"ds_read_b64_tr_b16 {ar(8*u+4*m+2*half,2)}, v{V_SGA+r} offset:{off + m*1024 + half*256}", f"A3_{u}"))
    return out


def w13_xpose_items(g, u):
    out = [("fn", lambda: g.vwait(f"W13_{u}"), None)]
    for m in range(2):
        out.append(("ds", f"ds_write_b128 v{V3_SW}, {ar(8*u+4*m,4)}", f"A3_{u}"))
        for half in range(2):
            out.append(("ds", f"ds_read_b64_tr_b16 {ar(8*u+4*m+2*half,2)}, v{V3_TR} offset:{half*256}", f"A3_{u}"))
    return out


V2_B = 32
V2_A = 96
V2_ACC = 240
V2_AD = 28
L_HKX = 159744 - 8192


def unpack_bf16(g, dst, src, n=8):
    for d in range(n):
        g(f"v_lshlrev_b32 v{dst+2*d}, 16, v{src+d}")
        g(f"v_and_b32 v{dst+2*d+1}, 0xffff0000, v{src+d}")


def p2_areg(ks, a, n=4, off=0):
    if ks < 8:
        return ar(128 + (ks * 4 + a) * 4 + off, n)
    return vr(V2_A + ((ks - 8) * 4 + a) * 4 + off, n)


def p2_a_items(ks, ad=None):
    ad = V2_AD if ad is None else ad
    out = []
    for a in range(4):
        for half in range(2):
            out.append(("ds", f"ds_read_b64_tr_b16 {p2_areg(ks, a, 2, 2*half)}, v{ad+a} offset:{ks*4096 + half*512}", f"A2_{ks}"))
    return out


def p2_pre(g):
    A = S_A
    g(f"""
    s_cmp_lt_u32 s{S_M}, 8
    s_cselect_b32 s6, -1, 0
    s_cselect_b32 s7, 0, -1
    s_lshl_b32 s{S_T}, s{S_KH}, 16
    s_lshr_b32 s{S_T+1}, s{S_WAVE}, 1
    s_lshl_b32 s{S_T+1}, s{S_T+1}, 15
    s_add_u32 s{S_T}, s{S_T}, s{S_T+1}
    s_add_u32 s{A}, s{S_T}, {WS_O}
    s_lshl_b32 s{S_T+1}, s{S_C8}, 12
    s_add_u32 s{S_A2}, s{A}, s{S_T+1}
    s_lshl_b32 s{S_A2+1}, s{S_KH}, 13
    s_lshl_b32 s{S_T+1}, s{S_WAVE}, 11
    s_add_u32 s{S_A2+1}, s{S_A2+1}, s{S_T+1}
    s_add_u32 s{S_A2+1}, s{S_A2+1}, {WS_ST}
    s_lshl_b32 s{S_T+1}, s{S_C8}, 8
    s_add_u32 s{S_A2+2}, s{S_A2+1}, s{S_T+1}
    """)
    g.vwait("XR")
    for d in range(7, -1, -1):
        g(f"v_and_b32 v{V2_ACC+2*d+1}, 0xffff0000, v{V_XRES+d}")
        g(f"v_lshlrev_b32 v{V2_ACC+2*d}, 16, v{V_XRES+d}")


def p2_main(g):
    t = g.T
    A = S_A
    def oload(ks):
        if ks % 2 == 0 and ks:
            g(f"s_add_u32 s{A}, s{A}, 4096")
        g.vm(f"buffer_load_dwordx4 {vr(V2_B+4*ks,4)}, v{V_GA}, {sr(S_WS,4)}, s{A} offen offset:{(ks%2)*2048} sc1", f"B2_{ks}")
    PFO = g.opts.get("pfo", 8)
    late = g.opts.get("_late", [])
    for ks in range(PFO):
        oload(ks)
        emit_items(g, late[:4])
        late = late[4:]
    for ks in range(16):
        g.vwait(f"B2_{ks}")
        g.lwait(f"A2_{ks}")
        if ks + PFO < 16:
            oload(ks + PFO)
        for a in range(4):
            acc = V2_ACC + 4 * a
            g(f"v_mfma_f32_16x16x32_bf16 {vr(acc,4)}, {p2_areg(ks, a)}, {vr(V2_B+4*ks,4)}, {vr(acc,4)}")
            emit_items(g, late[:2])
            late = late[2:]
            assert not any(x[2] == f"A2_{ks+1}" for x in late) or a < 3
        if ks >= 16 - PFO:
            g.tick(1 if ks < 14 else 2)
    g.stamp("p2mfma")
    e = 32
    g(f"""
    v_mov_b32 v{e+2}, s{S_NONCE}
    v_mov_b32 v{e+3}, 0
    s_nop 5
    """)
    H = 40
    for d in range(8):
        g(f"v_cvt_pk_bf16_f32 v{H+d}, v{V2_ACC+2*d}, v{V2_ACC+2*d+1}")
    g(f"v_dot2_f32_bf16 v{e}, v{H}, s{S_ONES}, 0")
    g(f"v_dot2_f32_bf16 v{e+1}, v{H}, v{H}, 0")
    g(f"v_dot2_f32_bf16 v{e+4}, v{H+1}, s{S_ONES}, 0")
    g(f"v_dot2_f32_bf16 v{e+5}, v{H+1}, v{H+1}, 0")
    for d in range(2, 8):
        oo = 4 * (d & 1)
        g(f"v_dot2c_f32_bf16 v{e+oo}, s{S_ONES}, v{H+d}")
        g(f"v_dot2c_f32_bf16 v{e+oo+1}, v{H+d}, v{H+d}")

    def xred(x, y):
        for op in ("v_permlane16_swap_b32", "v_permlane32_swap_b32"):
            g(f"""
            v_mov_b32 v{y}, v{x}
            v_mov_b32 v{y+1}, v{x+1}
            s_nop 0
            {op} v{x}, v{y}
            {op} v{x+1}, v{y+1}
            v_pk_add_f32 {vr(x,2)}, {vr(x,2)}, {vr(y,2)}
            """)
    g(f"""
    v_permlane16_swap_b32 v{H}, v{H+2}
    v_permlane16_swap_b32 v{H+1}, v{H+3}
    v_permlane16_swap_b32 v{H+4}, v{H+6}
    v_pk_add_f32 {vr(e,2)}, {vr(e,2)}, {vr(e+4,2)}
    v_permlane16_swap_b32 v{H+5}, v{H+7}
    """)
    xred(e, e + 4)
    g("s_mov_b64 exec, 0xffff")
    g.store([f"buffer_store_dwordx4 {vr(e,4)}, v{V_L16}, {sr(S_WS,4)}, s{S_A2+2} offen"], "SST")
    g("s_mov_b64 exec, -1")
    g.stamp("p2stat")
    U = 48
    unpack_bf16(g, U, H)
    hk_exchange_write(g)
    p34_pre(g, 0)
    lp = g.lab("sg")
    q = 64
    g(f"""
    s_mov_b32 s{S_T+6}, 0
    {lp}:
    buffer_load_dwordx4 {vr(q,4)}, v{V_L16}, {sr(S_WS,4)}, s{S_A2+1} offen sc1
    buffer_load_dwordx4 {vr(q+4,4)}, v{V_L16}, {sr(S_WS,4)}, s{S_A2+1} offen offset:1024 sc1
    s_add_u32 s{S_T+6}, s{S_T+6}, 1
    s_cmp_gt_u32 s{S_T+6}, {SPIN_MAX}
    s_waitcnt vmcnt(0)
    s_cbranch_scc1 {lp}_x
    v_cmp_ne_u32 vcc, s{S_NONCE}, v{q+2}
    v_cmp_ne_u32 s[{S_T+3}:{S_T+4}], s{S_NONCE}, v{q+6}
    s_or_b64 vcc, vcc, s[{S_T+3}:{S_T+4}]
    s_cbranch_vccnz {lp}
    {lp}_x:
    v_pk_add_f32 {vr(q,2)}, {vr(q,2)}, {vr(q+4,2)}
    """)
    g.vq = []
    g.stamp("p2gath")
    emit_items(g, g.opts.get("_picks", []))
    xred(q, q + 2)
    g(f"""
    v_mul_f32 v{q+4}, {f2h(-1.0/512)}, v{q}
    v_mul_f32 v{q+5}, {f2h(1.0/512)}, v{q+1}
    v_fma_f32 v{q+5}, -v{q+4}, v{q+4}, v{q+5}
    v_max_f32 v{q+5}, 0, v{q+5}
    v_add_f32 v{q+5}, {f2h(1e-5)}, v{q+5}
    v_rsq_f32 v{q+5}, v{q+5}
    s_nop 0
    v_mul_f32 v{q+5}, {f2h(LOG2E)}, v{q+5}
    v_mul_f32 v{q+4}, v{q+4}, v{q+5}
    """)
    for d in range(8):
        a = U + 2 * d
        g(f"v_pk_fma_f32 {vr(a,2)}, {vr(a,2)}, {vr(q+4,2)}, {vr(q+4,2)} op_sel:[0,1,0] op_sel_hi:[1,1,0]")
    for d in range(8):
        g(f"v_cvt_pk_bf16_f32 v{q+8+d}, v{U+2*d}, v{U+2*d+1}")
    g.store([f"buffer_store_dwordx4 {vr(q+8,4)}, v{V_RED+3}, {sr(S_WS,4)}, s{S_A2} offen",
             f"buffer_store_dwordx4 {vr(q+12,4)}, v{V_RED+3}, {sr(S_WS,4)}, s{S_A2} offen offset:2048"], "HST")


def hk_exchange_write(g):
    t = g.T
    g(f"""
    s_cmp_lt_u32 s{S_WAVE}, 2
    s_mov_b32 s{S_T}, {L_MISC}
    s_cselect_b32 s{S_T}, 16384, s{S_T}
    v_add_u32 v{t+4}, s{S_T}, v{V_RED+3}
    """)
    g.ds(f"ds_write_b128 v{t+4}, {vr(40,4)}", "HKW")
    g.ds(f"ds_write_b128 v{t+4}, {vr(44,4)} offset:2048", "HKW")


def hk_exchange_read(g):
    t = g.T
    g(f"""
    s_lshl_b32 s{S_T}, s{S_WAVE}, 10
    v_add_u32 v{t+4}, s{S_T}, v{V_L16}
    """)
    g.ds(f"ds_read_b128 {vr(V_HK,4)}, v{t+4} offset:16384", "HKR")
    g.ds(f"ds_read_b128 {vr(V_HK+4,4)}, v{V3_SW}", "HKR")


V3_ACC = 32
V3_B = 160
V3_E = 192
K1 = 16
TORD = [0, 1, 2, 3]
HPH = [2, 3, 6, 8]
L_SP = 131072


S_A3 = 58


def p3_pre(g):
    A = S_A3
    g(f"""
    s_cmp_lt_u32 s{S_M}, 7
    s_cselect_b32 s{S_T+2}, 2, 0
    s_mov_b32 s{A}, 0
    s_lshl_b32 s{A+1}, s{S_WAVE}, 15
    s_xor_b32 s{S_T}, s{S_WAVE}, s{S_T+2}
    s_lshl_b32 s{S_T}, s{S_T}, 15
    s_add_u32 s{A}, s{A}, s{S_T}
    s_add_u32 s{A}, s{A}, {WS_H}
    s_and_b32 s{S_K2}, s{S_XCD}, 3
    s_lshl_b32 s{S_K2}, s{S_K2}, 12
    s_mov_b32 s{S_C}, {f2h(LOG2E*LOG2E)}
    s_mov_b32 s{A+2}, 0
    s_lshl_b32 s{S_T+1}, s{S_M}, 13
    s_add_u32 s{A+2}, s{A+2}, s{S_T+1}
    s_lshl_b32 s{S_T+1}, s{S_WAVE}, 11
    s_add_u32 s{A+2}, s{A+2}, s{S_T+1}
    s_add_u32 s{A+2}, s{A+2}, {WS_HH}
    s_mul_i32 s{S_T}, s{S_T+2}, 114688
    s_sub_u32 s0, s{A+2}, s{S_T}
    s_add_u32 s{A+2}, s{A+2}, s{S_T}
    """)


def p3_h_items(b):
    A = S_A3
    out = []
    for i in range(4):
        pre = f"s_add_u32 m0, s{A+1}, {b*4096}\n"
        post = ""
        pre += f"s_add_u32 s{A+3}, s{A}, s{S_K2}\n" if i == 0 else "s_nop 0\n"
        if i == 3:
            post = f"\ns_add_u32 s{S_K2}, s{S_K2}, 4096\ns_and_b32 s{S_K2}, s{S_K2}, 16383"
            if b == 3:
                post += f"\ns_add_u32 s{A}, s{A}, 16384"
        out.append(("vm", pre + f"buffer_load_dwordx4 v{V_L16}, {sr(S_WS,4)}, s{A+3} offen offset:{i*1024} sc1 lds" + post, f"H{b}"))
    return out


def p3_epi_sched(j):
    A = V3_ACC + 32 * j
    e = V3_E
    o = V3_E + 16
    st = [
        lambda r: f"v_exp_f32 v{e+r}, -v{A+r}",
        lambda r: f"v_mul_f32 v{A+r}, v{A+r}, v{A+16+r}",
        lambda r: f"v_fma_f32 v{e+r}, v{e+r}, s{S_C}, s{S_C}",
        lambda r: f"v_rcp_f32 v{e+r}, v{e+r}",
        lambda r: f"v_mul_f32 v{A+r}, v{A+r}, v{e+r}",
        lambda r: (f"v_cvt_pk_bf16_f32 v{o+r//2}, v{A+r-1}, v{A+r}" if r % 2 else None),
    ]
    skew = [0, 0, 1, 2, 3, 4]
    out = []
    for step in range(16 + 5):
        for si, f in enumerate(st):
            r = step - skew[si]
            if 0 <= r < 16:
                x = f(r)
                if x:
                    out.append(("v", x, None))
    return out


def p3_hh_store(g, j):
    o = V3_E + 16
    g(f"s_add_u32 s{S_T}, s{S_A3+2 if j < 2 else 0}, {j*114688}")
    g.vm(f"buffer_store_dwordx4 {vr(o,4)}, v{V_L16}, {sr(S_WS,4)}, s{S_T} offen sc1", f"HHST{j}")
    g.vm(f"buffer_store_dwordx4 {vr(o+4,4)}, v{V_L16}, {sr(S_WS,4)}, s{S_T} offen offset:1024 sc1", f"HHST{j}")


def hh_touch(g, j):
    if not g.opts.get("hht", 0) >> j & 1:
        return
    g.vwait(f"HHST{j}")
    emit_items(g, [touch(S_WS, 16, f"s_add_u32 s{S_T+3}, s{S_A3+2 if j < 2 else 0}, {j*114688}")])


V4_AD = 4
V4_B = 32
NB4 = 16
V4_ACC = 96
V4_R = 240
S_FR = 40
S_X4 = 8
S_M4 = 16


def p34_pre(g, part):
    d = V4_AD
    l = V_L
    if part == 1:
        g(f"""
        s_mov_b64 s[{S_A2+2}:{S_A2+3}], 0x7f
        s_lshl_b64 s[{S_A2+2}:{S_A2+3}], s[{S_A2+2}:{S_A2+3}], s1
        s_mov_b32 s{S_A2}, -1
        s_mov_b32 s{S_A2+1}, 0x00ffffff
        v_add_u32 v{V_RED+3}, s{S_LB}, v{V_L16}
        """)
        return
    g(f"""
    s_lshr_b32 s{S_T+2}, s{S_M}, 3              ; kh
    s_lshl_b32 s{S_T+3}, s{S_T+2}, 2
    s_add_u32 s{S_T+3}, s{S_T+3}, s{S_WAVE}     ; K eighth
    s_mul_i32 s{S_W2O}, s{S_T+3}, {224*1024}
    s_lshl_b32 s{S_LB}, s{S_WAVE}, 15
    s_lshl_b32 s{S_LB+1}, s{S_WAVE}, 13
    s_add_u32 s{S_LB+1}, s{S_LB+1}, {L_SP}
    s_mul_i32 s{S_T+1}, s{S_T+3}, {14*1024}
    s_add_u32 s{S_T+1}, s{S_T+1}, {WS_HH}
    s_mul_i32 s{S_T}, s{S_KH}, {2*114688}
    s_add_u32 s{S_X4+2}, s{S_T}, s{S_T+1}
    s_add_u32 s{S_X4+3}, s{S_X4+2}, 114688
    s_xor_b32 s{S_T+4}, s{S_KH}, 1
    s_mul_i32 s{S_T}, s{S_T+4}, {2*114688}
    s_add_u32 s{S_X4}, s{S_T}, s{S_T+1}
    s_add_u32 s{S_X4+1}, s{S_X4}, 114688
    s_mul_i32 s1, s{S_T+3}, 7
    s_xor_b32 s{S_T}, s{S_M}, 8
    s_lshl_b32 s{S_T}, s{S_T}, 2
    s_add_u32 s{S_T}, s{S_T}, s{S_WAVE}
    s_mov_b64 s[{S_M4}:{S_M4+1}], 1
    s_lshl_b64 s[{S_M4}:{S_M4+1}], s[{S_M4}:{S_M4+1}], s{S_T}
    s_lshl_b32 s{S_T}, s{S_C8}, 12
    s_lshl_b32 s{S_T+1}, s{S_WAVE}, 10
    s_add_u32 s{S_T}, s{S_T}, s{S_T+1}
    s_add_u32 s{S_T}, s{S_T}, {WS_X}
    s_lshl_b32 s{S_T+1}, s{S_T+4}, 16
    s_add_u32 s{S_M4+2}, s{S_T}, s{S_T+1}
    s_lshl_b32 s{S_T+1}, s{S_KH}, 16
    s_add_u32 s{S_M4+3}, s{S_T}, s{S_T+1}
    s_and_b32 s{S_T}, s{S_WAVE}, 1
    s_lshl_b32 s{S_T}, s{S_T}, 5
    v_xor_b32 v{d}, s{S_T}, v{V_TR}
    v_xor_b32 v{d+1}, 64, v{d}
    v_add_u32 v{d+2}, s{S_LB}, v{d}
    v_add_u32 v{d+3}, s{S_LB}, v{d+1}
    v_add_u32 v{d+4}, s{S_LB+1}, v{d}
    v_add_u32 v{d+5}, s{S_LB+1}, v{d+1}
    s_sub_u32 s{S_T}, s{S_LB+1}, s{S_SG}
    v_add_u32 v{d+6}, s{S_T}, v{V_SGA}          ; ring (w13 image)
    s_lshl_b32 s{S_T}, s{S_TB}, 16
    s_lshl_b32 s{S_T+1}, s{S_C8}, 7
    s_add_u32 s{S_T}, s{S_T}, s{S_T+1}
    s_lshl_b32 s{S_T+1}, s{S_WAVE}, 5
    s_add_u32 s{S_T}, s{S_T}, s{S_T+1}
    v_and_b32 v{d+7}, 31, v{l}
    v_lshlrev_b32 v{d+7}, 10, v{d+7}
    v_lshrrev_b32 v{d+8}, 5, v{l}
    v_lshl_add_u32 v{d+7}, v{d+8}, 4, v{d+7}
    v_add_u32 v{d+7}, s{S_T}, v{d+7}
    v_add_u32 v{d+8}, 7168, v{V_D128}           ; second half of a w2 kstep: +8192 global, offset:1024 adds the rest
    v_add_u32 v{d+9}, 32768, v{V_L16}
    s_sub_u32 s{S_T}, s{S_LB}, s{S_SG}
    v_add_u32 v{d+10}, s{S_T}, v{V_SGA}         ; own tile region (w13 image)
    s_cmp_eq_u32 s{S_WAVE}, 3
    s_cselect_b32 s{S_FR}, 2048, s{S_LB}
    s_sub_u32 s{S_T}, s{S_FR}, s{S_SG}
    v_add_u32 v{d+11}, s{S_T}, v{V_SGA}
    v_add_u32 v27, s{S_FR}, v{d}
    v_add_u32 v28, s{S_FR}, v{d+1}
    """)
    for i in range(1, 4):
        g(f"""
        s_xor_b32 s{S_T}, s{S_WAVE}, {i%4}
        s_lshl_b32 s{S_T}, s{S_T}, 15
        s_add_u32 s{S_T}, s{S_T}, {((i-1) if i < 4 else 0)*2048}
        v_add_u32 v{V_RED+i-1}, s{S_T}, v{V_L16}
        """)


def w2_dma_items(ks, sb, off):
    return [("vm", f"""s_add_u32 m0, s{sb}, {off}
            s_add_u32 s{S_T+5}, s{S_W2O}, {ks*16*1024}
            buffer_load_dwordx4 v{V_D128}, {sr(S_W2,4)}, s{S_T+5} offen lds""", f"W2_{ks}"),
            ("vm", f"buffer_load_dwordx4 v{V4_AD+8}, {sr(S_W2,4)}, s{S_T+5} offen offset:1024 lds", f"W2_{ks}")]


def w2_pick_items(g, ks, base, off):
    out = [("fn", lambda: g.vwait(f"W2_{ks}"), None)]
    for ia in range(2):
        for half in range(2):
            out.append(("ds", f"ds_read_b64_tr_b16 {ar(8*ks+4*ia+2*half,2)}, v{base+ia} offset:{off + half*512}", f"A4_{ks}"))
    return out


def w13_ring_dma(u, off, sb=S_LB + 1):
    return [("vm", f"""s_add_u32 m0, s{sb}, {off}
            s_nop 0
            buffer_load_dwordx4 v{V3_WD}, {sr(S_W1,4)}, s{S_KO} offen lds
            s_add_u32 m0, s{sb}, {off+1024}""", f"W13_{u}"),
            ("vm", f"""buffer_load_dwordx4 v{V3_WD}, {sr(S_W3,4)}, s{S_KO} offen lds
            {ko_adv(u)}""", f"W13_{u}")]


def w13_ring_pick(g, u, off, va=V4_AD + 6):
    out = [("fn", lambda: g.vwait(f"W13_{u}"), None)]
    for m in range(2):
        for half in range(2):
            out.append(("ds", f"ds_read_b64_tr_b16 {ar(8*u+4*m+2*half,2)}, v{va} offset:{off + m*1024 + half*256}", f"A3_{u}"))
    return out


W2_PARK = {}


def p3_main(g, npre):
    o = g.opts
    KA = o.get("ka", 17)
    K3 = o.get("k3", 13)
    seq = []
    for u in range(KA):
        seq += [(j, u) for j in ((0, 1, 2, 3) if u < K3 else (0, 1, 2))]
    for j in (0, 1, 2):
        seq += [(j, u) for u in range(KA, 32)]
    seq += [(3, u) for u in range(K3, 32)]
    assert len(seq) == 128
    first = {}
    lastu = {}
    done = {}
    for n, (j, u) in enumerate(seq):
        first.setdefault(u, n)
        lastu[u] = n
        done[j] = n
    PF = o.get("pf3", 5)

    def bread(n):
        j, u = seq[n]
        a = V_L16 if j < 2 else V3_HB
        return ("ds", f"ds_read_b128 {vr(V3_B+4*(n%8),4)}, v{a} offset:{(j%2)*32768 + u*1024}", f"B3_{n}")

    extra = {}

    def put(step, items, half=1):
        extra.setdefault(2 * step + half, []).extend(items)

    LAG13 = o.get("lag13", 16)
    LAG2 = o.get("lag2", 18)
    busy = set()
    bar = {b: first[4 * b] - PF for b in range(1, 8)}
    for b in range(2, 8):
        if bar[b] - bar[b - 1] < 8:
            bar[b] = bar[b - 1]
    hst = {}
    nxt = 1000
    for b in range(7, 1, -1):
        hst[b] = max(2 * (b - 2), min(bar[b] - o.get("hlead", 30), nxt - o.get("hgap", 6)))
        nxt = hst[b]
        busy.update((hst[b], hst[b] + 1))
    slots = [[0, 1000, 0, k * 2048, None] for k in range(4)]
    for b in range(2, 8):
        for k in range(2):
            slots.append([0, hst[b], 1, b * 4096 + k * 2048, None])
    for b in range(0, 6):
        all_done = max(n for n, (j, u) in enumerate(seq) if u // 4 == b)
        fb = [bar[x] for x in bar if bar[x] > all_done + 1]
        if fb:
            for k in range(2):
                slots.append([min(fb) + 1, 1000, 3, b * 4096 + k * 2048, None])
            continue
        lead_done = max(n for n, (j, u) in enumerate(seq) if j < 3 and u // 4 == b)
        fb = [bar[x] for x in bar if bar[x] > lead_done + 1]
        if fb:
            slots.append([min(fb) + 1, 1000, 2, b * 4096, None])
    SB = [S_LB + 1, S_LB, S_FR, S_LB]
    VA13 = [V4_AD + 6, V4_AD + 10, V4_AD + 11, V4_AD + 10]
    VA2 = [V4_AD + 4, V4_AD + 2, 27, V4_AD + 2]
    W2_PARK.clear()
    q13 = list(range(npre, 32))
    q2 = list(range(14))
    st = 0
    last2 = -100
    last13 = -100
    per13 = o.get("per13", 220) / 100.0
    t13 = 0.0
    while q13 or q2:
        assert st < 126, ("ring overflow", q13, q2)
        if st in busy:
            st += 1
            continue
        ok13 = q13 and st >= t13 and (q13[0] < 16 or st >= o.get('s2nd', 20))
        ok2 = q2 and st >= o.get("w2s", 64) and st >= last2 + o.get("w2d", 3)
        if ok13:
            kind, x = "w13", q13[0]
            pk = min(st + LAG13, first[x] - 2)
        elif ok2:
            kind, x = "w2", q2[0]
            pk = min(max(st + LAG2, lastu[x] + 2), 127)
            if x >= o.get("park", 4):
                pk = 500
        else:
            st += 1
            continue
        fr = [sl for sl in slots if sl[0] <= st and pk + 2 <= sl[1]]
        if not fr:
            st += 1
            continue
        sl = min(fr, key=lambda z: (z[1], z[0]))
        off = sl[3]
        pre = []
        if sl[4]:
            pre = [("fn", lambda tg=sl[4]: g.lwait(tg), None)]
        busy.add(st)
        if kind == "w13":
            q13.pop(0)
            t13 = max(t13 + per13, st + 1)
            it = w13_ring_dma(x, off, SB[sl[2]])
            if pk - st < LAG13:
                print("  short lag for unit", x, pk - st)
            assert pk > st, (x, st)
            put(pk, w13_ring_pick(g, x, off, VA13[sl[2]]))
            sl[4] = f"A3_{x}"
        else:
            q2.pop(0)
            last2 = st
            it = w2_dma_items(x, SB[sl[2]], off)
            if pk < 500:
                put(pk, w2_pick_items(g, x, VA2[sl[2]], off))
            else:
                W2_PARK[x] = (SB[sl[2]], VA2[sl[2]], off)
            sl[4] = f"A4_{x}"
        put(st, pre + it[:1], 0); put(st, it[1:], 1)
        sl[0] = pk + 2
        st += 1
    for b in range(2, 8):
        tags = [sl[4] for sl in slots if sl[2] == 1 and sl[3] // 4096 == b and sl[4]]
        pre = [("fn", lambda tags=tags: g.lwait(*tags), None)] if tags else []
        it = p3_h_items(b)
        st = hst[b]
        put(st, pre + it[0:1], 0); put(st, it[1:2], 1); put(st + 1, it[2:3], 0); put(st + 1, it[3:4], 1)
    print("p3 stream ends at step", max(busy))
    def cost(it):
        if it[0] == "fn":
            return 1
        c = 0
        for ln in it[1].split("\n"):
            ln = ln.strip()
            if ln:
                c += 2 if ln.startswith(("v_exp", "v_rcp")) else 1
        return c
    h0 = 2 * (done[0] + 1) + 4
    hend = 256
    span = (hend - h0) // 3
    stst = []
    pc_ = o.get("pol0c", 116)
    for i in range(3):
        ep = p3_epi_sched(i)
        base = max(h0 + i * span, 2 * (done[i] + 1) + 4)
        sp = h0 + (i + 1) * span - base - 1
        if o.get("pack", 1):
            used = {h: (0 if (o.get("lw2", 1) and h % 4 == 1) else 1) + sum(cost(x) for x in extra.get(h, [])) for h in range(base, base + sp)}
            for h in used:
                if h % 2 == 1 and h // 2 > pc_:
                    used[h] += 2
            cap = 5.0
            while True:
                h = base
                fill = dict(used)
                place = []
                ok = True
                for it in ep:
                    while h < base + sp and fill[h] + cost(it) > cap + 0.01:
                        h += 1
                    if h >= base + sp:
                        ok = False
                        break
                    fill[h] += cost(it)
                    place.append(h)
                if ok:
                    break
                cap += 1
            print("epilogue", i, "capacity", cap, "ends", place[-1], "of", base + sp)
            for h, it in zip(place, ep):
                extra.setdefault(h, []).append(it)
            endh = min(place[-1] + 1, base + sp)
        else:
            for k, it in enumerate(ep):
                extra.setdefault(base + k * sp // len(ep), []).append(it)
            endh = base + sp
        extra.setdefault(endh, []).append(("fn", lambda j=i: p3_hh_store(g, j), None))
        stst.append(endh)
    sd = 2 * o.get("sigd", 10)
    late = []
    for i in range(2):
        if stst[i] + sd < 256:
            extra.setdefault(stst[i] + sd, []).append(("fn", lambda i=i: (hh_touch(g, i), signal(g, HPH[i], [f"HHST{i}"])), None))
        else:
            late.append(i)
    assert not late
    nf = 0
    pc = o.get("pol0c", 116)
    if 2 * (pc - 6) >= stst[0] + sd + 2 * o.get("polgap", 3) and pc < 127:
        put(pc - 6, [("fn", lambda: poll_issue(g, HPH[0], "POLLH0"), None)])
        put(pc, [("fn", lambda: poll_check(g, HPH[0], "POLLH0", S_A2 + 2, inline=o.get("inl4", 0)), None)])
        nf = o.get("nf4", 10)
        for i in range(nf):
            stp = min(127, pc + 1 + i)
            assert i < 8 or 2 * stp > stst[1]
            put(stp, [("fn", lambda i=i: p4_load(g, i), None)], 1)
    print("early p4 loads:", nf)

    g.vwait("H0")
    g.lwait_all()
    g("s_barrier")
    g.stamp("p3start")
    for n in range(PF):
        emit_items(g, [bread(n)])
    for n, (j, u) in enumerate(seq):
        bs = [b for b in bar if bar[b] == n]
        if bs:
            g.vwait(f"H{max(bs)}")
            g("s_barrier")
        if o.get("lw2", 1) and n % 2 == 0 and n + 1 < len(seq):
            g.lwait(f"B3_{n+1}", f"A3_{u}")
        else:
            g.lwait(f"B3_{n}", f"A3_{u}")
        A = V3_ACC + 32 * j
        for m in range(2):
            a = A + 16 * m
            c = "0" if u == 0 else vr(a, 16)
            g(f"v_mfma_f32_32x32x16_bf16 {vr(a,16)}, {ar(8*u+4*m,4)}, {vr(V3_B+4*(n%8),4)}, {c}")
            if m == 0 and n + PF < len(seq):
                emit_items(g, [bread(n + PF)])
            emit_items(g, extra.get(2 * n + m, []))
        if n == 63:
            g.stamp("p3pass1")
        if n in (7, 15, 23, 31, 39, 47, 55, 71, 79, 87, 95, 103, 111, 119):
            g.stamp(f"p3s{n}")
    g.stamp("p3mfma")
    return nf


def p4_load(g, n):
    sl, ks = n // 14, n % 14
    if ks % 4 == 0:
        g(f"s_add_u32 s{S_T+4}, s{S_X4+sl}, {(ks//4)*4096}")
    g.vm(f"buffer_load_dwordx4 {vr(V4_B+4*(n%NB4),4)}, v{V_L16}, {sr(S_WS,4)}, s{S_T+4} offen offset:{(ks%4)*1024} sc1", f"B4_{n}")


def p4_ship_items(sl):
    out = []
    for i, r0 in enumerate([8, 16, 24]):
        a = V4_ACC + 32 * sl + r0
        for q in range(2):
            out.append(("ds", f"ds_write_b128 v{V_RED+i}, {vr(a+4*q,4)} offset:{sl*6144 + q*1024}", f"RW{sl}"))
    return out


def p4_get_items(g, sl):
    out = [("fn", lambda: (g.lwait(f"RW{sl}"), g("s_barrier")), None)]
    for i in range(6):
        out.append(("ds", f"ds_read_b128 {vr(V4_ACC+32*sl+8+4*i,4)}, v{V_RED+3} offset:{sl*6144 + i*1024}", f"RR{sl}"))
    return out


def padd(d, x, y, pk):
    if pk:
        return [("v", f"v_pk_add_f32 {vr(d,2)}, {vr(x,2)}, {vr(y,2)}", None)]
    return [("v", f"v_add_f32 v{d}, v{x}, v{y}", None), ("v", f"v_add_f32 v{d+1}, v{x+1}, v{y+1}", None)]


def p4_add_items(g, sl, pk=False):
    a = V4_ACC + 32 * sl
    out = [("fn", lambda: g.lwait(f"RR{sl}"), None)]
    for d in range(4):
        out += padd(a + 2 * d, a + 2 * d, a + 8 + 2 * d, pk)
        out += padd(a + 16 + 2 * d, a + 16 + 2 * d, a + 24 + 2 * d, pk)
    for d in range(4):
        out += padd(a + 2 * d, a + 2 * d, a + 16 + 2 * d, pk)
    return out


def p4_send(g, sl):
    a = V4_ACC + 32 * sl
    for d in range(4):
        g(f"v_cvt_pk_bf16_f32 v{a+8+d}, v{a+2*d}, v{a+2*d+1}")
    va = V_L16 if sl == 0 else V4_AD + 9
    g.vm(f"buffer_store_dwordx4 {vr(a+8,4)}, v{va}, {sr(S_WS,4)}, s{S_M4+2} offen sc1", f"XST{sl}")


def p4_recv(g, ti):
    va = V_L16 if ti == 0 else V4_AD + 9
    g.vm(f"buffer_load_dwordx4 {vr(V4_R+4*ti,4)}, v{va}, {sr(S_WS,4)}, s{S_M4+3} offen sc1", f"XLD{ti}")


def p4_extra_items(g, src, dst, pk=False, tmp=None):
    out = []
    tmp = dst + 8 if tmp is None else tmp
    for d in range(4):
        out.append(("v", f"v_lshlrev_b32 v{tmp+2*d}, 16, v{src+d}", None))
        out.append(("v", f"v_and_b32 v{tmp+1+2*d}, 0xffff0000, v{src+d}", None))
    for d in range(4):
        out += padd(dst + 2 * d, dst + 2 * d, tmp + 2 * d, pk)
    return out


def p4_out(g, sl):
    a = V4_ACC + 32 * sl
    for d in range(4):
        g(f"v_cvt_pk_bf16_f32 v{a+8+d}, v{a+2*d}, v{a+2*d+1}")
    fl = " " + g.opts.get("outfl", "sc0")
    if sl == 2:
        g.vm(f"buffer_store_dwordx4 {vr(a+8,4)}, v{V4_AD+7}, {sr(S_OUT,4)}, 0 offen{fl}", "OUT")
    else:
        g(f"s_mov_b32 s{S_T}, 32768")
        g.vm(f"buffer_store_dwordx4 {vr(a+8,4)}, v{V4_AD+7}, {sr(S_OUT,4)}, s{S_T} offen{fl}", "OUT")


def p4_main(g, nloaded):
    o = g.opts
    PFN = o.get("pf4", 10)
    g.lwait_all()
    g.stamp("p4pre")
    ex = {}

    def put(hs, items, step=1):
        for i, it in enumerate(items):
            ex.setdefault(hs + int(i * step), []).append(it)
    F = lambda f: [("fn", f, None)]
    put(1, F(lambda: (hh_touch(g, 2), signal(g, HPH[2], ["HHST2"]))))
    put(2 * o.get("sig3b", 6), F(lambda: (hh_touch(g, 3), signal(g, HPH[3], ["HHST3"]))))
    if W2_PARK:
        k0 = min(W2_PARK)
        for x in sorted(W2_PARK):
            put(max(0, 2 * (x - k0)), w2_pick_items(g, x, *W2_PARK[x][1:]), 0.4)
        put(2 * 15, F(lambda: (g.lwait("A4_13"), g("s_barrier"))))
    else:
        put(2 * 8, F(lambda: g("s_barrier")))
    pol = {1: (-1, o.get("p1c", 4)), 2: (o.get("p2i", 9), o.get("p2c", 18)), 3: (o.get("p3i", 22), o.get("p3c", 32))}
    if o.get("p4v", 0) == 0:
        put(2 * 16, p4_ship_items(0), 1.5)
        put(2 * 21, p4_get_items(g, 0), 0.5)
        put(2 * 23 + 1, p4_add_items(g, 0), 0.25)
        put(2 * 27, F(lambda: p4_send(g, 0)))
        put(2 * 29 + 1, p4_ship_items(1), 1)
        put(2 * 33, p4_get_items(g, 1), 0.34)
        put(2 * 35, p4_add_items(g, 1), 0.25)
        put(2 * 38 + 1, F(lambda: p4_send(g, 1)))
        put(2 * o.get("xs1", 47), F(lambda: signal(g, 4, ["XST0", "XST1"])))
        put(2 * 44, p4_ship_items(2), 1)
        put(2 * 48, p4_get_items(g, 2), 0.34)
        put(2 * 50, p4_add_items(g, 2), 0.25)
        put(2 * o.get("xp1", 50), F(lambda: poll_issue(g, 4, "POLL4")))
        put(2 * o.get("xc1", 53), F(lambda: (poll_check(g, 4, "POLL4", S_M4, inline=o.get("inl4", 0)), p4_recv(g, 0), p4_recv(g, 1))))
        put(2 * 53 + 1, p4_extra_items(g, V_HK, V4_ACC + 64), 0.25)
    else:
        put(2 * 16, p4_ship_items(0), 3.5)
        put(2 * 29 + 1, p4_ship_items(1), 1.5)
        g0 = p4_get_items(g, 0)
        g1 = p4_get_items(g, 1)
        put(2 * 34 + 1, g1[:1] + g0[1:] + g1[1:], 0.5)
        put(2 * 37 + 1, p4_add_items(g, 0), 0.25)
        put(2 * 40 + 1, F(lambda: p4_send(g, 0)))
        put(2 * 41, p4_add_items(g, 1), 0.25)
        put(2 * 44, F(lambda: p4_send(g, 1)))
        put(2 * o.get("xs1", 50), F(lambda: signal(g, 4, ["XST0", "XST1"])))
        put(2 * 45, p4_ship_items(2), 1.5)
        put(2 * 51, p4_extra_items(g, V_HK, V4_ACC + 64, tmp=V4_ACC + 16), 0.34)
        put(2 * o.get("xp1", 53), F(lambda: poll_issue(g, 4, "POLL4")))
    nl = nloaded
    for n in range(56):
        sl, ks = n // 14, n % 14
        if n in (7, 14, 21, 28, 35, 42, 49):
            g.stamp(f"p4n{n}")
        for sx, (pi, pc) in pol.items():
            if n == pi:
                poll_issue(g, HPH[sx], f"POLLH{sx}", sx & 1)
            if n == pc:
                poll_check(g, HPH[sx], f"POLLH{sx}", S_A2 + 2, sx & 1, inline=o.get("inl4", 0))
        g.vwait(f"B4_{n}")
        if sl == 0:
            g.lwait(f"A4_{ks}")
        for ia in range(2):
            a = V4_ACC + 32 * sl + 16 * ia
            c = "0" if ks == 0 else vr(a, 16)
            g(f"v_mfma_f32_32x32x16_bf16 {vr(a,16)}, {ar(8*ks+4*ia,4)}, {vr(V4_B+4*(n%NB4),4)}, {c}")
            if nl < 56 and nl <= n + PFN and (nl < 14 or n >= pol[nl // 14][1]):
                p4_load(g, nl)
                nl += 1
            emit_items(g, ex.get(2 * n + ia, []))
    g.stamp("p4mfma")
    g("s_nop 1")
    R = V4_B
    unpack_bf16(g, R, V_HK + 4, 4)
    g("s_nop 1")
    emit_items(g, p4_ship_items(3))
    if o.get("p4v", 0):
        poll_check(g, 4, "POLL4", S_M4)
        p4_recv(g, 0)
        p4_recv(g, 1)
        g3 = p4_get_items(g, 3)
        emit_items(g, g3[:1] + p4_get_items(g, 2)[1:] + g3[1:])
        emit_items(g, p4_add_items(g, 2, True))
        emit_items(g, p4_add_items(g, 3, True))
        a = V4_ACC + 96
        for d in range(4):
            g(f"v_pk_add_f32 {vr(a+2*d,2)}, {vr(a+2*d,2)}, {vr(R+2*d,2)}")
        g.vwait("XLD0")
        emit_items(g, p4_extra_items(g, V4_R, V4_ACC + 64, True))
        p4_out(g, 2)
        g.vwait("XLD1")
        emit_items(g, p4_extra_items(g, V4_R + 4, a, True))
        p4_out(g, 3)
        return
    g.vwait("XLD1")
    emit_items(g, p4_extra_items(g, V4_R + 4, R, True))
    emit_items(g, p4_get_items(g, 3))
    emit_items(g, p4_extra_items(g, V4_R, V4_ACC + 64, True))
    p4_out(g, 2)
    emit_items(g, p4_add_items(g, 3, True))
    a = V4_ACC + 96
    for d in range(4):
        g(f"v_pk_add_f32 {vr(a+2*d,2)}, {vr(a+2*d,2)}, {vr(R+2*d,2)}")
    p4_out(g, 3)


def idle_warm13(g):
    lab = g.lab("iw")
    g(f"s_cmp_ge_u32 s{S_M}, 14\ns_cbranch_scc1 {lab}\n{lab}_j:")
    g.cold.append(f"""{lab}:

        s_lshl_b32 s{S_T}, s{S_G}, 1
        s_and_b32 s{S_T+1}, s{S_M}, 1
        s_add_u32 s{S_T}, s{S_T}, s{S_T+1}
        s_lshl_b32 s{S_T}, s{S_T}, 2
        s_add_u32 s{S_T}, s{S_T}, s{S_WAVE}
        s_mul_i32 s{S_T}, s{S_T}, 7168
        s_add_u32 s{S_T}, s{S_T}, {256*3584}
        s_mov_b32 exec_hi, 0x00ffffff
        buffer_load_dword v3, v2, {sr(S_W1,4)}, s{S_T} offen
        buffer_load_dword v3, v2, {sr(S_W3,4)}, s{S_T} offen
        s_mov_b64 exec, -1
        
    s_branch {lab}_j""")


def write_stamps(g):
    if not g.stamps:
        return
    if g.opts.get("probe", 0):
        a = S_STAMP
        b = S_STAMP + 2 * (g.nst - 1)
        g(f"""
        s_waitcnt lgkmcnt(0)
        s_sub_u32 s{S_T}, s{b}, s{a}
        s_mul_i32 s{S_T}, s{S_T}, {g.opts["probe"]}
        s_memrealtime s[{a+4}:{a+5}]
        s_waitcnt lgkmcnt(0)
        s_add_u32 s{S_T}, s{S_T}, s{a+4}
        L_probe:
        s_memrealtime s[{a+4}:{a+5}]
        s_waitcnt lgkmcnt(0)
        s_sub_u32 s{S_T+1}, s{a+4}, s{S_T}
        s_cmp_lt_i32 s{S_T+1}, 0
        s_cbranch_scc1 L_probe
        """)
        return
    g(f"""
    s_waitcnt lgkmcnt(0) vmcnt(0)
    s_lshl_b32 s{S_T}, s{S_M}, 2
    s_add_u32 s{S_T}, s{S_T}, s{S_WAVE}
    s_lshl_b32 s{S_T}, s{S_T}, 6
    s_add_u32 s{S_T}, s{S_T}, {WS_STAMP}
    v_mov_b32 v2, 0
    """)
    for i in range(g.nst):
        g(f"v_mov_b32 v3, s{S_STAMP+2*i}")
        g(f"buffer_store_dword v3, v2, {sr(S_WS,4)}, s{S_T} offen offset:{i*4}")
    g(f"v_mov_b32 v3, s{S_FAST}")
    g(f"buffer_store_dword v3, v2, {sr(S_WS,4)}, s{S_T} offen offset:60")


def build(stamps=False, opts=None):
    g = G(stamps, opts)
    o = g.opts
    for k_ in ("srow", "x", "pre", "w"):
        if o.get("nt" + k_, 1 if k_ in ("srow", "x") else 0):
            NT[k_] = " nt"
    n_a = o.get("n_a", 2)
    n_b = o.get("n_b", 3)
    n_c = o.get("n_c", 5)
    n_d = o.get("n_d", 2)
    prologue(g)
    code_prefetch(g, o.get("codesz", 28672))
    p1_setup(g)
    p1_setup_offsets(g)
    for r_, sz in ((S_WQKV, 1572864), (S_X, 2097152), (S_WS, WS_SIZE), (S_WO, 524288)):
        g(f"s_mov_b32 s{r_+2}, {sz}\ns_mov_b32 s{r_+3}, 0x20000")
    g("s_waitcnt lgkmcnt(0)")
    g(f"s_and_b32 s{S_WQKV+1}, s{S_WQKV+1}, 0xffff\ns_and_b32 s{S_X+1}, s{S_X+1}, 0xffff")
    g.stamp("args")
    x0 = p1_dma_x(0)
    emit_items(g, [touch_res3(g, S_WQKV, 12)] + p1_dma_w(0) + x0[:3])
    g.stamp("i2")
    nonce_publish(g)
    g(f"""s_lshl_b32 s{S_T}, s{S_G}, 20
    s_add_u32 s{S_WS}, s{S_WS}, s{S_T}
    s_addc_u32 s{S_WS+1}, s{S_WS+1}, 0
    s_and_b32 s{S_WS+1}, s{S_WS+1}, 0xffff
    s_and_b32 s{S_WO+1}, s{S_WO+1}, 0xffff""")
    dfr = setup_deferred(g)
    emit_items(g, dfr[:16])
    if o.get("tlb", 0):
        lab = g.lab("tlb")
        g(f"""
        s_lshl_b32 s{S_T}, s2, 10
        s_mov_b64 exec, 1
        s_cmp_lg_u32 s{S_WAVE}, 0
        s_cbranch_scc1 {lab}_1
        buffer_load_dword v3, v2, {sr(S_W1,4)}, s{S_T} offen
        buffer_load_dword v3, v2, {sr(S_WO,4)}, s{S_T} offen
        s_branch {lab}_e
        {lab}_1:
        s_cmp_lg_u32 s{S_WAVE}, 1
        s_cbranch_scc1 {lab}_2
        buffer_load_dword v3, v2, {sr(S_W3,4)}, s{S_T} offen
        buffer_load_dword v3, v2, {sr(S_W2,4)}, s{S_T} offen
        s_branch {lab}_e
        {lab}_2:
        s_cmp_lg_u32 s{S_WAVE}, 2
        s_cbranch_scc1 {lab}_3
        buffer_load_dword v3, v2, {sr(S_OUT,4)}, s{S_T} offen
        global_load_dword v3, v{V_NA}, s[{S_DBG}:{S_DBG+1}] offset:128 sc1
        s_branch {lab}_e
        {lab}_3:
        s_lshl_b32 s{S_T}, s{S_M}, 7
        s_add_u32 s{S_T}, s{S_T}, 0xe0000
        buffer_load_dword v3, v2, {sr(S_WS,4)}, s{S_T} offen sc1
        {lab}_e:
        s_mov_b64 exec, -1
        """)
    setup_rest(g)
    emit_items(g, dfr[16:])
    p1_stats_addr(g)
    g.stamp("setup")
    emit_items(g, x0[3:])
    if o.get("ord", 1) == 0:
        emit_items(g, p1_dma_w(1) + p1_srow_items())
    else:
        emit_items(g, p1_srow_items() + p1_dma_w(1))
    g.stamp("issued")
    assert n_a <= NSLOT
    if not o.get("woraw", 0):
        g.bg += wo_dma_items()
    for u in range(min(3, n_a)):
        g.bg += w13_dma_items(u)
    p1_gemm(g)
    g.lwait("WOW")
    g("s_barrier")
    for u in range(3, n_a):
        g.bg += w13_dma_items(u)
    if o.get("kpre", 9) == 16:
        pr = preread_items()
        emit_items(g, pr)
    g.skip = o.get("askip", 0)
    p1_attention(g)
    g.skip = 0
    g.tick(100)
    g.T = 16
    g.stamp("attn")
    u0 = n_a
    assert n_a + n_b <= NSLOT
    for u in range(u0, u0 + n_b):
        emit_items(g, w13_dma_items(u))
    ea = o.get("earlyA", 0)
    rest = []
    for ks in range(8 if ea else 0, 16):
        rest += p2_a_items(ks)
    if ea:
        emit_items(g, rest[8:24])
    w13_stage_setup(g)
    p2_pre(g)
    signal(g, 0, ["OST", "WO"])
    g.stamp("p1done")
    w0 = o.get("w0poll", 0)
    if not w0 & 1:
        poll_issue(g, 0, "POLL1")
    if not ea:
        g("s_barrier")
        na0 = o.get("na0", 24)
        emit_items(g, rest[:na0])
        o["_late"] = rest[na0:]
    else:
        emit_items(g, rest[:8])
        o["_late"] = rest[24:]
    p3_pre(g)
    for u in range(n_a):
        emit_items(g, w13_pick_items(g, u))
    if w0 & 1:
        poll_w0(g, 0, 6)
        g("s_barrier")
    else:
        poll_check(g, 0, "POLL1", 6, inline=o.get("inl", 0))
    g.stamp("f1")
    if n_a:
        g.lwait(f"A3_{n_a-1}")
    u0 += n_b
    assert n_b + n_c + n_d <= NSLOT
    if o.get("iw", 0) == 2:
        g.bg.append(("fn", lambda: (idle_warm13(g), g.tick()), None))
    for u in range(u0, u0 + n_c):
        g.bg += w13_dma_items(u)
    o["_picks"] = [it for u in range(n_a, u0 + n_c) for it in w13_pick_items(g, u)]
    p2_main(g)
    assert not g.bg
    u0 += n_c
    if o.get("iw", 0) == 1:
        idle_warm13(g)
    for u in range(u0, u0 + n_d):
        emit_items(g, w13_dma_items(u))
    npre = u0 + n_d
    signal(g, 1, ["HST"])
    if o.get("iw", 0) == 3:
        idle_warm13(g)
    g.stamp("p2done")
    if not w0 & 2:
        poll_issue(g, 1, "POLL2")
    g("s_mov_b64 s[6:7], -1")
    p34_pre(g, 1)
    for u in range(u0, npre):
        emit_items(g, w13_pick_items(g, u))
    g.lwait_all()
    if w0 & 2:
        poll_w0(g, 1, 6)
    g("s_barrier")
    hk_exchange_read(g)
    g(f"s_cmp_ge_u32 s{S_M}, 14\ns_cbranch_scc1 L_idle3")
    if not w0 & 2:
        poll_check(g, 1, "POLL2", 6, inline=o.get("inl", 0))
    g.stamp("f2")
    emit_items(g, p3_h_items(0) + p3_h_items(1))
    got = p3_main(g, npre)
    nf = got if got else 8
    ep = p3_epi_sched(TORD[3])
    if not got:
        poll_issue(g, HPH[0], "POLLH0")
    g("s_nop 7\ns_nop 3")
    emit_items(g, ep[:40])
    if not got:
        poll_check(g, HPH[0], "POLLH0", S_A2 + 2)
        for i in range(nf):
            p4_load(g, i)
    poll_issue(g, HPH[1], "POLLH1", 1)
    emit_items(g, ep[40:])
    p3_hh_store(g, TORD[3])
    g.stamp("p3done")
    g("L_p4:")
    p4_main(g, nf)
    g.stamp("end")
    write_stamps(g)
    g("L_done:\ns_endpgm")
    g("L_idle3:")
    g.vq = []
    g.lq = []
    if o.get("iw", 0) == 0:
        idle_warm13(g)
    if o.get("idlepf", 1):
        g(f"""
        s_and_b32 s{S_T}, s{S_G}, 1
        s_lshl_b32 s{S_T}, s{S_T}, 1
        s_and_b32 s{S_T+1}, s{S_M}, 1
        s_add_u32 s{S_T}, s{S_T}, s{S_T+1}
        s_mul_i32 s{S_T}, s{S_T}, {448*1024}
        s_lshl_b32 s{S_T+1}, s{S_WAVE}, 13
        s_add_u32 s{S_T}, s{S_T}, s{S_T+1}
        s_min_u32 s{S_T+1}, s{S_XCD}, 6
        s_lshl_b32 s{S_T+1}, s{S_T+1}, 16
        s_add_u32 s{S_T+1}, s{S_T+1}, s{S_T}
        buffer_load_dword v3, v2, {sr(S_W2,4)}, s{S_T+1} offen
        s_add_u32 s{S_T+1}, s{S_T+1}, 32768
        buffer_load_dword v3, v2, {sr(S_W2,4)}, s{S_T+1} offen
        """)
        if o.get("idr3", 1):
            g(f"""
            v_lshlrev_b32 v{g.T+5}, 10, v{V_L}
            s_mul_i32 s{S_T+1}, s{S_WAVE}, {112*1024 - 8192}
            s_add_u32 s{S_T+1}, s{S_T+1}, s{S_T}
            s_waitcnt vmcnt(0)
            buffer_load_dword v3, v{g.T+5}, {sr(S_W2,4)}, s{S_T+1} offen offset:384
            s_add_u32 s{S_T+1}, s{S_T+1}, {56*1024}
            buffer_load_dword v3, v{g.T+5}, {sr(S_W2,4)}, s{S_T+1} offen offset:384
            """)
        for _ in range(o.get("idsl", 0)):
            g("s_sleep 16")
        for j in [0, 7, 1, 8, 2, 9, 3, 10, 4, 11, 5, 12, 6, 13][:o.get('idn', 0)]:
            g(f"s_add_u32 s{S_T+1}, s{S_T}, {j*32768}")
            g(f"buffer_load_dword v3, v2, {sr(S_W2,4)}, s{S_T+1} offen")
    g.lwait_all()
    g("s_barrier")
    nk = [ks for ks in range(14) if ks not in W2_PARK]
    for ks in nk:
        emit_items(g, w2_dma_items(ks, S_LB, ks * 2048))
    for ks in nk:
        emit_items(g, w2_pick_items(g, ks, V4_AD + 2, ks * 2048))
    g.lwait_all()
    if W2_PARK:
        g("s_barrier")
    for ks in sorted(W2_PARK):
        emit_items(g, w2_dma_items(ks, W2_PARK[ks][0], W2_PARK[ks][2]))
    if o.get("wbl2", 0):
        g(f"""
        s_cmp_lg_u32 s{S_IDXW}, {31*4}
        s_cbranch_scc1 L_nowb
        buffer_wbl2 sc1
        L_nowb:
        """)
    poll_issue(g, HPH[0], "POLLH0")
    poll_check(g, HPH[0], "POLLH0", S_A2 + 2, slp=True)
    for i in range(nf):
        p4_load(g, i)
    poll_issue(g, HPH[1], "POLLH1", 1)
    g.vwait_all()
    g("s_branch L_p4")
    for c in g.cold:
        g(c)
    g("L_codeend:")
    return g


if __name__ == "__main__":
    out = sys.argv[1] if len(sys.argv) > 1 else "k.s"
    stamps = "--stamps" in sys.argv
    if "--cyc" in sys.argv:
        stamps = "cyc"
    opts = {}
    if "--slow" in sys.argv:
        opts["slow"] = True
    for a in sys.argv:
        if a.startswith("--st="):
            opts["stsel"] = a[5:].split(",")
        if a.startswith("--o:"):
            k, v = a[4:].split("=")
            opts[k] = int(v) if v.lstrip("-").isdigit() else v
    g = build(stamps, opts)
    emit_file(out, [g.k], single=True)
    print("stamps:", g.nst, g.stnames, "lines:", len(g.k.lines))
```

```python
import sys
import struct
from asmlib import *

KNAME = "sequential_preLN__sliding_local_dilated__glu_gated_swiglu__prompt_kernel"

WS_GRP = 0x100000
WS_O = 0x00000
WS_H = 0x00000
WS_X = 0x20000
WS_HH = 0x40000
WS_ST = 0xB0000
WS_S1 = 0xB8000
WS_FL = 0xC0000
WS_STAMP = 0xD0000
WS_SIZE = WS_GRP
SPIN_MAX = 400000
LOG2E = 1.4426950408889634

S_NONCE = 3
S_IDXW = 4
S_FLO = 5
S_X, S_WQKV, S_WO, S_W1, S_W3, S_W2, S_OUT, S_WS = 8, 12, 16, 20, 24, 28, 32, 36
S_DBG = 100
S_WAVE = 42
S_XCD = 43
S_FAST = 44
S_G = 45
S_M = 46
S_TB = 47
S_KH = 41
S_C8 = 48
S_C2 = 40
S_T = 49
S_ONES = 56
S_XOFF = 57
S_WOFF = 61
S_SW = 65
S_EXM = 66
S_LB = 68
S_C = 70
S_FLB = 71
S_STAMP = 72
S_KO = 66
S_A = 57
S_A2 = 12
S_K2 = 65
S_W2O = 67


NT = {}


def f2h(x):
    return "0x%08x" % struct.unpack("<I", struct.pack("<f", x))[0]


def vr(a, n):
    return f"v[{a}:{a+n-1}]"


def ar(a, n):
    return f"a[{a}:{a+n-1}]"


def sr(a, n):
    return f"s[{a}:{a+n-1}]"


class G:
    def __init__(self, stamps=False, opts=None):
        self.k = Kernel(KNAME, 256, 256, 160 * 1024, nvgpr=256, nagpr=256)
        self.vq = []
        self.lq = []
        self.stamps = stamps
        self.nst = 0
        self.stnames = []
        self.opts = opts or {}
        self.nlab = 0
        self.bg = []
        self.cold = []
        self.T = 212

    def __call__(self, s):
        self.k(s)

    def lab(self, base):
        self.nlab += 1
        return f"L_{base}_{self.nlab}"

    def tick(self, n=1):
        if getattr(self, "skip", 0) > 0:
            self.skip -= 1
            return
        if getattr(self, "budget", None) is not None:
            if self.budget <= 0:
                return
            self.budget -= 1
        for _ in range(n):
            if self.bg:
                emit_items(self, [self.bg.pop(0)])

    def vm(self, ins, tag):
        self.k(ins)
        self.vq.append(tag)

    def store(self, ins, tag):
        a = self.lab("slow")
        self.k(f"s_cmp_eq_u32 s{S_FAST}, 0\ns_cbranch_scc1 {a}")
        for x in ins:
            self.k(x)
        self.k(f"{a}_j:")
        self.cold.append(f"{a}:\n" + "\n".join(x + " sc1" for x in ins) + f"\ns_branch {a}_j")
        self.vq += [tag] * len(ins)

    def vwait(self, *tags):
        last = -1
        for i, t in enumerate(self.vq):
            if t in tags:
                last = i
        if last < 0:
            return
        n = len(self.vq) - 1 - last
        if n > 63:
            n = 63
            last = len(self.vq) - 1 - 63
        self.k(f"s_waitcnt vmcnt({n})")
        self.vq = self.vq[last + 1:]

    def vwait_all(self):
        self.k("s_waitcnt vmcnt(0)")
        self.vq = []

    def ds(self, ins, tag):
        self.k(ins)
        self.lq.append(tag)

    def lwait(self, *tags):
        last = -1
        for i, t in enumerate(self.lq):
            if t in tags:
                last = i
        if last < 0:
            return
        n = len(self.lq) - 1 - last
        if n > 15:
            n = 15
            last = len(self.lq) - 1 - 15
        self.k(f"s_waitcnt lgkmcnt({n})")
        self.lq = self.lq[last + 1:]

    def lwait_all(self):
        self.k("s_waitcnt lgkmcnt(0)")
        self.lq = []

    def stamp(self, name):
        if not self.stamps:
            return
        sel = self.opts.get("stsel")
        if sel is not None and name not in sel:
            return
        r = S_STAMP + 2 * self.nst
        assert r + 1 <= 99, "too many stamps"
        self.k(f"{'s_memtime' if self.stamps == 'cyc' and self.nst > 0 else 's_memrealtime'} s[{r}:{r+1}]")
        self.nst += 1
        self.stnames.append(name)

    def srd(self, s, lo, hi, size):
        self(f"s_mov_b32 s{s}, s{lo}\ns_and_b32 s{s+1}, s{hi}, 0xffff\ns_mov_b32 s{s+2}, {size}\ns_mov_b32 s{s+3}, 0x20000")


def emit_items(g, items):
    for kind, ins, tag in items:
        if kind == "ds":
            g.ds(ins, tag)
        elif kind == "vm":
            g.vm(ins, tag)
        elif kind == "fn":
            ins()
        else:
            g(ins)


def sched(g, mf, slots):
    for i, x in enumerate(mf):
        g(x)
        emit_items(g, slots.get(i, []))


def spread(slots, items, lo, hi):
    n = hi - lo
    for j, it in enumerate(items):
        slots.setdefault(lo + j * n // len(items), []).append(it)


V_L = 1
V_TR = 224
V_D128 = 226
V_L16 = 227
V_RED = 228
V_XO = 232
V3_WD = 233
V3_TR = 234
V3_SW = 235
V3_HB = 236
V_GA = 237
V_OS = 238
V_L4 = 239
V_XRES = 240
V_HK = 248
V_XD = 4
V_WD = 9
V_XR = 10
V_WR = 14
V_MK = 16
V_ACC = 36
V_AF = 96
V_BF = 120
V_NM2 = 160
V_SR = 160
V_NM = 200
V_NA = 210
V_S1A = 220
V_ONE2 = 222

L_X = 0
L_W = 61440
L_MISC = 159744
L_WO = 45056


def prologue(g):
    g.stamp("start")
    g(f"""
    s_cmp_ge_u32 s2, 256
    s_cbranch_scc1 L_done
    s_load_dwordx2 s[{S_WQKV}:{S_WQKV+1}], s[0:1], 8
    s_load_dwordx2 s[{S_X}:{S_X+1}], s[0:1], 0
    s_load_dwordx2 s[{S_DBG}:{S_DBG+1}], s[0:1], 64
    s_load_dwordx2 s[{S_WS}:{S_WS+1}], s[0:1], 72
    s_load_dwordx2 s[{S_WO}:{S_WO+1}], s[0:1], 16
    s_load_dwordx8 s[{S_STAMP+20}:{S_STAMP+27}], s[0:1], 32
    v_lshrrev_b32 v2, 6, v0
    v_and_b32 v1, 63, v0
    s_and_b32 s{S_XCD}, s2, 7
    v_readfirstlane_b32 s{S_WAVE}, v2
    s_lshr_b32 s{S_T+1}, s2, 3
    s_lshr_b32 s{S_T}, s{S_T+1}, 4
    s_lshl_b32 s{S_G}, s{S_XCD}, 1
    s_add_u32 s{S_G}, s{S_G}, s{S_T}
    s_and_b32 s{S_M}, s{S_T+1}, 15
    s_lshl_b32 s{S_IDXW}, s{S_T+1}, 2
    s_add_u32 s{S_IDXW}, s{S_IDXW}, s{S_WAVE}
    s_lshr_b32 s{S_KH}, s{S_M}, 3
    s_lshl_b32 s{S_TB}, s{S_G}, 1
    s_add_u32 s{S_TB}, s{S_TB}, s{S_KH}
    s_and_b32 s{S_C8}, s{S_M}, 7
    s_xor_b32 s{S_C2}, s{S_C8}, {g.opts.get('c2x', 4)}
    """)


def code_prefetch(g, nbytes):
    g(f"""
    s_getpc_b64 s[6:7]
    L_pc:
    v_lshlrev_b32 v2, 7, v{V_L}
    s_lshl_b32 s{S_T}, s{S_IDXW}, 8
    v_add_u32 v4, s{S_T}, v2
    v_min_u32 v4, L_codeend-L_pc-4, v4
    s_mov_b64 exec, 3
    """)
    g.vm("global_load_dword v3, v4, s[6:7]", "PF")
    g("s_mov_b64 exec, -1")
    g("s_memrealtime s[6:7]")


def p1_setup(g):
    l = V_L
    t = g.T
    g(f"""
    v_lshrrev_b32 v{t+2}, 3, v{l}
    v_bfe_u32 v{t+3}, v{l}, 4, 1
    s_and_b32 s{S_T}, s{S_WAVE}, 1
    s_lshl_b32 s{S_T}, s{S_T}, 1
    v_or_b32 v{t+3}, s{S_T}, v{t+3}
    v_lshlrev_b32 v{t+3}, 1, v{t+3}
    v_and_b32 v{t+4}, 7, v{l}
    v_xor_b32 v{t+3}, v{t+3}, v{t+4}
    s_lshl_b32 s{S_T}, s{S_WAVE}, 3
    v_add_u32 v{t+2}, s{S_T}, v{t+2}
    v_mul_u32_u24 v{t+2}, 3072, v{t+2}
    v_lshl_add_u32 v{t+2}, v{t+3}, 4, v{t+2}
    s_lshl_b32 s{S_T}, s{S_C8}, 7
    v_add_u32 v{V_WD}, s{S_T}, v{t+2}
    s_lshl_b32 s{S_LB}, s{S_WAVE}, 10
    s_mul_i32 s{S_LB+1}, s{S_WAVE}, 3072
    v_lshrrev_b32 v{t}, 4, v0                 ; p = tid>>4
    v_and_b32 v{t+1}, 15, v{l}
    v_xor_b32 v{t+1}, v{t+1}, v{t}
    v_lshlrev_b32 v{t+1}, 4, v{t+1}
    s_lshl_b32 s{S_T+1}, s{S_TB}, 16          ; T0*1024
    v_add_u32 v{t+1}, s{S_T+1}, v{t+1}
    v_lshl_add_u32 v{V_XD+1}, v{t}, 11, v{t+1}
    s_lshr_b32 s{S_T}, s{S_WAVE}, 1           ; p>>3
    s_mul_i32 s{S_T}, s{S_T}, {17*1024}
    s_add_u32 s{S_T}, s{S_T}, {15*1024}
    v_subrev_u32 v{V_XD}, s{S_T}, v{V_XD+1}   ; 2p - 16(p>>3) - 15 - (p>>3)
    v_lshlrev_b32 v{V_L16}, 4, v{l}
    v_min_u32 v{V_SR+17}, 9, v{t}
    s_mul_i32 s{S_T}, s{S_C8}, 10
    v_add_u32 v{V_SR+17}, s{S_T}, v{V_SR+17}  ; e = delta + 16
    s_sub_u32 s{S_T}, s{S_T+1}, {16*1024}
    v_and_b32 v{t+2}, 0xf0, v{V_L16}
    v_lshl_add_u32 v{t+2}, v{V_SR+17}, 10, v{t+2}
    v_add_u32 v{V_SR+16}, s{S_T}, v{t+2}
    """)


def p1_setup_offsets(g):
    g(f"""
    s_cmp_eq_u32 s{S_WAVE}, 0
    s_cselect_b32 s{S_EXM}, 0xffff0000, -1
    s_mov_b32 s{S_EXM+1}, -1
    {["s_mov_b32 s%d, s%d" % (S_T, S_XCD), "s_add_u32 s%d, s%d, s%d" % (S_T, S_XCD, S_TB), "s_lshl_b32 s%d, s%d, 1" % (S_T, S_G) + chr(10) + "s_add_u32 s%d, s%d, s%d" % (S_T, S_T, S_XCD)][g.opts.get("rot", 0)]}
    s_and_b32 s{S_T}, s{S_T}, 3
    s_lshr_b32 s{S_T+2}, s{S_XCD}, 2
    s_mul_i32 s{S_SW}, s{S_T+2}, {64*3072}
    """)
    for q in range(4):
        g(f"""
        s_add_u32 s{S_T+1}, s{S_T}, {q}
        s_and_b32 s{S_T+1}, s{S_T+1}, 3
        s_lshl_b32 s{S_XOFF+q}, s{S_T+1}, 8
        s_mul_i32 s{S_WOFF+q}, s{S_T+1}, {128*3072}
        """)


def p1_srow_items():
    return [("vm", f"buffer_load_dwordx4 {vr(V_SR+4*i,4)}, v{V_SR+16}, {sr(S_X,4)}, 0 offen offset:{256*i}{NT.get('srow','')}", "SROW") for i in range(4)]


def nonce_publish(g):
    lab = g.lab("nolead")
    t = g.T
    g(f"""
    s_lshl_b32 s{S_T}, s{S_G}, 2
    v_mov_b32 v{V_NA}, s{S_T}
    s_or_b32 s{S_T+1}, s{S_M}, s{S_WAVE}
    s_cmp_lg_u32 s{S_T+1}, 0
    s_cbranch_scc1 {lab}
    s_or_b32 s{S_T+1}, s6, 1
    v_mov_b32 v{t+6}, s{S_T+1}
    s_mov_b64 exec, 1
    global_store_dword v{V_NA}, v{t+6}, s[{S_DBG}:{S_DBG+1}] sc1
    s_mov_b64 exec, -1
    {lab}:
    """)


def nonce_poll_issue(g):
    g.vm(f"global_load_dword v{V_NA+1}, v{V_NA}, s[{S_DBG}:{S_DBG+1}] sc1", "NONCE")


def nonce_check(g):
    lp = g.lab("nl")
    g.vwait("NONCE")
    g(f"""
    v_readfirstlane_b32 s{S_NONCE}, v{V_NA+1}
    s_mov_b32 s{S_T+6}, 0
    s_cmp_eq_u32 s{S_NONCE}, 0
    s_cbranch_scc1 {lp}
    {lp}_ok:
    """)
    g.cold.append(f"""{lp}:
    global_load_dword v{V_NA+1}, v{V_NA}, s[{S_DBG}:{S_DBG+1}] sc1
    s_add_u32 s{S_T+6}, s{S_T+6}, 1
    s_waitcnt vmcnt(0)
    v_readfirstlane_b32 s{S_NONCE}, v{V_NA+1}
    s_cmp_gt_u32 s{S_T+6}, {SPIN_MAX}
    s_cbranch_scc1 {lp}_ok
    s_cmp_eq_u32 s{S_NONCE}, 0
    s_cbranch_scc1 {lp}
    s_branch {lp}_ok""")


def p1_stats_addr(g):
    e = V_SR + 17
    b = V_SR + 18
    g(f"""
    v_lshrrev_b32 v{b}, 1, v{e}
    v_and_b32 v{b+1}, 1, v{e}
    v_lshl_add_u32 v{b+2}, v{b+1}, 5, v{b}
    v_add_u32 v{b+2}, 8, v{b+2}
    v_xor_b32 v{b+1}, 1, v{b+1}
    v_lshl_add_u32 v{b}, v{b+1}, 3, v{b}
    v_cmp_gt_u32 vcc, 16, v{e}
    s_nop 1
    v_cndmask_b32 v{e}, v{b+2}, v{b}, vcc
    v_lshlrev_b32 v{e}, 3, v{e}
    """)


def p1_stats_compute(g):
    R = V_SR
    a = R + 18
    g.vwait("SROW")
    for i in range(2):
        g(f"v_dot2_f32_bf16 v{a+2*i}, v{R+i}, s{S_ONES}, 0")
        g(f"v_dot2_f32_bf16 v{a+2*i+1}, v{R+i}, v{R+i}, 0")
    for d in range(2, 16):
        i = d & 1
        g(f"v_dot2c_f32_bf16 v{a+2*i}, s{S_ONES}, v{R+d}")
        g(f"v_dot2c_f32_bf16 v{a+2*i+1}, v{R+d}, v{R+d}")
    g(f"""
    s_lshl_b32 s{S_T+2}, s{S_KH}, 10
    s_add_u32 s{S_T+2}, s{S_T+2}, {WS_S1}
    s_nop 0
    v_pk_add_f32 {vr(a,2)}, {vr(a,2)}, {vr(a+2,2)}
    s_nop 1
    """)
    for sh in (8, 4, 2, 1):
        g(f"v_add_f32_dpp v{a}, v{a}, v{a} row_ror:{sh} row_mask:0xf bank_mask:0xf")
        g(f"v_add_f32_dpp v{a+1}, v{a+1}, v{a+1} row_ror:{sh} row_mask:0xf bank_mask:0xf")
        g("s_nop 0")
    g(f"""
    v_mul_f32 v{a+2}, {f2h(-1.0/512)}, v{a}
    v_mul_f32 v{a+3}, {f2h(1.0/512)}, v{a+1}
    v_fma_f32 v{a+3}, -v{a+2}, v{a+2}, v{a+3}
    v_max_f32 v{a+3}, 0, v{a+3}
    v_add_f32 v{a+3}, {f2h(1e-5)}, v{a+3}
    v_rsq_f32 v{a+3}, v{a+3}
    s_mov_b32 exec_lo, 0x00010001
    s_mov_b32 exec_hi, 0x00010001
    """)
    assert a % 2 == 0
    g.vm(f"buffer_store_dwordx2 {vr(a+2,2)}, v{R+17}, {sr(S_WS,4)}, s{S_T+2} offen sc1", "S1ST")
    g("s_mov_b64 exec, -1")


def p1_started(g):
    lab = g.lab("nostart")
    t = g.T
    g(f"""
    s_cmp_lg_u32 s{S_WAVE}, 0
    s_cbranch_scc1 {lab}
    s_getreg_b32 s{S_T+4}, hwreg(HW_REG_XCC_ID)
    s_and_b32 s{S_T+4}, s{S_T+4}, 15
    s_lshl_b32 s{S_T+5}, s{S_M}, 3
    s_add_u32 s{S_T+5}, s{S_T+5}, s{S_FLB}
    v_mov_b32 v{t+2}, {7*4096}
    v_mov_b32 v{t}, s{S_NONCE}
    v_mov_b32 v{t+1}, s{S_T+4}
    s_mov_b64 exec, 1
    buffer_store_dwordx2 {vr(t,2)}, v{t+2}, {sr(S_WS,4)}, s{S_T+5} offen sc1
    s_mov_b64 exec, -1
    {lab}:
    """)


def setup_rest(g):
    l = V_L
    t = g.T
    a = S_STAMP + 20
    g(f"""
    s_mov_b32 s{S_ONES}, 0x3f803f80
    s_mov_b32 s{S_FLB}, 0
    s_add_u32 s{S_FLB}, s{S_FLB}, {WS_FL}
    s_lshl_b32 s{S_T}, s{S_M}, 4
    s_lshl_b32 s{S_T+1}, s{S_WAVE}, 2
    s_add_u32 s{S_FLO}, s{S_T}, s{S_T+1}
    s_add_u32 s{S_FLO}, s{S_FLO}, s{S_FLB}
    v_lshlrev_b32 v{V_L4}, 2, v{l}
    v_lshrrev_b32 v{t}, 4, v{l}            ; g
    v_and_b32 v{t+1}, 15, v{l}             ; r
    v_xor_b32 v{t+2}, v{t}, v{t+1}
    s_lshr_b32 s{S_T+2}, s{S_XCD}, 2
    s_lshl_b32 s{S_T+2}, s{S_T+2}, 3
    v_xor_b32 v{t+2}, s{S_T+2}, v{t+2}
    v_lshlrev_b32 v{t+3}, 8, v{t+1}
    """)
    for ks in range(4):
        g(f"""
        v_xor_b32 v{t+4}, {4*ks}, v{t+2}
        v_lshl_add_u32 v{V_XR+ks}, v{t+4}, 4, v{t+3}
        """)
    g(f"""
    v_mul_u32_u24 v{t+2}, 3072, v{t}
    v_bfe_u32 v{t+3}, v{l}, 2, 2
    v_lshl_add_u32 v{t+2}, v{t+3}, 7, v{t+2}
    v_bfe_u32 v{t+3}, v{l}, 3, 2
    v_xor_b32 v{t+3}, s{S_WAVE}, v{t+3}
    v_lshl_add_u32 v{t+2}, v{t+3}, 5, v{t+2}
    v_and_b32 v{t+3}, 3, v{l}
    v_lshl_add_u32 v{t+2}, v{t+3}, 3, v{t+2}
    v_add_u32 v{V_WR}, {L_W}, v{t+2}
    v_add_u32 v{V_WR+1}, {L_W+49152}, v{t+2}
    """)
    lab = g.lab("noones")
    g(f"""
    v_mov_b32 v{t+4}, s{S_ONES}
    v_mov_b32 v{t+5}, s{S_ONES}
    v_mov_b32 v{t+6}, s{S_ONES}
    v_mov_b32 v{t+7}, s{S_ONES}
    v_mov_b32 v{V_ONE2}, s{S_ONES}
    v_mov_b32 v{V_ONE2+1}, s{S_ONES}
    v_min_u32 v{t+2}, 2, v{t}
    v_mul_u32_u24 v{t+2}, 20480, v{t+2}
    v_lshl_add_u32 v{t+2}, v{t+1}, 4, v{t+2}
    s_cmp_lg_u32 s{S_WAVE}, 0
    s_cbranch_scc1 {lab}
    ds_write_b128 v{t+2}, {vr(t+4,4)} offset:{L_X}
    {lab}:
    v_lshlrev_b32 v{V_S1A}, 3, v{t+1}          ; r*8
    v_lshlrev_b32 v{V_S1A+1}, 5, v{t}          ; g*32
    """)


class Rec:
    def __init__(self, g):
        self.g = g
        self.items = []
        self.T = g.T

    def __call__(self, s):
        self.items.append(("v", s, None))

    def lab(self, b):
        return self.g.lab(b)

    def srd(self, s, lo, hi, size):
        self(f"s_mov_b32 s{s}, s{lo}\ns_and_b32 s{s+1}, s{hi}, 0xffff\ns_mov_b32 s{s+2}, {size}\ns_mov_b32 s{s+3}, 0x20000")


def setup_deferred(g0):
    g = Rec(g0)
    l = V_L
    t = 184
    a = S_STAMP + 20
    nw = g0.opts.get("now", 0)
    g.srd(S_W1, a, a + 1, 0 if nw & 1 else 1835008)
    g.srd(S_W3, a + 2, a + 3, 0 if nw & 1 else 1835008)
    g.srd(S_W2, a + 4, a + 5, 0 if nw & 2 else 1835008)
    g.srd(S_OUT, a + 6, a + 7, 2097152)
    g(f"""
    v_lshrrev_b32 v{t}, 4, v{l}
    v_and_b32 v{t+1}, 15, v{l}
    """)
    M = V_MK
    big = f2h(-1e30)
    g(f"""
    v_lshlrev_b32 v{t+2}, 2, v{t}
    v_sub_u32 v{t+3}, v{t+2}, v{t+1}           ; d0 = 4g - q (signed)
    s_cmp_eq_u32 s{S_TB}, 0
    s_cselect_b32 s0, {big}, 0
    s_mov_b32 s1, {big}
    v_mov_b32 v{t+5}, s1
    v_mov_b32 v{t+6}, s0
    v_mov_b32 v{M+16}, 0
    v_mov_b32 v{M+17}, 0
    """)
    for r in range(4):
        g(f"""
        v_add_u32 v{t+4}, {r+7}, v{t+3}
        v_cmp_gt_u32 vcc, 8, v{t+4}
        v_mov_b32 v{t+7}, {hex(0xffff << (16*(r&1)))}
        s_nop 0
        v_cndmask_b32 v{M+r}, v{t+5}, 0, vcc
        v_cndmask_b32 v{t+7}, 0, v{t+7}, vcc
        v_or_b32 v{M+16+r//2}, v{M+16+r//2}, v{t+7}
        v_add_u32 v{t+4}, {r}, v{t+3}
        v_cmp_lt_i32 vcc, 8, v{t+4}                ; d >= 9
        s_nop 1
        v_cndmask_b32 v{M+4+r}, v{t+5}, 0, vcc
        v_cndmask_b32 v{M+8+r}, v{t+5}, v{t+6}, vcc
        v_cmp_lt_i32 vcc, 0, v{t+4}                ; d >= 1
        v_cmp_gt_u32 s[6:7], 2, v{t}   ; c <= 7  <=> g < 2
        s_and_b64 vcc, vcc, s[6:7]
        s_nop 1
        v_cndmask_b32 v{M+12+r}, v{t+5}, v{t+6}, vcc
        """)
    g(f"""
    v_not_b32 v{M+18}, v{M+16}
    v_not_b32 v{M+19}, v{M+17}
    """)
    g(f"""
    s_lshl_b32 s0, s{S_KH}, 16
    s_lshl_b32 s1, s{S_C8}, 12
    s_add_u32 s0, s0, s1
    s_lshl_b32 s1, s{S_WAVE}, 10
    s_add_u32 s0, s0, s1
    s_add_u32 s0, s0, {WS_O}
    v_lshrrev_b32 v{t+2}, 5, v{l}
    v_lshlrev_b32 v{t+2}, 9, v{t+2}
    v_lshl_add_u32 v{t+2}, v{t+1}, 5, v{t+2}
    v_and_b32 v{t+3}, 1, v{t}
    v_lshl_add_u32 v{t+2}, v{t+3}, 4, v{t+2}
    v_add_u32 v{V_OS}, s0, v{t+2}
    """)
    g(f"""
    v_lshrrev_b32 v{t+2}, 3, v{l}
    v_lshlrev_b32 v{t+2}, 10, v{t+2}
    v_bfe_u32 v{t+3}, v{l}, 4, 1
    v_lshlrev_b32 v{t+3}, 2, v{t+3}
    v_and_b32 v{t+4}, 7, v{l}
    v_xor_b32 v{t+3}, v{t+3}, v{t+4}
    v_lshl_add_u32 v{t+2}, v{t+3}, 4, v{t+2}
    s_lshl_b32 s0, s{S_C2}, 7
    v_add_u32 v{V_D128}, s0, v{t+2}
    """)
    lab = g.lab("w13ok")
    g(f"""
    v_lshrrev_b32 v{t+2}, 2, v{l}
    v_mul_u32_u24 v{t+2}, 3584, v{t+2}
    v_and_b32 v{t+3}, 3, v{l}
    v_lshl_add_u32 v{t+2}, v{t+3}, 4, v{t+2}
    s_lshl_b32 s0, s{S_M}, 8
    s_lshl_b32 s1, s{S_WAVE}, 6
    s_add_u32 s0, s0, s1
    s_cmp_lt_u32 s{S_M}, 14
    s_cselect_b32 s0, s0, 0x40000000
    v_add_u32 v{V3_WD}, s0, v{t+2}
    """)
    g(f"""
    v_bfe_u32 v{t+3}, v{l}, 4, 1
    v_lshlrev_b32 v{t+2}, 5, v{t+3}
    v_and_b32 v{t+3}, 1, v{l}
    v_lshl_add_u32 v{t+2}, v{t+3}, 4, v{t+2}
    v_bfe_u32 v{t+3}, v{l}, 1, 1
    v_lshl_add_u32 v{t+2}, v{t+3}, 3, v{t+2}  ; (G&1)*32 + (c&1)*16 + (c>>1)*8
    v_lshrrev_b32 v{t+4}, 5, v{l}
    v_lshlrev_b32 v{t+4}, 3, v{t+4}
    v_bfe_u32 v{t+3}, v{l}, 2, 2
    v_add_u32 v{t+4}, v{t+4}, v{t+3}          ; 8h + r
    v_lshl_add_u32 v{t+5}, v{t+4}, 7, v{t+2}
    v_lshl_add_u32 v{t+6}, v{t+4}, 6, v{t+2}
    v_bfe_u32 v{t+3}, v{l}, 3, 1
    s_lshr_b32 s0, s{S_WAVE}, 1
    v_xor_b32 v{t+3}, s0, v{t+3}
    v_lshl_add_u32 v{V_TR}, v{t+3}, 6, v{t+5}
    v_xor_b32 v{V_TR+1}, 64, v{V_TR}
    s_lshl_b32 s0, s{S_WAVE}, 10
    s_add_u32 s0, s0, {L_MISC}
    v_add_u32 v{V3_TR}, s0, v{t+6}
    v_add_u32 v{V3_SW}, s0, v{V_L16}
    v_add_u32 v{V3_HB}, 65536, v{V_L16}
    """)
    g(f"""
    v_lshrrev_b32 v{t+2}, 3, v{l}
    v_lshlrev_b32 v{t+2}, 10, v{t+2}
    v_bfe_u32 v{t+3}, v{l}, 4, 1
    v_lshlrev_b32 v{t+3}, 1, v{t+3}
    v_and_b32 v{t+4}, 7, v{l}
    v_xor_b32 v{t+3}, v{t+3}, v{t+4}
    v_lshl_add_u32 v{t+2}, v{t+3}, 4, v{t+2}
    s_lshl_b32 s0, s{S_C2}, 7
    v_add_u32 v{V_RED}, s0, v{t+2}
    v_xor_b32 v{V_RED+1}, 64, v{V_RED}
    v_lshlrev_b32 v{t+2}, 10, v{t}
    v_bfe_u32 v{t+3}, v{l}, 2, 2
    v_lshl_add_u32 v{t+2}, v{t+3}, 7, v{t+2}
    v_bfe_u32 v{t+3}, v{l}, 3, 2
    v_lshl_add_u32 v{t+2}, v{t+3}, 5, v{t+2}
    v_and_b32 v{t+3}, 3, v{l}
    v_lshl_add_u32 v{t+2}, v{t+3}, 3, v{t+2}
    v_add_u32 v{V_RED+2}, {L_WO}, v{t+2}
    s_and_b32 s0, s{S_WAVE}, 1
    s_lshl_b32 s0, s0, 8
    v_lshlrev_b32 v{t+2}, 4, v{t+1}
    v_add_u32 v{t+2}, s0, v{t+2}
    v_lshl_add_u32 v{V_GA}, v{t}, 9, v{t+2}
    v_and_b32 v{t+3}, 1, v{t}
    v_lshl_add_u32 v{t+2}, v{t+3}, 10, v{t+2}
    v_lshrrev_b32 v{t+3}, 1, v{t}
    v_lshl_add_u32 v{V_RED+3}, v{t+3}, 9, v{t+2}
    s_lshl_b32 s0, s{S_TB}, 16
    s_lshl_b32 s1, s{S_WAVE}, 14
    s_add_u32 s0, s0, s1
    s_lshl_b32 s1, s{S_C2}, 7
    s_add_u32 s0, s0, s1
    v_lshlrev_b32 v{t+2}, 10, v{t+1}
    v_lshl_add_u32 v{t+2}, v{t}, 3, v{t+2}
    v_add_u32 v{V_XO}, s0, v{t+2}
    """)
    out = []
    for _, txt, _ in g.items:
        lines = [x.strip() for x in txt.split("\n") if x.strip() and not x.strip().startswith(";")]
        i = 0
        while i < len(lines):
            if lines[i].startswith("s_cmp"):
                out.append(("v", lines[i] + "\n" + lines[i + 1], None))
                i += 2
            else:
                out.append(("v", lines[i], None))
                i += 1
    return out


def touch(srd, nlines, pre, va="v2", off=0):
    o = f" offset:{off}" if off else ""
    return ("vm", f"""{pre}
    s_mov_b64 exec, {hex((1 << nlines) - 1)}
    buffer_load_dword v3, {va}, {sr(srd,4)}, s{S_T+3} offen{o}
    s_mov_b64 exec, -1""", "PF")


def touch_w13(i):
    pre = f"""s_and_b32 s{S_T+3}, s{S_XCD}, 3
    s_lshl_b32 s{S_T+3}, s{S_T+3}, 1
    s_lshr_b32 s{S_T+2}, s{S_XCD}, 2
    s_add_u32 s{S_T+3}, s{S_T+3}, s{S_T+2}
    s_lshl_b32 s{S_T+3}, s{S_T+3}, 7
    s_add_u32 s{S_T+3}, s{S_T+3}, s{S_IDXW}
    s_mul_i32 s{S_T+3}, s{S_T+3}, 896"""
    return touch(S_W1 if i % 2 == 0 else S_W3, 7, pre)


def touch_wo(j):
    pre = f"""s_add_u32 s{S_T+3}, s{S_XCD}, {j}
    s_and_b32 s{S_T+3}, s{S_T+3}, 1
    s_lshl_b32 s{S_T+3}, s{S_T+3}, 18
    s_lshl_b32 s{S_T+2}, s{S_IDXW}, 11
    s_add_u32 s{S_T+3}, s{S_T+3}, s{S_T+2}"""
    return touch(S_WO, 16, pre)


def touch_res3b_pre(g):
    g(f"""
    s_lshr_b32 s{S_T}, s2, 6
    s_mul_i32 s{S_T}, s{S_T}, 7
    s_add_u32 s{S_T}, s{S_T}, s{S_C8}
    s_cmp_gt_u32 s{S_C8}, 3
    s_subb_u32 s{S_T}, s{S_T}, 0
    s_lshl_b32 s{S_T}, s{S_T}, 2
    s_add_u32 s{S_T}, s{S_T}, s{S_WAVE}
    s_mul_i32 s{S_C}, s{S_T}, {14*1024}
    s_cmp_eq_u32 s{S_C8}, 3
    s_cselect_b32 s{S_C}, 0x40000000, s{S_C}
    v_lshlrev_b32 v{g.T+7}, 10, v{V_L}
    """)


def touch_res3b(g):
    return touch(S_WQKV, 14, f"s_mov_b32 s{S_T+3}, s{S_C}", f"v{g.T+7}", 384)


def touch_res3(g, srd, nlines):
    t = g.T + 7
    return touch(srd, nlines, f"v_lshlrev_b32 v{t}, 10, v{V_L}\ns_mul_i32 s{S_T+3}, s{S_IDXW}, {nlines*1024}", f"v{t}", 384)


def p1_dma_x(q):
    slot = q % 3
    out = []
    rowoff = [0, 0, 32 * 1024, 1024, 33 * 1024]
    for i in range(5):
        pre = f"s_add_u32 m0, s{S_LB}, {L_X + slot*20480 + i*4096}\n"
        if i == 0:
            pre += f"s_mov_b64 exec, s[{S_EXM}:{S_EXM+1}]\n"
            ins = pre + f"buffer_load_dwordx4 v{V_XD}, {sr(S_X,4)}, s{S_XOFF+q} offen{NT.get('x','')} lds\ns_mov_b64 exec, -1"
        else:
            pre += f"s_add_u32 s{S_T+1}, s{S_XOFF+q}, {rowoff[i]}\n"
            ins = pre + f"buffer_load_dwordx4 v{V_XD+1}, {sr(S_X,4)}, s{S_T+1} offen{NT.get('x','')} lds"
        out.append(("vm", ins, f"X{q}"))
    return out


def p1_dma_w(s):
    slot = s % 4
    q = s // 2
    out = []
    for hi in range(2):
        if s & 1:
            pre = f"s_sub_u32 s{S_T}, {64*3072 + hi*32*3072}, s{S_SW}\n"
        else:
            pre = f"s_add_u32 s{S_T}, {hi*32*3072}, s{S_SW}\n"
        pre += f"s_add_u32 m0, s{S_LB+1}, {L_W + slot*24576 + hi*4*3072}\n"
        pre += f"s_add_u32 s{S_T}, s{S_T}, s{S_WOFF+q}\n"
        for p in range(3):
            out.append(("vm", (pre if p == 0 else "") + f"buffer_load_dwordx4 v{V_WD}, {sr(S_WQKV,4)}, s{S_T} offen offset:{p*1024}{NT.get('w','')} lds", f"W{s}"))
    return out


def p1_read_frags(n):
    s = n // 2
    kk = n % 2
    buf = n & 1
    q = n // 4
    ks = n % 4
    slot = s % 4
    wa = V_WR + (slot // 2)
    ins = []
    for p in range(3):
        for half in range(2):
            d = V_AF + buf * 12 + p * 4 + half * 2
            off = (slot % 2) * 24576 + kk * 12288 + p * 1024 + half * 512
            ins.append(f"ds_read_b64_tr_b16 {vr(d,2)}, v{wa} offset:{off}")
    for t in range(5):
        d = V_BF + buf * 20 + t * 4
        ins.append(f"ds_read_b128 {vr(d,4)}, v{V_XR+ks} offset:{L_X + (q%3)*20480 + t*4096}")
    return ins


def acc1(p, t):
    return V_ACC + (p * 5 + t) * 4


def p1_mfmas(n):
    buf = n & 1
    ins = []
    for t in range(5):
        for p in range(3):
            a = acc1(p, t)
            c = "0" if n == 0 else vr(a, 4)
            w = vr(V_AF + buf * 12 + p * 4, 4)
            x = vr(V_BF + buf * 20 + t * 4, 4)
            if p == 2:
                w, x = x, w
            ins.append(f"v_mfma_f32_16x16x32_bf16 {vr(a,4)}, {w}, {x}, {c}")
    return ins


def poll_started_issue(g):
    t = g.T
    g(f"s_add_u32 s{S_T+4}, s{S_FLB}, {7*4096}")
    g.vm(f"buffer_load_dwordx2 {vr(t,2)}, v{V_S1A}, {sr(S_WS,4)}, s{S_T+4} offen sc1", "POLL0")


def poll_started_check(g):
    t = g.T
    lp = g.lab("pst")
    g.vwait("POLL0")
    g(f"""
    v_cmp_ne_u32 vcc, s{S_NONCE}, v{t}
    s_mov_b32 s{S_T+6}, 0
    s_cbranch_vccnz {lp}
    {lp}_ok:
    v_readfirstlane_b32 s{S_T+4}, v{t+1}
    s_lshl_b32 s{S_T+5}, s{S_KH}, 10
    s_add_u32 s{S_T+5}, s{S_T+5}, {WS_S1}
    v_cmp_ne_u32 vcc, s{S_T+4}, v{t+1}
    s_nop 0
    s_cmp_eq_u64 vcc, 0
    s_cselect_b32 s{S_FAST}, {0 if g.opts.get('slow') else 1}, 0
    """)
    g.cold.append(f"""{lp}:
    buffer_load_dwordx2 {vr(t,2)}, v{V_S1A}, {sr(S_WS,4)}, s{S_T+4} offen sc1
    s_add_u32 s{S_T+6}, s{S_T+6}, 1
    s_cmp_gt_u32 s{S_T+6}, {SPIN_MAX}
    s_waitcnt vmcnt(0)
    s_cbranch_scc1 {lp}_ok
    v_cmp_ne_u32 vcc, s{S_NONCE}, v{t}
    s_cbranch_vccnz {lp}
    s_branch {lp}_ok""")


def nm_dma_items():
    return [("vm", f"""s_lshl_b32 s{S_T+4}, s{S_WAVE}, 10
    s_add_u32 m0, s{S_T+4}, {L_MISC}
    s_add_u32 s{S_T+4}, s{S_T+4}, {L_MISC}
    buffer_load_dwordx4 v{V_L16}, {sr(S_WS,4)}, s{S_T+5} offen sc1 lds
    v_add_u32 v{V_S1A}, s{S_T+4}, v{V_S1A}
    v_add_u32 v{V_S1A+1}, s{S_T+4}, v{V_S1A+1}""", "NM")]


def nm_read_items(g):
    out = [("fn", lambda: g.vwait("NM"), None)]
    for tt in range(5):
        out.append(("ds", f"ds_read_b64 {vr(V_NM+2*tt,2)}, v{V_S1A} offset:{tt*128}", "NMR"))
    for tt in range(5):
        for h in range(2):
            out.append(("ds", f"ds_read_b128 {vr(V_NM2+8*tt+4*h,4)}, v{V_S1A+1} offset:{tt*128+16*h}", "NMR"))
    return out


def wo_dma_items():
    out = []
    for i in range(16):
        pre = ""
        if i == 0:
            pre = f"""s_lshl_b32 s{S_LB}, s{S_WAVE}, 14
            s_add_u32 s{S_LB}, s{S_LB}, {L_WO}
            s_lshl_b32 s{S_LB+1}, s{S_WAVE}, 17
            """
        out.append(("vm", pre + f"""s_add_u32 m0, s{S_LB}, {i*1024}
        s_add_u32 s{S_T+1}, s{S_LB+1}, {i*8192}
        buffer_load_dwordx4 v{V_RED+(i&1)}, {sr(S_WO,4)}, s{S_T+1} offen lds""", "WO"))
    return out


def wo_raw_items():
    out = []
    for i in range(16):
        out.append(("vm", f"""s_lshl_b32 s{S_T+1}, s{S_WAVE}, 17
        s_add_u32 s{S_T+1}, s{S_T+1}, {i*8192}
        buffer_load_dwordx4 {ar(192+4*i,4)}, v{V_RED+(i&1)}, {sr(S_WO,4)}, s{S_T+1} offen""", f"WOR{i}"))
    return out


def wo_write_items(g):
    t = g.T + 5
    out = [("v", f"""s_lshl_b32 s{S_T+1}, s{S_WAVE}, 14
    s_add_u32 s{S_T+1}, s{S_T+1}, {L_WO}
    v_add_u32 v{t}, s{S_T+1}, v{V_L16}""", None)]
    for i in range(16):
        out.append(("fn", lambda i=i: (g.vwait(f"WOR{i}"), g.ds(f"ds_write_b128 v{t}, {ar(192+4*i,4)} offset:{i*1024}", "WOW")), None))
    return out


def preread_items():
    return [("vm", f"""s_lshl_b32 s{S_T+3}, s{S_KH}, 16
            s_lshl_b32 s{S_T+2}, s{S_C8}, 12
            s_add_u32 s{S_T+3}, s{S_T+3}, s{S_T+2}
            s_lshl_b32 s{S_T+2}, s{S_WAVE}, 10
            s_add_u32 s{S_T+3}, s{S_T+3}, s{S_T+2}
            s_mov_b64 exec, 0xff
            buffer_load_dword v3, v2, {sr(S_WS,4)}, s{S_T+3} offen sc1{NT.get('pre','')}
            s_add_u32 s{S_T+3}, s{S_T+3}, 32768
            s_mov_b64 exec, -1""", "PF"),
            ("vm", f"""s_mov_b64 exec, 0xff
            buffer_load_dword v3, v2, {sr(S_WS,4)}, s{S_T+3} offen sc1{NT.get('pre','')}
            s_mov_b64 exec, -1""", "PF"),
            ("vm", f"""s_lshl_b32 s{S_T+3}, s{S_KH}, 13
            s_lshl_b32 s{S_T+2}, s{S_C2}, 8
            s_add_u32 s{S_T+3}, s{S_T+3}, s{S_T+2}
            s_lshl_b32 s{S_T+2}, s{S_WAVE}, 11
            s_add_u32 s{S_T+3}, s{S_T+3}, s{S_T+2}
            s_add_u32 s{S_T+3}, s{S_T+3}, {WS_ST}
            s_mov_b64 exec, 0x3
            buffer_load_dword v3, v2, {sr(S_WS,4)}, s{S_T+3} offen sc1{NT.get('pre','')}
            s_mov_b64 exec, -1""", "PF"),
            ("vm", f"""s_lshl_b32 s{S_T+2}, s{S_WAVE}, 12
            s_add_u32 s{S_T+3}, s{S_FLB}, s{S_T+2}
            s_mov_b64 exec, 3
            buffer_load_dword v3, v2, {sr(S_WS,4)}, s{S_T+3} offen sc1{NT.get('pre','')}
            s_add_u32 s{S_T+3}, s{S_T+3}, 16384
            s_mov_b64 exec, -1""", "PF"),
            ("vm", f"""s_cmp_eq_u32 s{S_WAVE}, 3
            s_cselect_b32 s{S_T+2}, 4096, 0
            s_add_u32 s{S_T+3}, s{S_T+3}, s{S_T+2}
            s_mov_b64 exec, 3
            buffer_load_dword v3, v2, {sr(S_WS,4)}, s{S_T+3} offen sc1{NT.get('pre','')}
            s_mov_b64 exec, -1""", "PF")]


def xres_items():
    return [("vm", f"buffer_load_dwordx2 {vr(V_XRES+2*a,2)}, v{V_XO}, {sr(S_X,4)}, 0 offen offset:{32*a}", "XR") for a in range(4)]


def p1_gemm(g):
    NSTART = g.opts.get('nstart', 3)
    stream = p1_dma_w(2) + p1_dma_x(1) + p1_dma_w(3) + p1_dma_x(2) + p1_dma_w(4) + p1_dma_w(5) + p1_dma_x(3) + p1_dma_w(6) + p1_dma_w(7)
    if g.opts.get("woraw", 0):
        stream = stream + wo_raw_items()
    earliest = {"W4": 1, "W5": 3, "X3": 3, "W6": 5, "W7": 7}
    span = g.opts.get("p1span", 128)
    dpos = {}
    for i, it in enumerate(stream):
        fast = g.opts.get("p1fast", 11)
        pos = i if i < fast else fast + (i - fast) * (span - fast) // (len(stream) - fast)
        pos = max(pos, 15 * earliest.get(it[2], 0))
        dpos.setdefault(pos // 15, []).append((pos % 15, it))
    nlast = max(dpos)
    g.vwait("X0", "W0")
    g.lwait_all()
    g("s_barrier")
    g.stamp("B0")
    for x in p1_read_frags(0):
        g.ds(x, "F0")
    for n in range(16):
        s = n // 2
        mf = p1_mfmas(n)
        if n == g.opts.get("nstat", 1):
            p1_stats_compute(g)
            nonce_poll_issue(g)
        g.lwait(f"F{n}")
        if n % 2 == 1 and n < 15:
            need = [f"W{s+1}"]
            if (s + 1) % 2 == 0:
                need.append(f"X{(s+1)//2}")
            if n == NSTART:
                nonce_check(g)
                need.append("S1ST")
            g.vwait(*need)
            g("s_barrier")
            g.stamp(f"B{s+1}")
            if n == NSTART:
                p1_started(g)
        slots = {}
        if n < 15:
            spread(slots, [("ds", x, f"F{n+1}") for x in p1_read_frags(n + 1)], 0, 11)
        for pos, it in dpos.get(n, []):
            slots.setdefault(pos, []).append(it)
        if n == 6 and not g.opts.get("two", 2):
            slots.setdefault(14, []).append(touch_res3(g, S_WO, 4))
        t0, tn = g.opts.get("t13s", 2), g.opts.get("t13n", 0)
        if t0 <= n < t0 + tn:
            slots.setdefault(12, []).append(touch_w13(n - t0))
        kb = g.opts.get("kbatch", 9)
        assert kb > nlast or g.opts.get("woraw", 0)
        if g.opts.get("woraw", 0) and 12 <= n <= 15:
            ww = wo_write_items(g)
            k0 = [0, 4, 8, 12, 17]
            spread(slots, ww[k0[n-12]:k0[n-11]], 2, 15)
        if n == kb - 2:
            slots.setdefault(1, []).append(("fn", lambda: poll_started_issue(g), None))
        if n == kb:
            slots.setdefault(0, []).append(("fn", lambda: poll_started_check(g), None))
            slots.setdefault(0, []).extend(nm_dma_items())
            spread(slots, xres_items(), 1, 8)
        if n == g.opts.get("kpre", kb):
            slots.setdefault(14, []).extend(preread_items()[(2 if g.opts.get("osc1", 0) else 0):])
        if n == g.opts.get("twok", 10) and g.opts.get("two", 2):
            spread(slots, [touch_wo(i) for i in range(2)], 3, 9)
        if n == g.opts.get("t13k", 10) and g.opts.get("t13e", 2):
            slots.setdefault(14, []).extend([touch_w13(i) for i in range(g.opts.get("t13e", 2))])
        if n == 15:
            spread(slots, nm_read_items(g), 0, 12)
        if n == 10:
            slots.setdefault(13, []).append(("v", f"""s_and_b32 s{S_KO}, s{S_XCD}, 3
            s_mul_i32 s{S_KO}, s{S_KO}, {4*16*3584}
            s_mul_i32 s{S_SG}, s{S_WAVE}, 6144
            s_add_u32 s{S_SG}, s{S_SG}, 20480
            s_mul_i32 s{S_SG+1}, s{S_WAVE}, 12288
            s_add_u32 s{S_SG+1}, s{S_SG+1}, 110592
            s_lshl_b32 s{S_SG+2}, s{S_WAVE}, 12""", None))
        if g.opts.get("tailbeg", 15) <= n <= g.opts.get("tailend", 15):
            spread(slots, [("fn", lambda: g.tick(), None)] * g.opts.get("tailrate", 2), 1, 13)
        sched(g, mf, slots)
    g.stamp("p1gemm")


def p1_attention(g):
    M = V_MK
    CS = 4
    QP = 96
    KP = 104
    VP = 114
    S = 128
    g("s_nop 4")
    for p in range(2):
        for r in range(4):
            g(f"v_mov_b32_dpp v{CS+p*4+r}, v{acc1(p,0)+r} row_newbcast:0 row_mask:0xf bank_mask:0xf")
    g(f"""
    v_mov_b32 v{CS+8}, v{acc1(2,0)}
    v_mov_b32 v{CS+9}, v{acc1(2,0)}
    s_mov_b32 s{S_C}, {f2h(0.25 * 1.4426950408889634)}
    s_nop 0
    v_permlane16_swap_b32 v{CS+8}, v{CS+9}
    s_nop 0
    v_mov_b32 v{CS+9}, v{CS+8}
    s_nop 1
    v_permlane32_swap_b32 v{CS+8}, v{CS+9}
    """)
    g.lwait("NMR")
    g.stamp("nm")

    def qk_fix(p, tt, dst):
        a = acc1(p, tt)
        nm = V_NM + 2 * tt
        return [[f"v_pk_fma_f32 {vr(a+2*h,2)}, {vr(CS+p*4+2*h,2)}, {vr(nm,2)}, {vr(a+2*h,2)} op_sel:[0,0,0] op_sel_hi:[1,0,1]" for h in range(2)],
                [f"v_pk_mul_f32 {vr(a+2*h,2)}, {vr(a+2*h,2)}, {vr(nm,2)} op_sel:[0,1] op_sel_hi:[1,1]" for h in range(2)],
                [f"v_cvt_pk_bf16_f32 v{dst+h}, v{a+2*h}, v{a+2*h+1}" for h in range(2)]]

    def v_fix(tt, dst):
        a = acc1(2, tt)
        nm = V_NM2 + 8 * tt
        return [[f"v_fmac_f32 v{a+r}, v{nm+2*r}, v{CS+8}" for r in range(4)],
                [f"v_mul_f32 v{a+r}, v{nm+2*r+1}, v{a+r}" for r in range(4)],
                [f"v_cvt_pk_bf16_f32 v{dst+h}, v{a+2*h}, v{a+2*h+1}" for h in range(2)]]

    def pipe(jobs, after=None):
        N = len(jobs)
        for i in range(N + 2):
            for st in range(3):
                j = i - st
                if 0 <= j < N:
                    for x in jobs[j][st]:
                        g(x)
            if i % g.opts.get("attick", 1) == 1 % g.opts.get("attick", 1):
                g.tick()
            if after and i in after:
                after[i]()

    jobs = [qk_fix(1, 0, KP), qk_fix(1, 1, KP + 2), qk_fix(0, 1, QP), qk_fix(1, 2, KP + 4), qk_fix(0, 2, QP + 2),
            qk_fix(1, 3, KP + 6), qk_fix(0, 3, QP + 4), qk_fix(1, 4, KP + 8), qk_fix(0, 4, QP + 6)]
    pipe(jobs)
    g("s_nop 1")
    prev = {1: (0, M + 8), 2: (1, M + 4), 3: (0, M + 12), 4: (3, M + 4)}
    for t in range(1, 5):
        pt, pm = prev[t]
        d = S + 8 * (t - 1)
        g(f"v_mfma_f32_16x16x16_bf16 {vr(d,4)}, {vr(KP+2*pt,2)}, {vr(QP+2*(t-1),2)}, {vr(pm,4)}")
        g(f"v_mfma_f32_16x16x16_bf16 {vr(d+4,4)}, {vr(KP+2*t,2)}, {vr(QP+2*(t-1),2)}, {vr(M,4)}")
    vdst = {0: VP, 1: VP + 2, 2: VP + 4, 3: VP + 8, 4: VP + 10}
    pipe([v_fix(tt, vdst[tt]) for tt in range(5)])
    g(f"v_mov_b32 v{VP+6}, v{VP}\nv_mov_b32 v{VP+7}, v{VP+1}")
    g.stamp("qk")
    g(f"""
    v_mov_b32 v{V2_AD}, v{V_RED+2}
    v_xor_b32 v{V2_AD+1}, 32, v{V_RED+2}
    v_xor_b32 v{V2_AD+2}, 64, v{V_RED+2}
    v_xor_b32 v{V2_AD+3}, 96, v{V_RED+2}
    """)
    pre = []
    if g.opts.get("earlyA", 0):
        assert not any(x[2] == "WO" for x in g.bg)
        g.vwait("WO")
        g("s_barrier")
        for ks in range(8):
            pre += p2_a_items(ks)
    g0 = g

    class GI:
        def __call__(self, s):
            for ln in s.split("\n"):
                if ln.strip():
                    g0(ln)
                    if pre and ln.strip().startswith("v_") and not ln.strip().startswith("v_mfma"):
                        emit_items(g0, [pre.pop(0)])

        def __getattr__(self, k):
            return getattr(g0, k)
    g = GI()
    X = 36
    for t in range(4):
        d = S + 8 * t
        for r in range(4):
            g(f"v_max_f32 v{d+r}, v{d+r}, v{d+4+r}")
    for t in range(4):
        d = S + 8 * t
        g(f"v_max3_f32 v{X+t}, v{d}, v{d+1}, v{d+2}")
    for t in range(4):
        d = S + 8 * t
        g(f"v_max_f32 v{X+t}, v{X+t}, v{d+3}")
    for op in ("v_permlane16_swap_b32", "v_permlane32_swap_b32"):
        for t in range(4):
            g(f"v_mov_b32 v{X+4+t}, v{X+t}")
        g.tick()
        g("s_nop 0")
        for t in range(4):
            g(f"{op} v{X+t}, v{X+4+t}")
        for t in range(4):
            g(f"v_max_f32 v{X+t}, v{X+t}, v{X+4+t}")
    for t in range(4):
        g(f"v_mul_f32 v{X+t}, {f2h(-0.25 * 1.4426950408889634)}, v{X+t}")
    P = 44
    O = 76
    va = {0: VP, 1: VP + 2, 2: VP + 6, 3: VP + 8}
    for t in range(4):
        d = S + 8 * t
        for r in range(4):
            g(f"v_fma_f32 v{d+r}, v{d+r}, s{S_C}, v{X+t}")
    for t in range(5):
        if t < 4:
            d = S + 8 * t
            for r in range(4):
                g(f"v_exp_f32 v{d+r}, v{d+r}")
        if t >= 1:
            d = S + 8 * (t - 1)
            p = P + 8 * (t - 1)
            if t == 4:
                g("s_nop 0")
            g(f"""
            v_cvt_pk_bf16_f32 v{p}, v{d}, v{d+1}
            v_cvt_pk_bf16_f32 v{p+1}, v{d+2}, v{d+3}
            v_and_b32 v{p+2}, v{M+18}, v{p}
            v_and_b32 v{p+3}, v{M+19}, v{p+1}
            v_and_b32 v{p+4}, v{M+16}, v{p}
            v_and_b32 v{p+5}, v{M+17}, v{p+1}
            """)
        g.tick()
        if t >= 2:
            tt = t - 2
            g(f"v_mfma_f32_16x16x16_bf16 {vr(S+8*tt+4,4)}, {vr(V_ONE2,2)}, {vr(P+8*tt,2)}, 0")
            g(f"v_mfma_f32_16x16x32_bf16 {vr(O+4*tt,4)}, {vr(va[tt],4)}, {vr(P+8*tt+2,4)}, 0")
    g("s_nop 0")
    tt = 3
    g(f"v_mfma_f32_16x16x16_bf16 {vr(S+8*tt+4,4)}, {vr(V_ONE2,2)}, {vr(P+8*tt,2)}, 0")
    g(f"v_mfma_f32_16x16x32_bf16 {vr(O+4*tt,4)}, {vr(va[tt],4)}, {vr(P+8*tt+2,4)}, 0")
    g.stamp("sm")
    OP = 96
    pos = {0: OP, 2: OP + 2, 1: OP + 4, 3: OP + 6}
    for tt in (0, 1):
        g(f"v_rcp_f32 v{S+8*tt+4}, v{S+8*tt+4}")
    for tt in (0, 1):
        for h in range(2):
            g(f"v_pk_mul_f32 {vr(O+4*tt+2*h,2)}, {vr(O+4*tt+2*h,2)}, {vr(S+8*tt+4,2)} op_sel:[0,0] op_sel_hi:[1,0]")
    g(f"v_rcp_f32 v{S+8*2+4}, v{S+8*2+4}")
    for tt in (0, 1):
        for h in range(2):
            g(f"v_cvt_pk_bf16_f32 v{pos[tt]+h}, v{O+4*tt+2*h}, v{O+4*tt+2*h+1}")
    g(f"v_rcp_f32 v{S+8*3+4}, v{S+8*3+4}")
    for tt in (2, 3):
        for h in range(2):
            g(f"v_pk_mul_f32 {vr(O+4*tt+2*h,2)}, {vr(O+4*tt+2*h,2)}, {vr(S+8*tt+4,2)} op_sel:[0,0] op_sel_hi:[1,0]")
    for tt in (2, 3):
        for h in range(2):
            g(f"v_cvt_pk_bf16_f32 v{pos[tt]+h}, v{O+4*tt+2*h}, v{O+4*tt+2*h+1}")
    g(f"""
    s_mov_b32 s{S_T}, 32768
    v_permlane16_swap_b32 v{OP}, v{OP+2}
    v_permlane16_swap_b32 v{OP+1}, v{OP+3}
    v_permlane16_swap_b32 v{OP+4}, v{OP+6}
    v_permlane16_swap_b32 v{OP+5}, v{OP+7}
    """)
    if g.opts.get("osc1", 0):
        g.vm(f"buffer_store_dwordx4 {vr(OP,4)}, v{V_OS}, {sr(S_WS,4)}, 0 offen sc1", "OST")
        g.vm(f"buffer_store_dwordx4 {vr(OP+4,4)}, v{V_OS}, {sr(S_WS,4)}, s{S_T} offen sc1", "OST")
    else:
        g.store([f"buffer_store_dwordx4 {vr(OP,4)}, v{V_OS}, {sr(S_WS,4)}, 0 offen",
                 f"buffer_store_dwordx4 {vr(OP+4,4)}, v{V_OS}, {sr(S_WS,4)}, s{S_T} offen"], "OST")


def signal(g, phase, tags):
    t = g.T
    g(f"""
    v_mov_b32 v{t}, {phase*4096}
    v_mov_b32 v{t+1}, s{S_NONCE}
    """)
    g.vwait(*tags)
    g("s_mov_b64 exec, 1")
    g.store([f"buffer_store_dword v{t+1}, v{t}, {sr(S_WS,4)}, s{S_FLO} offen"], "FLAG")
    g("s_mov_b64 exec, -1")


def poll_w0(g, phase, mask, wave=0):
    t = g.T
    lp = g.lab("pw")
    g(f"""
    s_cmp_lg_u32 s{S_WAVE}, {wave}
    s_cbranch_scc1 {lp}_ok
    s_mov_b32 s{S_T+6}, 0
    s_add_u32 s{S_T+2}, s{S_FLB}, {phase*4096}
    {lp}:
    buffer_load_dword v{t+2}, v{V_L4}, {sr(S_WS,4)}, s{S_T+2} offen sc1
    s_add_u32 s{S_T+6}, s{S_T+6}, 1
    s_cmp_gt_u32 s{S_T+6}, {SPIN_MAX}
    s_waitcnt vmcnt(0)
    s_cbranch_scc1 {lp}_ok
    v_cmp_ne_u32 vcc, s{S_NONCE}, v{t+2}
    s_and_b64 vcc, vcc, s[{mask}:{mask+1}]
    s_cbranch_vccnz {lp}
    {lp}_ok:
    """)


def poll_issue(g, phase, tag, r=0):
    t = g.T + r
    g(f"s_add_u32 s{S_T+2}, s{S_FLB}, {phase*4096}")
    g.vm(f"buffer_load_dword v{t+2}, v{V_L4}, {sr(S_WS,4)}, s{S_T+2} offen sc1", tag)


def poll_check(g, phase, tag, mask, r=0, slp=False, inline=False):
    t = g.T + r
    lp = g.lab("poll")
    g.vwait(tag)
    if inline:
        g(f"""
        s_mov_b32 s{S_T+6}, 0
        s_add_u32 s{S_T+2}, s{S_FLB}, {phase*4096}
        {lp}:
        v_cmp_ne_u32 vcc, s{S_NONCE}, v{t+2}
        s_add_u32 s{S_T+6}, s{S_T+6}, 1
        s_and_b64 vcc, vcc, s[{mask}:{mask+1}]
        s_cbranch_vccz {lp}_ok
        {"s_sleep %d" % g.opts.get("psl", 0) if g.opts.get("psl", 0) else ""}
        buffer_load_dword v{t+2}, v{V_L4}, {sr(S_WS,4)}, s{S_T+2} offen sc1
        s_cmp_gt_u32 s{S_T+6}, {SPIN_MAX}
        s_waitcnt vmcnt(0)
        s_cbranch_scc0 {lp}
        {lp}_ok:
        """)
        return
    g(f"""
    v_cmp_ne_u32 vcc, s{S_NONCE}, v{t+2}
    s_mov_b32 s{S_T+6}, 0
    s_and_b64 vcc, vcc, s[{mask}:{mask+1}]
    s_cbranch_vccnz {lp}
    {lp}_ok:
    """)
    g.cold.append(f"""{lp}:
    {"s_sleep 4" if slp else ""}
    s_add_u32 s{S_T+2}, s{S_FLB}, {phase*4096}
    s_add_u32 s{S_T+6}, s{S_T+6}, 1
    buffer_load_dword v{t+2}, v{V_L4}, {sr(S_WS,4)}, s{S_T+2} offen sc1
    s_cmp_gt_u32 s{S_T+6}, {SPIN_MAX}
    s_waitcnt vmcnt(0)
    s_cbranch_scc1 {lp}_ok
    v_cmp_ne_u32 vcc, s{S_NONCE}, v{t+2}
    s_and_b64 vcc, vcc, s[{mask}:{mask+1}]
    s_cbranch_vccnz {lp}
    s_branch {lp}_ok""")


def ko_adv(u):
    lo = (u // 16) * 256 * 3584
    hi = lo + 256 * 3584
    t = f"""s_add_u32 s{S_KO}, s{S_KO}, {16*3584}
    s_cmp_lt_u32 s{S_KO}, {hi}
    s_cselect_b32 s{S_KO}, s{S_KO}, {lo}"""
    if u == 15:
        t += f"\ns_add_u32 s{S_KO}, s{S_KO}, {256*3584}"
    return t


def w13_load_items(u):
    return [("vm", f"buffer_load_dwordx4 {ar(8*u,4)}, v{V3_WD}, {sr(S_W1,4)}, s{S_KO} offen", f"W13_{u}"),
            ("vm", f"""buffer_load_dwordx4 {ar(8*u+4,4)}, v{V3_WD}, {sr(S_W3,4)}, s{S_KO} offen
            {ko_adv(u)}""", f"W13_{u}")]


S_SG = 62
NSLOT = 11


def slot_addr(k):
    if k < 3:
        return S_SG, k * 2048, 0
    if k < 9:
        return S_SG + 1, (k - 3) * 2048, 1
    return S_SG + 2, (k - 9) * 2048, 2


def w13_dma_items(u):
    sb, off, _ = slot_addr(u % NSLOT)
    return [("vm", f"""s_add_u32 m0, s{sb}, {off}
            s_nop 0
            buffer_load_dwordx4 v{V3_WD}, {sr(S_W1,4)}, s{S_KO} offen lds""", f"W13_{u}"),
            ("vm", f"""s_add_u32 m0, s{sb}, {off+1024}
            s_nop 0
            buffer_load_dwordx4 v{V3_WD}, {sr(S_W3,4)}, s{S_KO} offen lds
            {ko_adv(u)}""", f"W13_{u}")]


V_SGA = 24


def w13_stage_setup(g):
    g(f"""
    s_lshl_b32 s{S_T}, s{S_WAVE}, 10
    s_add_u32 s{S_T}, s{S_T}, {L_MISC}
    v_subrev_u32 v{V_SGA+2}, s{S_T}, v{V3_TR}
    v_add_u32 v{V_SGA}, s{S_SG}, v{V_SGA+2}
    v_add_u32 v{V_SGA+1}, s{S_SG+1}, v{V_SGA+2}
    v_add_u32 v{V_SGA+2}, s{S_SG+2}, v{V_SGA+2}
    """)


def w13_pick_items(g, u):
    _, off, r = slot_addr(u % NSLOT)
    out = [("fn", lambda: g.vwait(f"W13_{u}"), None)]
    for m in range(2):
        for half in range(2):
            out.append(("ds", f"ds_read_b64_tr_b16 {ar(8*u+4*m+2*half,2)}, v{V_SGA+r} offset:{off + m*1024 + half*256}", f"A3_{u}"))
    return out


def w13_xpose_items(g, u):
    out = [("fn", lambda: g.vwait(f"W13_{u}"), None)]
    for m in range(2):
        out.append(("ds", f"ds_write_b128 v{V3_SW}, {ar(8*u+4*m,4)}", f"A3_{u}"))
        for half in range(2):
            out.append(("ds", f"ds_read_b64_tr_b16 {ar(8*u+4*m+2*half,2)}, v{V3_TR} offset:{half*256}", f"A3_{u}"))
    return out


V2_B = 32
V2_A = 96
V2_ACC = 240
V2_AD = 28
L_HKX = 159744 - 8192


def unpack_bf16(g, dst, src, n=8):
    for d in range(n):
        g(f"v_lshlrev_b32 v{dst+2*d}, 16, v{src+d}")
        g(f"v_and_b32 v{dst+2*d+1}, 0xffff0000, v{src+d}")


def p2_areg(ks, a, n=4, off=0):
    if ks < 8:
        return ar(128 + (ks * 4 + a) * 4 + off, n)
    return vr(V2_A + ((ks - 8) * 4 + a) * 4 + off, n)


def p2_a_items(ks, ad=None):
    ad = V2_AD if ad is None else ad
    out = []
    for a in range(4):
        for half in range(2):
            out.append(("ds", f"ds_read_b64_tr_b16 {p2_areg(ks, a, 2, 2*half)}, v{ad+a} offset:{ks*4096 + half*512}", f"A2_{ks}"))
    return out


def p2_pre(g):
    A = S_A
    g(f"""
    s_cmp_lt_u32 s{S_M}, 8
    s_cselect_b32 s6, -1, 0
    s_cselect_b32 s7, 0, -1
    s_lshl_b32 s{S_T}, s{S_KH}, 16
    s_lshr_b32 s{S_T+1}, s{S_WAVE}, 1
    s_lshl_b32 s{S_T+1}, s{S_T+1}, 15
    s_add_u32 s{S_T}, s{S_T}, s{S_T+1}
    s_add_u32 s{A}, s{S_T}, {WS_O}
    s_lshl_b32 s{S_T+1}, s{S_C2}, 12
    s_add_u32 s{S_A2}, s{A}, s{S_T+1}
    s_lshl_b32 s{S_A2+1}, s{S_KH}, 13
    s_lshl_b32 s{S_T+1}, s{S_WAVE}, 11
    s_add_u32 s{S_A2+1}, s{S_A2+1}, s{S_T+1}
    s_add_u32 s{S_A2+1}, s{S_A2+1}, {WS_ST}
    s_lshl_b32 s{S_T+1}, s{S_C2}, 8
    s_add_u32 s{S_A2+2}, s{S_A2+1}, s{S_T+1}
    """)
    g.vwait("XR")
    for d in range(7, -1, -1):
        g(f"v_and_b32 v{V2_ACC+2*d+1}, 0xffff0000, v{V_XRES+d}")
        g(f"v_lshlrev_b32 v{V2_ACC+2*d}, 16, v{V_XRES+d}")


def p2_main(g):
    t = g.T
    A = S_A
    def oload(ks):
        if ks % 2 == 0 and ks:
            g(f"s_add_u32 s{A}, s{A}, 4096")
        g.vm(f"buffer_load_dwordx4 {vr(V2_B+4*ks,4)}, v{V_GA}, {sr(S_WS,4)}, s{A} offen offset:{(ks%2)*2048} sc1", f"B2_{ks}")
    PFO = g.opts.get("pfo", 8)
    late = g.opts.get("_late", [])
    for ks in range(PFO):
        oload(ks)
        emit_items(g, late[:4])
        late = late[4:]
    for ks in range(16):
        g.vwait(f"B2_{ks}")
        g.lwait(f"A2_{ks}")
        if ks + PFO < 16:
            oload(ks + PFO)
        for a in range(4):
            acc = V2_ACC + 4 * a
            g(f"v_mfma_f32_16x16x32_bf16 {vr(acc,4)}, {p2_areg(ks, a)}, {vr(V2_B+4*ks,4)}, {vr(acc,4)}")
            emit_items(g, late[:2])
            late = late[2:]
            assert not any(x[2] == f"A2_{ks+1}" for x in late) or a < 3
        if ks >= 16 - PFO:
            g.tick(1 if ks < 14 else 2)
    g.stamp("p2mfma")
    e = 32
    g(f"""
    v_mov_b32 v{e+2}, s{S_NONCE}
    v_mov_b32 v{e+3}, 0
    s_nop 5
    """)
    H = 40
    for d in range(8):
        g(f"v_cvt_pk_bf16_f32 v{H+d}, v{V2_ACC+2*d}, v{V2_ACC+2*d+1}")
    g(f"v_dot2_f32_bf16 v{e}, v{H}, s{S_ONES}, 0")
    g(f"v_dot2_f32_bf16 v{e+1}, v{H}, v{H}, 0")
    g(f"v_dot2_f32_bf16 v{e+4}, v{H+1}, s{S_ONES}, 0")
    g(f"v_dot2_f32_bf16 v{e+5}, v{H+1}, v{H+1}, 0")
    for d in range(2, 8):
        oo = 4 * (d & 1)
        g(f"v_dot2c_f32_bf16 v{e+oo}, s{S_ONES}, v{H+d}")
        g(f"v_dot2c_f32_bf16 v{e+oo+1}, v{H+d}, v{H+d}")

    def xred(x, y):
        for op in ("v_permlane16_swap_b32", "v_permlane32_swap_b32"):
            g(f"""
            v_mov_b32 v{y}, v{x}
            v_mov_b32 v{y+1}, v{x+1}
            s_nop 0
            {op} v{x}, v{y}
            {op} v{x+1}, v{y+1}
            v_pk_add_f32 {vr(x,2)}, {vr(x,2)}, {vr(y,2)}
            """)
    g(f"""
    v_permlane16_swap_b32 v{H}, v{H+2}
    v_permlane16_swap_b32 v{H+1}, v{H+3}
    v_permlane16_swap_b32 v{H+4}, v{H+6}
    v_pk_add_f32 {vr(e,2)}, {vr(e,2)}, {vr(e+4,2)}
    v_permlane16_swap_b32 v{H+5}, v{H+7}
    """)
    xred(e, e + 4)
    g("s_mov_b64 exec, 0xffff")
    g.store([f"buffer_store_dwordx4 {vr(e,4)}, v{V_L16}, {sr(S_WS,4)}, s{S_A2+2} offen"], "SST")
    g("s_mov_b64 exec, -1")
    g.stamp("p2stat")
    U = 48
    unpack_bf16(g, U, H)
    hk_exchange_write(g)
    p34_pre(g, 0)
    lp = g.lab("sg")
    q = 64
    g(f"""
    s_mov_b32 s{S_T+6}, 0
    {lp}:
    buffer_load_dwordx4 {vr(q,4)}, v{V_L16}, {sr(S_WS,4)}, s{S_A2+1} offen sc1
    buffer_load_dwordx4 {vr(q+4,4)}, v{V_L16}, {sr(S_WS,4)}, s{S_A2+1} offen offset:1024 sc1
    s_add_u32 s{S_T+6}, s{S_T+6}, 1
    s_cmp_gt_u32 s{S_T+6}, {SPIN_MAX}
    s_waitcnt vmcnt(0)
    s_cbranch_scc1 {lp}_x
    v_cmp_ne_u32 vcc, s{S_NONCE}, v{q+2}
    v_cmp_ne_u32 s[{S_T+3}:{S_T+4}], s{S_NONCE}, v{q+6}
    s_or_b64 vcc, vcc, s[{S_T+3}:{S_T+4}]
    s_cbranch_vccnz {lp}
    {lp}_x:
    v_pk_add_f32 {vr(q,2)}, {vr(q,2)}, {vr(q+4,2)}
    """)
    g.vq = []
    g.stamp("p2gath")
    emit_items(g, g.opts.get("_picks", []))
    xred(q, q + 2)
    g(f"""
    v_mul_f32 v{q+4}, {f2h(-1.0/512)}, v{q}
    v_mul_f32 v{q+5}, {f2h(1.0/512)}, v{q+1}
    v_fma_f32 v{q+5}, -v{q+4}, v{q+4}, v{q+5}
    v_max_f32 v{q+5}, 0, v{q+5}
    v_add_f32 v{q+5}, {f2h(1e-5)}, v{q+5}
    v_rsq_f32 v{q+5}, v{q+5}
    s_nop 0
    v_mul_f32 v{q+5}, {f2h(LOG2E)}, v{q+5}
    v_mul_f32 v{q+4}, v{q+4}, v{q+5}
    """)
    for d in range(8):
        a = U + 2 * d
        g(f"v_pk_fma_f32 {vr(a,2)}, {vr(a,2)}, {vr(q+4,2)}, {vr(q+4,2)} op_sel:[0,1,0] op_sel_hi:[1,1,0]")
    for d in range(8):
        g(f"v_cvt_pk_bf16_f32 v{q+8+d}, v{U+2*d}, v{U+2*d+1}")
    g.store([f"buffer_store_dwordx4 {vr(q+8,4)}, v{V_RED+3}, {sr(S_WS,4)}, s{S_A2} offen",
             f"buffer_store_dwordx4 {vr(q+12,4)}, v{V_RED+3}, {sr(S_WS,4)}, s{S_A2} offen offset:2048"], "HST")


def hk_exchange_write(g):
    t = g.T
    g(f"""
    s_cmp_lt_u32 s{S_WAVE}, 2
    s_mov_b32 s{S_T}, {L_MISC}
    s_cselect_b32 s{S_T}, 16384, s{S_T}
    v_add_u32 v{t+4}, s{S_T}, v{V_RED+3}
    """)
    g.ds(f"ds_write_b128 v{t+4}, {vr(40,4)}", "HKW")
    g.ds(f"ds_write_b128 v{t+4}, {vr(44,4)} offset:2048", "HKW")


def hk_exchange_read(g):
    t = g.T
    g(f"""
    s_lshl_b32 s{S_T}, s{S_WAVE}, 10
    v_add_u32 v{t+4}, s{S_T}, v{V_L16}
    """)
    g.ds(f"ds_read_b128 {vr(V_HK,4)}, v{t+4} offset:16384", "HKR")
    g.ds(f"ds_read_b128 {vr(V_HK+4,4)}, v{V3_SW}", "HKR")


V3_ACC = 32
V3_B = 160
V3_E = 192
K1 = 16
TORD = [0, 1, 2, 3]
HPH = [2, 3, 6, 8]
L_SP = 131072


S_A3 = 58


def p3_pre(g):
    A = S_A3
    g(f"""
    s_cmp_lt_u32 s{S_M}, 7
    s_cselect_b32 s{S_T+2}, 2, 0
    s_mov_b32 s{A}, 0
    s_lshl_b32 s{A+1}, s{S_WAVE}, 15
    s_xor_b32 s{S_T}, s{S_WAVE}, s{S_T+2}
    s_lshl_b32 s{S_T}, s{S_T}, 15
    s_add_u32 s{A}, s{A}, s{S_T}
    s_add_u32 s{A}, s{A}, {WS_H}
    s_and_b32 s{S_K2}, s{S_XCD}, 3
    s_lshl_b32 s{S_K2}, s{S_K2}, 12
    s_mov_b32 s{S_C}, {f2h(LOG2E*LOG2E)}
    s_mov_b32 s{A+2}, 0
    s_lshl_b32 s{S_T+1}, s{S_M}, 13
    s_add_u32 s{A+2}, s{A+2}, s{S_T+1}
    s_lshl_b32 s{S_T+1}, s{S_WAVE}, 11
    s_add_u32 s{A+2}, s{A+2}, s{S_T+1}
    s_add_u32 s{A+2}, s{A+2}, {WS_HH}
    s_mul_i32 s{S_T}, s{S_T+2}, 114688
    s_sub_u32 s0, s{A+2}, s{S_T}
    s_add_u32 s{A+2}, s{A+2}, s{S_T}
    """)


def p3_h_items(b):
    A = S_A3
    out = []
    for i in range(4):
        pre = f"s_add_u32 m0, s{A+1}, {b*4096}\n"
        post = ""
        pre += f"s_add_u32 s{A+3}, s{A}, s{S_K2}\n" if i == 0 else "s_nop 0\n"
        if i == 3:
            post = f"\ns_add_u32 s{S_K2}, s{S_K2}, 4096\ns_and_b32 s{S_K2}, s{S_K2}, 16383"
            if b == 3:
                post += f"\ns_add_u32 s{A}, s{A}, 16384"
        out.append(("vm", pre + f"buffer_load_dwordx4 v{V_L16}, {sr(S_WS,4)}, s{A+3} offen offset:{i*1024} sc1 lds" + post, f"H{b}"))
    return out


def p3_epi_sched(j):
    A = V3_ACC + 32 * j
    e = V3_E
    o = V3_E + 16
    st = [
        lambda r: f"v_exp_f32 v{e+r}, -v{A+r}",
        lambda r: f"v_mul_f32 v{A+r}, v{A+r}, v{A+16+r}",
        lambda r: f"v_fma_f32 v{e+r}, v{e+r}, s{S_C}, s{S_C}",
        lambda r: f"v_rcp_f32 v{e+r}, v{e+r}",
        lambda r: f"v_mul_f32 v{A+r}, v{A+r}, v{e+r}",
        lambda r: (f"v_cvt_pk_bf16_f32 v{o+r//2}, v{A+r-1}, v{A+r}" if r % 2 else None),
    ]
    skew = [0, 0, 1, 2, 3, 4]
    out = []
    for step in range(16 + 5):
        for si, f in enumerate(st):
            r = step - skew[si]
            if 0 <= r < 16:
                x = f(r)
                if x:
                    out.append(("v", x, None))
    return out


def p3_hh_store(g, j):
    o = V3_E + 16
    g(f"s_add_u32 s{S_T}, s{S_A3+2 if j < 2 else 0}, {j*114688}")
    g.vm(f"buffer_store_dwordx4 {vr(o,4)}, v{V_L16}, {sr(S_WS,4)}, s{S_T} offen sc1", f"HHST{j}")
    g.vm(f"buffer_store_dwordx4 {vr(o+4,4)}, v{V_L16}, {sr(S_WS,4)}, s{S_T} offen offset:1024 sc1", f"HHST{j}")


def hh_touch(g, j):
    if not g.opts.get("hht", 0) >> j & 1:
        return
    g.vwait(f"HHST{j}")
    emit_items(g, [touch(S_WS, 16, f"s_add_u32 s{S_T+3}, s{S_A3+2 if j < 2 else 0}, {j*114688}")])


V4_AD = 4
V4_B = 32
NB4 = 16
V4_ACC = 96
V4_R = 240
S_FR = 40
S_X4 = 8
S_M4 = 16


def p34_pre(g, part):
    d = V4_AD
    l = V_L
    if part == 1:
        g(f"""
        s_mov_b64 s[{S_A2+2}:{S_A2+3}], 0x7f
        s_lshl_b64 s[{S_A2+2}:{S_A2+3}], s[{S_A2+2}:{S_A2+3}], s1
        s_mov_b32 s{S_A2}, -1
        s_mov_b32 s{S_A2+1}, 0x00ffffff
        v_add_u32 v{V_RED+3}, s{S_LB}, v{V_L16}
        """)
        return
    g(f"""
    s_lshr_b32 s{S_T+2}, s{S_M}, 3              ; kh
    s_lshl_b32 s{S_T+3}, s{S_T+2}, 2
    s_add_u32 s{S_T+3}, s{S_T+3}, s{S_WAVE}     ; K eighth
    s_mul_i32 s{S_W2O}, s{S_T+3}, {224*1024}
    s_lshl_b32 s{S_LB}, s{S_WAVE}, 15
    s_lshl_b32 s{S_LB+1}, s{S_WAVE}, 13
    s_add_u32 s{S_LB+1}, s{S_LB+1}, {L_SP}
    s_mul_i32 s{S_T+1}, s{S_T+3}, {14*1024}
    s_add_u32 s{S_T+1}, s{S_T+1}, {WS_HH}
    s_mul_i32 s{S_T}, s{S_KH}, {2*114688}
    s_add_u32 s{S_X4+2}, s{S_T}, s{S_T+1}
    s_add_u32 s{S_X4+3}, s{S_X4+2}, 114688
    s_xor_b32 s{S_T+4}, s{S_KH}, 1
    s_mul_i32 s{S_T}, s{S_T+4}, {2*114688}
    s_add_u32 s{S_X4}, s{S_T}, s{S_T+1}
    s_add_u32 s{S_X4+1}, s{S_X4}, 114688
    s_mul_i32 s1, s{S_T+3}, 7
    s_xor_b32 s{S_T}, s{S_M}, 8
    s_lshl_b32 s{S_T}, s{S_T}, 2
    s_add_u32 s{S_T}, s{S_T}, s{S_WAVE}
    s_mov_b64 s[{S_M4}:{S_M4+1}], 1
    s_lshl_b64 s[{S_M4}:{S_M4+1}], s[{S_M4}:{S_M4+1}], s{S_T}
    s_lshl_b32 s{S_T}, s{S_C2}, 12
    s_lshl_b32 s{S_T+1}, s{S_WAVE}, 10
    s_add_u32 s{S_T}, s{S_T}, s{S_T+1}
    s_add_u32 s{S_T}, s{S_T}, {WS_X}
    s_lshl_b32 s{S_T+1}, s{S_T+4}, 16
    s_add_u32 s{S_M4+2}, s{S_T}, s{S_T+1}
    s_lshl_b32 s{S_T+1}, s{S_KH}, 16
    s_add_u32 s{S_M4+3}, s{S_T}, s{S_T+1}
    s_and_b32 s{S_T}, s{S_WAVE}, 1
    s_lshl_b32 s{S_T}, s{S_T}, 5
    v_xor_b32 v{d}, s{S_T}, v{V_TR}
    v_xor_b32 v{d+1}, 64, v{d}
    v_add_u32 v{d+2}, s{S_LB}, v{d}
    v_add_u32 v{d+3}, s{S_LB}, v{d+1}
    v_add_u32 v{d+4}, s{S_LB+1}, v{d}
    v_add_u32 v{d+5}, s{S_LB+1}, v{d+1}
    s_sub_u32 s{S_T}, s{S_LB+1}, s{S_SG}
    v_add_u32 v{d+6}, s{S_T}, v{V_SGA}          ; ring (w13 image)
    s_lshl_b32 s{S_T}, s{S_TB}, 16
    s_lshl_b32 s{S_T+1}, s{S_C2}, 7
    s_add_u32 s{S_T}, s{S_T}, s{S_T+1}
    s_lshl_b32 s{S_T+1}, s{S_WAVE}, 5
    s_add_u32 s{S_T}, s{S_T}, s{S_T+1}
    v_and_b32 v{d+7}, 31, v{l}
    v_lshlrev_b32 v{d+7}, 10, v{d+7}
    v_lshrrev_b32 v{d+8}, 5, v{l}
    v_lshl_add_u32 v{d+7}, v{d+8}, 4, v{d+7}
    v_add_u32 v{d+7}, s{S_T}, v{d+7}
    v_add_u32 v{d+8}, 7168, v{V_D128}           ; second half of a w2 kstep: +8192 global, offset:1024 adds the rest
    v_add_u32 v{d+9}, 32768, v{V_L16}
    s_sub_u32 s{S_T}, s{S_LB}, s{S_SG}
    v_add_u32 v{d+10}, s{S_T}, v{V_SGA}         ; own tile region (w13 image)
    s_cmp_eq_u32 s{S_WAVE}, 3
    s_cselect_b32 s{S_FR}, 2048, s{S_LB}
    s_sub_u32 s{S_T}, s{S_FR}, s{S_SG}
    v_add_u32 v{d+11}, s{S_T}, v{V_SGA}
    v_add_u32 v27, s{S_FR}, v{d}
    v_add_u32 v28, s{S_FR}, v{d+1}
    """)
    for i in range(1, 4):
        g(f"""
        s_xor_b32 s{S_T}, s{S_WAVE}, {i%4}
        s_lshl_b32 s{S_T}, s{S_T}, 15
        s_add_u32 s{S_T}, s{S_T}, {((i-1) if i < 4 else 0)*2048}
        v_add_u32 v{V_RED+i-1}, s{S_T}, v{V_L16}
        """)


def w2_dma_items(ks, sb, off):
    return [("vm", f"""s_add_u32 m0, s{sb}, {off}
            s_add_u32 s{S_T+5}, s{S_W2O}, {ks*16*1024}
            buffer_load_dwordx4 v{V_D128}, {sr(S_W2,4)}, s{S_T+5} offen lds""", f"W2_{ks}"),
            ("vm", f"buffer_load_dwordx4 v{V4_AD+8}, {sr(S_W2,4)}, s{S_T+5} offen offset:1024 lds", f"W2_{ks}")]


def w2_pick_items(g, ks, base, off):
    out = [("fn", lambda: g.vwait(f"W2_{ks}"), None)]
    for ia in range(2):
        for half in range(2):
            out.append(("ds", f"ds_read_b64_tr_b16 {ar(8*ks+4*ia+2*half,2)}, v{base+ia} offset:{off + half*512}", f"A4_{ks}"))
    return out


def w13_ring_dma(u, off, sb=S_LB + 1):
    return [("vm", f"""s_add_u32 m0, s{sb}, {off}
            s_nop 0
            buffer_load_dwordx4 v{V3_WD}, {sr(S_W1,4)}, s{S_KO} offen lds
            s_add_u32 m0, s{sb}, {off+1024}""", f"W13_{u}"),
            ("vm", f"""buffer_load_dwordx4 v{V3_WD}, {sr(S_W3,4)}, s{S_KO} offen lds
            {ko_adv(u)}""", f"W13_{u}")]


def w13_ring_pick(g, u, off, va=V4_AD + 6):
    out = [("fn", lambda: g.vwait(f"W13_{u}"), None)]
    for m in range(2):
        for half in range(2):
            out.append(("ds", f"ds_read_b64_tr_b16 {ar(8*u+4*m+2*half,2)}, v{va} offset:{off + m*1024 + half*256}", f"A3_{u}"))
    return out


W2_PARK = {}


def p3_main(g, npre):
    o = g.opts
    KA = o.get("ka", 17)
    K3 = o.get("k3", 13)
    seq = []
    for u in range(KA):
        seq += [(j, u) for j in ((0, 1, 2, 3) if u < K3 else (0, 1, 2))]
    for j in (0, 1, 2):
        seq += [(j, u) for u in range(KA, 32)]
    seq += [(3, u) for u in range(K3, 32)]
    assert len(seq) == 128
    first = {}
    lastu = {}
    done = {}
    for n, (j, u) in enumerate(seq):
        first.setdefault(u, n)
        lastu[u] = n
        done[j] = n
    PF = o.get("pf3", 5)

    def bread(n):
        j, u = seq[n]
        a = V_L16 if j < 2 else V3_HB
        return ("ds", f"ds_read_b128 {vr(V3_B+4*(n%8),4)}, v{a} offset:{(j%2)*32768 + u*1024}", f"B3_{n}")

    extra = {}

    def put(step, items, half=1):
        extra.setdefault(2 * step + half, []).extend(items)

    LAG13 = o.get("lag13", 16)
    LAG2 = o.get("lag2", 18)
    busy = set()
    bar = {b: first[4 * b] - PF for b in range(1, 8)}
    for b in range(2, 8):
        if bar[b] - bar[b - 1] < 8:
            bar[b] = bar[b - 1]
    hst = {}
    nxt = 1000
    for b in range(7, 1, -1):
        hst[b] = max(2 * (b - 2), min(bar[b] - o.get("hlead", 30), nxt - o.get("hgap", 6)))
        nxt = hst[b]
        busy.update((hst[b], hst[b] + 1))
    slots = [[0, 1000, 0, k * 2048, None] for k in range(4)]
    for b in range(2, 8):
        for k in range(2):
            slots.append([0, hst[b], 1, b * 4096 + k * 2048, None])
    for b in range(0, 6):
        all_done = max(n for n, (j, u) in enumerate(seq) if u // 4 == b)
        fb = [bar[x] for x in bar if bar[x] > all_done + 1]
        if fb:
            for k in range(2):
                slots.append([min(fb) + 1, 1000, 3, b * 4096 + k * 2048, None])
            continue
        lead_done = max(n for n, (j, u) in enumerate(seq) if j < 3 and u // 4 == b)
        fb = [bar[x] for x in bar if bar[x] > lead_done + 1]
        if fb:
            slots.append([min(fb) + 1, 1000, 2, b * 4096, None])
    SB = [S_LB + 1, S_LB, S_FR, S_LB]
    VA13 = [V4_AD + 6, V4_AD + 10, V4_AD + 11, V4_AD + 10]
    VA2 = [V4_AD + 4, V4_AD + 2, 27, V4_AD + 2]
    W2_PARK.clear()
    q13 = list(range(npre, 32))
    q2 = list(range(14))
    st = 0
    last2 = -100
    last13 = -100
    per13 = o.get("per13", 220) / 100.0
    t13 = 0.0
    while q13 or q2:
        assert st < 126, ("ring overflow", q13, q2)
        if st in busy:
            st += 1
            continue
        ok13 = q13 and st >= t13 and (q13[0] < 16 or st >= o.get('s2nd', 20))
        ok2 = q2 and st >= o.get("w2s", 64) and st >= last2 + o.get("w2d", 3)
        if ok13:
            kind, x = "w13", q13[0]
            pk = min(st + LAG13, first[x] - 2)
        elif ok2:
            kind, x = "w2", q2[0]
            pk = min(max(st + LAG2, lastu[x] + 2), 127)
            if x >= o.get("park", 4):
                pk = 500
        else:
            st += 1
            continue
        fr = [sl for sl in slots if sl[0] <= st and pk + 2 <= sl[1]]
        if not fr:
            st += 1
            continue
        sl = min(fr, key=lambda z: (z[1], z[0]))
        off = sl[3]
        pre = []
        if sl[4]:
            pre = [("fn", lambda tg=sl[4]: g.lwait(tg), None)]
        busy.add(st)
        if kind == "w13":
            q13.pop(0)
            t13 = max(t13 + per13, st + 1)
            it = w13_ring_dma(x, off, SB[sl[2]])
            if pk - st < LAG13:
                print("  short lag for unit", x, pk - st)
            assert pk > st, (x, st)
            put(pk, w13_ring_pick(g, x, off, VA13[sl[2]]))
            sl[4] = f"A3_{x}"
        else:
            q2.pop(0)
            last2 = st
            it = w2_dma_items(x, SB[sl[2]], off)
            if pk < 500:
                put(pk, w2_pick_items(g, x, VA2[sl[2]], off))
            else:
                W2_PARK[x] = (SB[sl[2]], VA2[sl[2]], off)
            sl[4] = f"A4_{x}"
        put(st, pre + it[:1], 0); put(st, it[1:], 1)
        sl[0] = pk + 2
        st += 1
    for b in range(2, 8):
        tags = [sl[4] for sl in slots if sl[2] == 1 and sl[3] // 4096 == b and sl[4]]
        pre = [("fn", lambda tags=tags: g.lwait(*tags), None)] if tags else []
        it = p3_h_items(b)
        st = hst[b]
        put(st, pre + it[0:1], 0); put(st, it[1:2], 1); put(st + 1, it[2:3], 0); put(st + 1, it[3:4], 1)
    print("p3 stream ends at step", max(busy))
    def cost(it):
        if it[0] == "fn":
            return 1
        c = 0
        for ln in it[1].split("\n"):
            ln = ln.strip()
            if ln:
                c += 2 if ln.startswith(("v_exp", "v_rcp")) else 1
        return c
    h0 = 2 * (done[0] + 1) + 4
    hend = 256
    span = (hend - h0) // 3
    stst = []
    pc_ = o.get("pol0c", 116)
    for i in range(3):
        ep = p3_epi_sched(i)
        base = max(h0 + i * span, 2 * (done[i] + 1) + 4)
        sp = h0 + (i + 1) * span - base - 1
        if o.get("pack", 1):
            used = {h: (0 if (o.get("lw2", 1) and h % 4 == 1) else 1) + sum(cost(x) for x in extra.get(h, [])) for h in range(base, base + sp)}
            for h in used:
                if h % 2 == 1 and h // 2 > pc_:
                    used[h] += 2
            cap = 5.0
            while True:
                h = base
                fill = dict(used)
                place = []
                ok = True
                for it in ep:
                    while h < base + sp and fill[h] + cost(it) > cap + 0.01:
                        h += 1
                    if h >= base + sp:
                        ok = False
                        break
                    fill[h] += cost(it)
                    place.append(h)
                if ok:
                    break
                cap += 1
            print("epilogue", i, "capacity", cap, "ends", place[-1], "of", base + sp)
            for h, it in zip(place, ep):
                extra.setdefault(h, []).append(it)
            endh = min(place[-1] + 1, base + sp)
        else:
            for k, it in enumerate(ep):
                extra.setdefault(base + k * sp // len(ep), []).append(it)
            endh = base + sp
        extra.setdefault(endh, []).append(("fn", lambda j=i: p3_hh_store(g, j), None))
        stst.append(endh)
    sd = 2 * o.get("sigd", 10)
    late = []
    for i in range(2):
        if stst[i] + sd < 256:
            extra.setdefault(stst[i] + sd, []).append(("fn", lambda i=i: (hh_touch(g, i), signal(g, HPH[i], [f"HHST{i}"])), None))
        else:
            late.append(i)
    assert not late
    nf = 0
    pc = o.get("pol0c", 116)
    if 2 * (pc - 6) >= stst[0] + sd + 2 * o.get("polgap", 3) and pc < 127:
        put(pc - 6, [("fn", lambda: poll_issue(g, HPH[0], "POLLH0"), None)])
        put(pc, [("fn", lambda: poll_check(g, HPH[0], "POLLH0", S_A2 + 2, inline=o.get("inl4", 0)), None)])
        nf = o.get("nf4", 10)
        for i in range(nf):
            stp = min(127, pc + 1 + i)
            assert i < 8 or 2 * stp > stst[1]
            put(stp, [("fn", lambda i=i: p4_load(g, i), None)], 1)
    print("early p4 loads:", nf)

    g.vwait("H0")
    g.lwait_all()
    g("s_barrier")
    g.stamp("p3start")
    for n in range(PF):
        emit_items(g, [bread(n)])
    for n, (j, u) in enumerate(seq):
        bs = [b for b in bar if bar[b] == n]
        if bs:
            g.vwait(f"H{max(bs)}")
            g("s_barrier")
        if o.get("lw2", 1) and n % 2 == 0 and n + 1 < len(seq):
            g.lwait(f"B3_{n+1}", f"A3_{u}")
        else:
            g.lwait(f"B3_{n}", f"A3_{u}")
        A = V3_ACC + 32 * j
        for m in range(2):
            a = A + 16 * m
            c = "0" if u == 0 else vr(a, 16)
            g(f"v_mfma_f32_32x32x16_bf16 {vr(a,16)}, {ar(8*u+4*m,4)}, {vr(V3_B+4*(n%8),4)}, {c}")
            if m == 0 and n + PF < len(seq):
                emit_items(g, [bread(n + PF)])
            emit_items(g, extra.get(2 * n + m, []))
        if n == 63:
            g.stamp("p3pass1")
        if n in (7, 15, 23, 31, 39, 47, 55, 71, 79, 87, 95, 103, 111, 119):
            g.stamp(f"p3s{n}")
    g.stamp("p3mfma")
    return nf


def p4_load(g, n):
    sl, ks = n // 14, n % 14
    if ks % 4 == 0:
        g(f"s_add_u32 s{S_T+4}, s{S_X4+sl}, {(ks//4)*4096}")
    g.vm(f"buffer_load_dwordx4 {vr(V4_B+4*(n%NB4),4)}, v{V_L16}, {sr(S_WS,4)}, s{S_T+4} offen offset:{(ks%4)*1024} sc1", f"B4_{n}")


def p4_ship_items(sl):
    out = []
    for i, r0 in enumerate([8, 16, 24]):
        a = V4_ACC + 32 * sl + r0
        for q in range(2):
            out.append(("ds", f"ds_write_b128 v{V_RED+i}, {vr(a+4*q,4)} offset:{sl*6144 + q*1024}", f"RW{sl}"))
    return out


def p4_get_items(g, sl):
    out = [("fn", lambda: (g.lwait(f"RW{sl}"), g("s_barrier")), None)]
    for i in range(6):
        out.append(("ds", f"ds_read_b128 {vr(V4_ACC+32*sl+8+4*i,4)}, v{V_RED+3} offset:{sl*6144 + i*1024}", f"RR{sl}"))
    return out


def padd(d, x, y, pk):
    if pk:
        return [("v", f"v_pk_add_f32 {vr(d,2)}, {vr(x,2)}, {vr(y,2)}", None)]
    return [("v", f"v_add_f32 v{d}, v{x}, v{y}", None), ("v", f"v_add_f32 v{d+1}, v{x+1}, v{y+1}", None)]


def p4_add_items(g, sl, pk=False):
    a = V4_ACC + 32 * sl
    out = [("fn", lambda: g.lwait(f"RR{sl}"), None)]
    for d in range(4):
        out += padd(a + 2 * d, a + 2 * d, a + 8 + 2 * d, pk)
        out += padd(a + 16 + 2 * d, a + 16 + 2 * d, a + 24 + 2 * d, pk)
    for d in range(4):
        out += padd(a + 2 * d, a + 2 * d, a + 16 + 2 * d, pk)
    return out


def p4_send(g, sl):
    a = V4_ACC + 32 * sl
    for d in range(4):
        g(f"v_cvt_pk_bf16_f32 v{a+8+d}, v{a+2*d}, v{a+2*d+1}")
    va = V_L16 if sl == 0 else V4_AD + 9
    g.vm(f"buffer_store_dwordx4 {vr(a+8,4)}, v{va}, {sr(S_WS,4)}, s{S_M4+2} offen sc1", f"XST{sl}")


def p4_recv(g, ti):
    va = V_L16 if ti == 0 else V4_AD + 9
    g.vm(f"buffer_load_dwordx4 {vr(V4_R+4*ti,4)}, v{va}, {sr(S_WS,4)}, s{S_M4+3} offen sc1", f"XLD{ti}")


def p4_extra_items(g, src, dst, pk=False, tmp=None):
    out = []
    tmp = dst + 8 if tmp is None else tmp
    for d in range(4):
        out.append(("v", f"v_lshlrev_b32 v{tmp+2*d}, 16, v{src+d}", None))
        out.append(("v", f"v_and_b32 v{tmp+1+2*d}, 0xffff0000, v{src+d}", None))
    for d in range(4):
        out += padd(dst + 2 * d, dst + 2 * d, tmp + 2 * d, pk)
    return out


def p4_out(g, sl):
    a = V4_ACC + 32 * sl
    for d in range(4):
        g(f"v_cvt_pk_bf16_f32 v{a+8+d}, v{a+2*d}, v{a+2*d+1}")
    fl = " " + g.opts.get("outfl", "sc0")
    if sl == 2:
        g.vm(f"buffer_store_dwordx4 {vr(a+8,4)}, v{V4_AD+7}, {sr(S_OUT,4)}, 0 offen{fl}", "OUT")
    else:
        g(f"s_mov_b32 s{S_T}, 32768")
        g.vm(f"buffer_store_dwordx4 {vr(a+8,4)}, v{V4_AD+7}, {sr(S_OUT,4)}, s{S_T} offen{fl}", "OUT")


def p4_main(g, nloaded):
    o = g.opts
    PFN = o.get("pf4", 10)
    g.lwait_all()
    g.stamp("p4pre")
    ex = {}

    def put(hs, items, step=1):
        for i, it in enumerate(items):
            ex.setdefault(hs + int(i * step), []).append(it)
    F = lambda f: [("fn", f, None)]
    put(1, F(lambda: (hh_touch(g, 2), signal(g, HPH[2], ["HHST2"]))))
    put(2 * o.get("sig3b", 6), F(lambda: (hh_touch(g, 3), signal(g, HPH[3], ["HHST3"]))))
    if W2_PARK:
        k0 = min(W2_PARK)
        for x in sorted(W2_PARK):
            put(max(0, 2 * (x - k0)), w2_pick_items(g, x, *W2_PARK[x][1:]), 0.4)
        put(2 * 15, F(lambda: (g.lwait("A4_13"), g("s_barrier"))))
    else:
        put(2 * 8, F(lambda: g("s_barrier")))
    pol = {1: (-1, o.get("p1c", 4)), 2: (o.get("p2i", 9), o.get("p2c", 18)), 3: (o.get("p3i", 22), o.get("p3c", 32))}
    if o.get("p4v", 0) == 0:
        put(2 * 16, p4_ship_items(0), 1.5)
        put(2 * 21, p4_get_items(g, 0), 0.5)
        put(2 * 23 + 1, p4_add_items(g, 0), 0.25)
        put(2 * 27, F(lambda: p4_send(g, 0)))
        put(2 * 29 + 1, p4_ship_items(1), 1)
        put(2 * 33, p4_get_items(g, 1), 0.34)
        put(2 * 35, p4_add_items(g, 1), 0.25)
        put(2 * 38 + 1, F(lambda: p4_send(g, 1)))
        put(2 * o.get("xs1", 47), F(lambda: signal(g, 4, ["XST0", "XST1"])))
        put(2 * 44, p4_ship_items(2), 1)
        put(2 * 48, p4_get_items(g, 2), 0.34)
        put(2 * 50, p4_add_items(g, 2), 0.25)
        put(2 * o.get("xp1", 50), F(lambda: poll_issue(g, 4, "POLL4")))
        put(2 * o.get("xc1", 53), F(lambda: (poll_check(g, 4, "POLL4", S_M4, inline=o.get("inl4", 0)), p4_recv(g, 0), p4_recv(g, 1))))
        put(2 * 53 + 1, p4_extra_items(g, V_HK, V4_ACC + 64), 0.25)
    else:
        put(2 * 16, p4_ship_items(0), 3.5)
        put(2 * 29 + 1, p4_ship_items(1), 1.5)
        g0 = p4_get_items(g, 0)
        g1 = p4_get_items(g, 1)
        put(2 * 34 + 1, g1[:1] + g0[1:] + g1[1:], 0.5)
        put(2 * 37 + 1, p4_add_items(g, 0), 0.25)
        put(2 * 40 + 1, F(lambda: p4_send(g, 0)))
        put(2 * 41, p4_add_items(g, 1), 0.25)
        put(2 * 44, F(lambda: p4_send(g, 1)))
        put(2 * o.get("xs1", 50), F(lambda: signal(g, 4, ["XST0", "XST1"])))
        put(2 * 45, p4_ship_items(2), 1.5)
        put(2 * 51, p4_extra_items(g, V_HK, V4_ACC + 64, tmp=V4_ACC + 16), 0.34)
        put(2 * o.get("xp1", 53), F(lambda: poll_issue(g, 4, "POLL4")))
    nl = nloaded
    for n in range(56):
        sl, ks = n // 14, n % 14
        if n in (7, 14, 21, 28, 35, 42, 49):
            g.stamp(f"p4n{n}")
        for sx, (pi, pc) in pol.items():
            if n == pi:
                poll_issue(g, HPH[sx], f"POLLH{sx}", sx & 1)
            if n == pc:
                poll_check(g, HPH[sx], f"POLLH{sx}", S_A2 + 2, sx & 1, inline=o.get("inl4", 0))
        g.vwait(f"B4_{n}")
        if sl == 0:
            g.lwait(f"A4_{ks}")
        for ia in range(2):
            a = V4_ACC + 32 * sl + 16 * ia
            c = "0" if ks == 0 else vr(a, 16)
            g(f"v_mfma_f32_32x32x16_bf16 {vr(a,16)}, {ar(8*ks+4*ia,4)}, {vr(V4_B+4*(n%NB4),4)}, {c}")
            if nl < 56 and nl <= n + PFN and (nl < 14 or n >= pol[nl // 14][1]):
                p4_load(g, nl)
                nl += 1
            emit_items(g, ex.get(2 * n + ia, []))
    g.stamp("p4mfma")
    g("s_nop 1")
    R = V4_B
    unpack_bf16(g, R, V_HK + 4, 4)
    g("s_nop 1")
    emit_items(g, p4_ship_items(3))
    if o.get("p4v", 0):
        poll_check(g, 4, "POLL4", S_M4)
        p4_recv(g, 0)
        p4_recv(g, 1)
        g3 = p4_get_items(g, 3)
        emit_items(g, g3[:1] + p4_get_items(g, 2)[1:] + g3[1:])
        emit_items(g, p4_add_items(g, 2, True))
        emit_items(g, p4_add_items(g, 3, True))
        a = V4_ACC + 96
        for d in range(4):
            g(f"v_pk_add_f32 {vr(a+2*d,2)}, {vr(a+2*d,2)}, {vr(R+2*d,2)}")
        g.vwait("XLD0")
        emit_items(g, p4_extra_items(g, V4_R, V4_ACC + 64, True))
        p4_out(g, 2)
        g.vwait("XLD1")
        emit_items(g, p4_extra_items(g, V4_R + 4, a, True))
        p4_out(g, 3)
        return
    g.vwait("XLD1")
    emit_items(g, p4_extra_items(g, V4_R + 4, R, True))
    emit_items(g, p4_get_items(g, 3))
    emit_items(g, p4_extra_items(g, V4_R, V4_ACC + 64, True))
    p4_out(g, 2)
    emit_items(g, p4_add_items(g, 3, True))
    a = V4_ACC + 96
    for d in range(4):
        g(f"v_pk_add_f32 {vr(a+2*d,2)}, {vr(a+2*d,2)}, {vr(R+2*d,2)}")
    p4_out(g, 3)


def idle_warm13(g):
    lab = g.lab("iw")
    g(f"s_cmp_ge_u32 s{S_M}, 14\ns_cbranch_scc1 {lab}\n{lab}_j:")
    g.cold.append(f"""{lab}:

        s_lshl_b32 s{S_T}, s{S_G}, 1
        s_and_b32 s{S_T+1}, s{S_M}, 1
        s_add_u32 s{S_T}, s{S_T}, s{S_T+1}
        s_lshl_b32 s{S_T}, s{S_T}, 2
        s_add_u32 s{S_T}, s{S_T}, s{S_WAVE}
        s_mul_i32 s{S_T}, s{S_T}, 7168
        s_add_u32 s{S_T}, s{S_T}, {256*3584}
        s_mov_b32 exec_hi, 0x00ffffff
        buffer_load_dword v3, v2, {sr(S_W1,4)}, s{S_T} offen
        buffer_load_dword v3, v2, {sr(S_W3,4)}, s{S_T} offen
        s_mov_b64 exec, -1
        
    s_branch {lab}_j""")


def write_stamps(g):
    if not g.stamps:
        return
    if g.opts.get("probe", 0):
        a = S_STAMP
        b = S_STAMP + 2 * (g.nst - 1)
        g(f"""
        s_waitcnt lgkmcnt(0)
        s_sub_u32 s{S_T}, s{b}, s{a}
        s_mul_i32 s{S_T}, s{S_T}, {g.opts["probe"]}
        s_memrealtime s[{a+4}:{a+5}]
        s_waitcnt lgkmcnt(0)
        s_add_u32 s{S_T}, s{S_T}, s{a+4}
        L_probe:
        s_memrealtime s[{a+4}:{a+5}]
        s_waitcnt lgkmcnt(0)
        s_sub_u32 s{S_T+1}, s{a+4}, s{S_T}
        s_cmp_lt_i32 s{S_T+1}, 0
        s_cbranch_scc1 L_probe
        """)
        return
    g(f"""
    s_waitcnt lgkmcnt(0) vmcnt(0)
    s_lshl_b32 s{S_T}, s{S_M}, 2
    s_add_u32 s{S_T}, s{S_T}, s{S_WAVE}
    s_lshl_b32 s{S_T}, s{S_T}, 6
    s_add_u32 s{S_T}, s{S_T}, {WS_STAMP}
    v_mov_b32 v2, 0
    """)
    for i in range(g.nst):
        g(f"v_mov_b32 v3, s{S_STAMP+2*i}")
        g(f"buffer_store_dword v3, v2, {sr(S_WS,4)}, s{S_T} offen offset:{i*4}")
    g(f"v_mov_b32 v3, s{S_FAST}")
    g(f"buffer_store_dword v3, v2, {sr(S_WS,4)}, s{S_T} offen offset:60")


def build(stamps=False, opts=None):
    g = G(stamps, opts)
    o = g.opts
    for k_ in ("srow", "x", "pre", "w"):
        if o.get("nt" + k_, 1 if k_ in ("srow", "x") else 0):
            NT[k_] = " nt"
    n_a = o.get("n_a", 2)
    n_b = o.get("n_b", 1)
    n_c = o.get("n_c", 5)
    n_d = o.get("n_d", 3)
    prologue(g)
    code_prefetch(g, o.get("codesz", 28672))
    p1_setup(g)
    p1_setup_offsets(g)
    if o.get("r3b", 1):
        touch_res3b_pre(g)
    for r_, sz in ((S_WQKV, 1572864), (S_X, 2097152), (S_WS, WS_SIZE), (S_WO, 524288)):
        g(f"s_mov_b32 s{r_+2}, {sz}\ns_mov_b32 s{r_+3}, 0x20000")
    g("s_waitcnt lgkmcnt(0)")
    g(f"s_and_b32 s{S_WQKV+1}, s{S_WQKV+1}, 0xffff\ns_and_b32 s{S_X+1}, s{S_X+1}, 0xffff")
    g.stamp("args")
    x0 = p1_dma_x(0)
    w0_ = p1_dma_w(0)
    xo = o.get("xfirst", 2)
    if xo == 0:
        emit_items(g, [touch_res3(g, S_WQKV, 12)] + w0_ + x0[:3])
    elif xo == 1:
        emit_items(g, [touch_res3(g, S_WQKV, 12)] + x0 + w0_[:3])
    else:
        emit_items(g, [touch_res3b(g) if o.get("r3b", 1) else touch_res3(g, S_WQKV, 12)] + w0_[:3] + x0)
    g.stamp("i2")
    nonce_publish(g)
    g(f"""s_lshl_b32 s{S_T}, s{S_G}, 20
    s_add_u32 s{S_WS}, s{S_WS}, s{S_T}
    s_addc_u32 s{S_WS+1}, s{S_WS+1}, 0
    s_and_b32 s{S_WS+1}, s{S_WS+1}, 0xffff
    s_and_b32 s{S_WO+1}, s{S_WO+1}, 0xffff""")
    dfr = setup_deferred(g)
    emit_items(g, dfr[:16])
    if o.get("tlb", 0):
        lab = g.lab("tlb")
        g(f"""
        s_lshl_b32 s{S_T}, s2, 10
        s_mov_b64 exec, 1
        s_cmp_lg_u32 s{S_WAVE}, 0
        s_cbranch_scc1 {lab}_1
        buffer_load_dword v3, v2, {sr(S_W1,4)}, s{S_T} offen
        buffer_load_dword v3, v2, {sr(S_WO,4)}, s{S_T} offen
        s_branch {lab}_e
        {lab}_1:
        s_cmp_lg_u32 s{S_WAVE}, 1
        s_cbranch_scc1 {lab}_2
        buffer_load_dword v3, v2, {sr(S_W3,4)}, s{S_T} offen
        buffer_load_dword v3, v2, {sr(S_W2,4)}, s{S_T} offen
        s_branch {lab}_e
        {lab}_2:
        s_cmp_lg_u32 s{S_WAVE}, 2
        s_cbranch_scc1 {lab}_3
        buffer_load_dword v3, v2, {sr(S_OUT,4)}, s{S_T} offen
        global_load_dword v3, v{V_NA}, s[{S_DBG}:{S_DBG+1}] offset:128 sc1
        s_branch {lab}_e
        {lab}_3:
        s_lshl_b32 s{S_T}, s{S_M}, 7
        s_add_u32 s{S_T}, s{S_T}, 0xe0000
        buffer_load_dword v3, v2, {sr(S_WS,4)}, s{S_T} offen sc1
        {lab}_e:
        s_mov_b64 exec, -1
        """)
    setup_rest(g)
    emit_items(g, dfr[16:])
    p1_stats_addr(g)
    g.stamp("setup")
    emit_items(g, x0[3:] if xo == 0 else w0_[3:])
    if o.get("ord", 1) == 0:
        emit_items(g, p1_dma_w(1) + p1_srow_items())
    else:
        emit_items(g, p1_srow_items() + p1_dma_w(1))
    g.stamp("issued")
    assert n_a <= NSLOT
    if not o.get("woraw", 0):
        g.bg += wo_dma_items()
    for u in range(min(3, n_a)):
        g.bg += w13_dma_items(u)
    p1_gemm(g)
    g.lwait("WOW")
    g("s_barrier")
    for u in range(3, n_a):
        g.bg += w13_dma_items(u)
    if o.get("kpre", 9) == 16:
        pr = preread_items()
        emit_items(g, pr)
    g.skip = o.get("askip", 6)
    g.budget = o.get("abud", 8)
    p1_attention(g)
    g.budget = None
    g.skip = 0
    sf = o.get("sigfirst", 4)
    if sf:
        g.tick(sf - 1) if sf > 1 else None
        g.T = 16
        w13_stage_setup(g)
        p2_pre(g)
        signal(g, 0, ["OST"])
    g.tick(100)
    g.T = 16
    g.stamp("attn")
    u0 = n_a
    assert n_a + n_b <= NSLOT
    for u in range(u0, u0 + n_b):
        emit_items(g, w13_dma_items(u))
    ea = o.get("earlyA", 0)
    rest = []
    for ks in range(8 if ea else 0, 16):
        rest += p2_a_items(ks)
    if ea:
        emit_items(g, rest[8:24])
    if not sf:
        w13_stage_setup(g)
        p2_pre(g)
        signal(g, 0, ["OST"])
    g.stamp("p1done")
    w0 = o.get("w0poll", 0)
    if not w0 & 1:
        poll_issue(g, 0, "POLL1")
    if not ea:
        g.vwait("WO")
        g("s_barrier")
        na0 = o.get("na0", 24)
        emit_items(g, rest[:na0])
        o["_late"] = rest[na0:]
    else:
        emit_items(g, rest[:8])
        o["_late"] = rest[24:]
    p3_pre(g)
    for u in range(n_a):
        emit_items(g, w13_pick_items(g, u))
    if w0 & 1:
        poll_w0(g, 0, 6)
        g("s_barrier")
    else:
        poll_check(g, 0, "POLL1", 6, inline=o.get("inl", 0))
    g.stamp("f1")
    if n_a:
        g.lwait(f"A3_{n_a-1}")
    u0 += n_b
    assert n_b + n_c + n_d <= NSLOT
    if o.get("iw", 0) == 2:
        g.bg.append(("fn", lambda: (idle_warm13(g), g.tick()), None))
    for u in range(u0, u0 + n_c):
        g.bg += w13_dma_items(u)
    o["_picks"] = [it for u in range(n_a, u0 + n_c) for it in w13_pick_items(g, u)]
    p2_main(g)
    assert not g.bg
    u0 += n_c
    if o.get("iw", 0) == 1:
        idle_warm13(g)
    if o.get("sig2first", 0):
        signal(g, 1, ["HST"])
    for u in range(u0, u0 + n_d):
        emit_items(g, w13_dma_items(u))
    npre = u0 + n_d
    if not o.get("sig2first", 0):
        signal(g, 1, ["HST"])
    if o.get("iw", 0) == 3:
        idle_warm13(g)
    g.stamp("p2done")
    if not w0 & 2:
        poll_issue(g, 1, "POLL2")
    g("s_mov_b64 s[6:7], -1")
    p34_pre(g, 1)
    for u in range(u0, npre):
        emit_items(g, w13_pick_items(g, u))
    g.lwait_all()
    if w0 & 2:
        poll_w0(g, 1, 6)
    g("s_barrier")
    hk_exchange_read(g)
    g(f"s_cmp_ge_u32 s{S_M}, 14\ns_cbranch_scc1 L_idle3")
    if not w0 & 2:
        poll_check(g, 1, "POLL2", 6, inline=o.get("inl", 0))
    g.stamp("f2")
    emit_items(g, p3_h_items(0) + p3_h_items(1))
    got = p3_main(g, npre)
    nf = got if got else 8
    ep = p3_epi_sched(TORD[3])
    if not got:
        poll_issue(g, HPH[0], "POLLH0")
    g("s_nop 7\ns_nop 3")
    emit_items(g, ep[:40])
    if not got:
        poll_check(g, HPH[0], "POLLH0", S_A2 + 2)
        for i in range(nf):
            p4_load(g, i)
    poll_issue(g, HPH[1], "POLLH1", 1)
    emit_items(g, ep[40:])
    p3_hh_store(g, TORD[3])
    g.stamp("p3done")
    g("L_p4:")
    p4_main(g, nf)
    g.stamp("end")
    write_stamps(g)
    g("L_done:\ns_endpgm")
    g("L_idle3:")
    g.vq = []
    g.lq = []
    if o.get("iw", 0) == 0:
        idle_warm13(g)
    if o.get("idlepf", 1):
        g(f"""
        s_and_b32 s{S_T}, s{S_G}, 1
        s_lshl_b32 s{S_T}, s{S_T}, 1
        s_and_b32 s{S_T+1}, s{S_M}, 1
        s_add_u32 s{S_T}, s{S_T}, s{S_T+1}
        s_mul_i32 s{S_T}, s{S_T}, {448*1024}
        s_lshl_b32 s{S_T+1}, s{S_WAVE}, 13
        s_add_u32 s{S_T}, s{S_T}, s{S_T+1}
        s_min_u32 s{S_T+1}, s{S_XCD}, 6
        s_lshl_b32 s{S_T+1}, s{S_T+1}, 16
        s_add_u32 s{S_T+1}, s{S_T+1}, s{S_T}
        buffer_load_dword v3, v2, {sr(S_W2,4)}, s{S_T+1} offen
        s_add_u32 s{S_T+1}, s{S_T+1}, 32768
        buffer_load_dword v3, v2, {sr(S_W2,4)}, s{S_T+1} offen
        """)
        if o.get("idr3", 1):
            g(f"""
            v_lshlrev_b32 v{g.T+5}, 10, v{V_L}
            s_mul_i32 s{S_T+1}, s{S_WAVE}, {112*1024 - 8192}
            s_add_u32 s{S_T+1}, s{S_T+1}, s{S_T}
            s_waitcnt vmcnt(0)
            buffer_load_dword v3, v{g.T+5}, {sr(S_W2,4)}, s{S_T+1} offen offset:384
            s_add_u32 s{S_T+1}, s{S_T+1}, {56*1024}
            buffer_load_dword v3, v{g.T+5}, {sr(S_W2,4)}, s{S_T+1} offen offset:384
            """)
        for _ in range(o.get("idsl", 0)):
            g("s_sleep 16")
        for j in [0, 7, 1, 8, 2, 9, 3, 10, 4, 11, 5, 12, 6, 13][:o.get('idn', 0)]:
            g(f"s_add_u32 s{S_T+1}, s{S_T}, {j*32768}")
            g(f"buffer_load_dword v3, v2, {sr(S_W2,4)}, s{S_T+1} offen")
    g.lwait_all()
    g("s_barrier")
    nk = [ks for ks in range(14) if ks not in W2_PARK]
    for ks in nk:
        emit_items(g, w2_dma_items(ks, S_LB, ks * 2048))
    for ks in nk:
        emit_items(g, w2_pick_items(g, ks, V4_AD + 2, ks * 2048))
    g.lwait_all()
    if W2_PARK:
        g("s_barrier")
    for ks in sorted(W2_PARK):
        emit_items(g, w2_dma_items(ks, W2_PARK[ks][0], W2_PARK[ks][2]))
    if o.get("wbl2", 0):
        g(f"""
        s_cmp_lg_u32 s{S_IDXW}, {31*4}
        s_cbranch_scc1 L_nowb
        buffer_wbl2 sc1
        L_nowb:
        """)
    poll_issue(g, HPH[0], "POLLH0")
    poll_check(g, HPH[0], "POLLH0", S_A2 + 2, slp=True)
    for i in range(nf):
        p4_load(g, i)
    poll_issue(g, HPH[1], "POLLH1", 1)
    g.vwait_all()
    g("s_branch L_p4")
    for c in g.cold:
        g(c)
    g("L_codeend:")
    return g


if __name__ == "__main__":
    out = sys.argv[1] if len(sys.argv) > 1 else "k.s"
    stamps = "--stamps" in sys.argv
    if "--cyc" in sys.argv:
        stamps = "cyc"
    opts = {}
    if "--slow" in sys.argv:
        opts["slow"] = True
    for a in sys.argv:
        if a.startswith("--st="):
            opts["stsel"] = a[5:].split(",")
        if a.startswith("--o:"):
            k, v = a[4:].split("=")
            opts[k] = int(v) if v.lstrip("-").isdigit() else v
    g = build(stamps, opts)
    emit_file(out, [g.k], single=True)
    print("stamps:", g.nst, g.stnames, "lines:", len(g.k.lines))
```
